```python
import torch

def _softmax(x, axis=-1):
    return torch.softmax(x, dim=axis)

def _gelu(x):
    return torch.nn.functional.gelu(x, approximate='tanh')

def _silu(x):
    return torch.nn.functional.silu(x)

def _sigmoid(x):
    return torch.sigmoid(x)

def _layernorm(x, axis=-1, eps=1e-05):
    m = x.mean(dim=axis, keepdim=True)
    v = x.var(dim=axis, keepdim=True, unbiased=False)
    return (x - m) / torch.sqrt(v + eps)

def _scatter_add(tgt, idx, src, axis=0):
    return tgt.clone().index_add_(axis, idx, src)

def _segment_sum(src, seg, n):
    out = torch.zeros((n,) + src.shape[1:], dtype=src.dtype)
    return out.index_add_(0, seg, src)

def _pad(x, pw):
    flat = tuple((v for pair in reversed(pw) for v in pair))
    return torch.nn.functional.pad(x, flat)
kernel_name = 'adaLN_cond__sliding_block__glu_gated_glu__prompt'

def setup_inputs():

    _w = lambda a: (lambda t: t.to(torch.bfloat16) if t.is_floating_point() else t)(torch.as_tensor(a))

    def _A_setup():
        B, S, D = (1, 2048, 512)
        return {'x': _w((lambda *s: torch.randn(*s, dtype=torch.bfloat16) * 0.05)(B, S, D)), 'wqkv': _w((lambda *s: torch.randn(*s, dtype=torch.bfloat16) * 0.05)(D, 3 * D)), 'wo': _w((lambda *s: torch.randn(*s, dtype=torch.bfloat16) * 0.05)(D, D))}
    _A_in = _A_setup()

    def _B_setup():
        B, S, D, F = (1, 2048, 512, 1792)
        return {'x': _w((lambda *s: torch.randn(*s, dtype=torch.bfloat16) * 0.05)(B, S, D)), 'w_gate': _w((lambda *s: torch.randn(*s, dtype=torch.bfloat16) * 0.05)(D, F)), 'w_up': _w((lambda *s: torch.randn(*s, dtype=torch.bfloat16) * 0.05)(D, F)), 'w_down': _w((lambda *s: torch.randn(*s, dtype=torch.bfloat16) * 0.05)(F, D))}
    _B_in = _B_setup()
    return {'A_x': _A_in['x'], 'A_wqkv': _A_in['wqkv'], 'A_wo': _A_in['wo'], 'B_x': _B_in['x'], 'B_w_gate': _B_in['w_gate'], 'B_w_up': _B_in['w_up'], 'B_w_down': _B_in['w_down'], 'c': _w((lambda *s: torch.randn(*s, dtype=torch.bfloat16) * 0.1)(1, 512) * 8.0), 'w_mod': _w((lambda *s: torch.randn(*s, dtype=torch.bfloat16) * 0.1)(512, 6 * 512) * 512 ** (-0.5) * 8.0)}

def reference(A_x, A_wqkv, A_wo, B_x, B_w_gate, B_w_up, B_w_down, c, w_mod):

    def _A_ref(x, wqkv, wo):
        B, S, D = x.shape
        H = 32
        Dh = D // H
        W = 256
        qkv = (lambda x, *d: x.permute(*d))((x @ wqkv).reshape(B, S, 3, H, Dh), 2, 0, 3, 1, 4)
        q, k, v = (qkv[0], qkv[1], qkv[2])
        scores = torch.einsum('bhqd,bhkd->bhqk', q, k) * Dh ** (-0.5)
        idx = torch.arange(S)
        mask = (idx[:, None] - idx[None, :] >= 0) & (idx[:, None] - idx[None, :] < W)
        scores = torch.where(mask[None, None], scores, -1000000000.0)
        p = _softmax(scores, axis=-1)
        o = torch.einsum('bhqk,bhkd->bhqd', p, v)
        return (lambda x, *d: x.permute(*d))(o, 0, 2, 1, 3).reshape(B, S, D) @ wo

    def _B_ref(x, w_gate, w_up, w_down):
        g = torch.einsum('bsd,df->bsf', x, w_gate)
        u = torch.einsum('bsd,df->bsf', x, w_up)
        h = _sigmoid(g) * u
        return torch.einsum('bsf,fd->bsd', h, w_down)
    x = A_x
    mod = (_silu(c) @ w_mod).reshape(c.shape[0], 6, 1, -1)
    sa, ca, ga, sb, cb, gb = (mod[:, 0].clone(), mod[:, 1].clone(), mod[:, 2].clone(), mod[:, 3].clone(), mod[:, 4].clone(), mod[:, 5].clone())
    h = _layernorm(x, axis=-1) * (1 + ca) + sa
    x = x + ga * _A_ref(h, A_wqkv, A_wo)
    h = _layernorm(x, axis=-1) * (1 + cb) + sb
    x = x + gb * _B_ref(h, B_w_gate, B_w_up, B_w_down)
    return x
```

```python
from lib import *
LOG2E = 0x3fb8aa3b
def lane_setup(k):
    k("""v_and_b32 v1, 63, v0
    v_lshrrev_b32 v4, 6, v0
    v_and_b32 v2, 15, v0
    v_readfirstlane_b32 s4, v4
    v_bfe_u32 v3, v0, 4, 2""")

def gemv_tile(k, wsrd, stride, scol, bfrag, pre):
    k(f"""v_lshrrev_b32 v5, 1, v1
    v_mul_u32_u24 v5, {stride}, v5
    v_and_b32 v6, 1, v1
    v_lshl_add_u32 v5, v6, 4, v5
    s_mul_i32 s5, s4, {128*stride}
    s_add_u32 s5, s5, s{scol}
    s_lshl_b32 s6, s4, 12""")
    k("s_waitcnt lgkmcnt(0)")
    pre()
    for p in range(4):
        k(f"s_add_u32 m0, s6, {p*1024}\ns_add_u32 s7, s5, {p*32*stride}")
        k.dma(5, wsrd, 's7', 'w')
    bfrag()
    k("""v_lshrrev_b32 v6, 2, v2
    v_lshl_add_u32 v6, v3, 3, v6
    v_lshlrev_b32 v6, 5, v6
    v_and_b32 v7, 3, v2
    v_lshl_add_u32 v6, v7, 3, v6
    v_add_u32 v6, s6, v6""")
    k.vm.wait('w')
    for s in range(4):
        for h in range(2): k.trd(vr(44+4*s+2*h, 2), 6, s*1024 + h*128)
    k.lg.all()
    for s in range(4): k.mfma16(vr(40,4), vr(44+4*s,4), vr(16+4*s,4), '0' if s == 0 else vr(40,4))
    k("v_lshlrev_b32 v7, 4, v0\ns_nop 7\ns_nop 1")
    k.dsw(7, vr(40,4), 16384); k.lg.all()
    k("s_barrier\ns_cmp_lg_u32 s4, 0\ns_cbranch_scc1 " + k.name + "_end")
    for w in range(1, 4): k.dsr(vr(40+4*w,4), 7, 16384 + w*1024)
    k.lg.all()
    for w in range(1, 4):
        for r in range(4): k(f"v_add_f32 v{40+r}, v{40+r}, v{40+4*w+r}")

def k0():
    k = Kern("p0_kernel", 320, 256, 20480, 64)
    k("s_cmp_ge_u32 s2, 320\ns_cbranch_scc1 p0_kernel_end")
    k.srds(dict(wmod=8, c=12, ws=16, x=20))
    lane_setup(k)
    k("s_cmp_ge_u32 s2, 192\ns_cbranch_scc1 p0_ln")
    k("s_and_b32 s24, s2, 7\ns_mul_i32 s24, s24, 24\ns_lshr_b32 s25, s2, 3\ns_add_u32 s24, s24, s25\ns_lshl_b32 s25, s24, 5")
    def pre():
        k("v_lshlrev_b32 v8, 4, v3\ns_lshl_b32 s26, s4, 8")
        for s in range(4): k.bload(vr(16+4*s,4), 8, 12, 's26', s*64, 'c')
    def bfrag():
        k.vm.wait('c')
        k(f"s_mov_b32 s27, 0x{LOG2E ^ 0x80000000:x}")
        for r in range(16):
            k(f"""v_lshlrev_b32 v32, 16, v{16+r}
            v_and_b32 v33, 0xffff0000, v{16+r}
            v_mul_f32 v34, s27, v32
            v_mul_f32 v35, s27, v33
            v_exp_f32 v34, v34
            v_exp_f32 v35, v35
            s_nop 0
            v_add_f32 v34, 1.0, v34
            v_add_f32 v35, 1.0, v35
            v_rcp_f32 v34, v34
            v_rcp_f32 v35, v35
            s_nop 0
            v_mul_f32 v34, v34, v32
            v_mul_f32 v35, v35, v33
            v_cvt_pk_bf16_f32 v{16+r}, v34, v35""")
    gemv_tile(k, 8, 6144, 25, bfrag, pre)
    for r in range(4): k.bfround(40+r)
    k("s_lshr_b32 s26, s24, 5\ns_cmp_eq_u32 s26, 1\ns_cselect_b32 s27, 1.0, 0\ns_cmp_eq_u32 s26, 4\ns_cselect_b32 s27, 1.0, s27")
    for r in range(4):
        k(f"v_add_f32 v{40+r}, s27, v{40+r}"); k.bfround(40+r)
    k("v_lshlrev_b32 v8, 4, v3\ns_lshl_b32 s26, s24, 6\nv_cmp_eq_u32 vcc, 0, v2\ns_and_saveexec_b64 s[28:29], vcc")
    k.bstore(vr(40,4), 8, 16, 's26', MOD)
    k("s_endpgm")
    k("p0_ln:\ns_sub_u32 s24, s2, 192")
    k("""v_lshlrev_b32 v5, 10, v2
    v_lshl_add_u32 v5, v3, 4, v5
    s_lshl_b32 s25, s24, 14
    s_lshl_b32 s26, s4, 8
    s_add_u32 s25, s25, s26
    s_waitcnt lgkmcnt(0)""")
    for s in range(4): k.bload(vr(8+4*s,4), 5, 20, 's25', s*64, 'x')
    k("v_mov_b32 v56, 0\nv_mov_b32 v57, 0")
    k.vm.all()
    for r in range(16):
        k(f"v_lshlrev_b32 v{24+2*r}, 16, v{8+r}\nv_and_b32 v{25+2*r}, 0xffff0000, v{8+r}")
    for r in range(32):
        k(f"v_add_f32 v56, v56, v{24+r}\nv_fmac_f32 v57, v{24+r}, v{24+r}")
    k.xsum(56, 58); k.xsum(57, 58)
    k("v_lshlrev_b32 v6, 3, v2\ns_lshl_b32 s26, s4, 7\nv_add_u32 v7, s26, v6")
    k.dsw(7, vr(56,2), 0, w=64); k.lg.all()
    k("s_barrier")
    for w in range(4): k.dsr(vr(8+2*w,2), 6, w*128, w=64)
    k.lg.all()
    k("""v_add_f32 v8, v8, v10
    v_add_f32 v12, v12, v14
    v_add_f32 v9, v9, v11
    v_add_f32 v13, v13, v15
    v_add_f32 v8, v8, v12
    v_add_f32 v9, v9, v13""")
    ln_scalars(k, 8, 9, 10)
    for r in range(32):
        k(f"v_sub_f32 v{24+r}, v{24+r}, v8")
    for r in range(16):
        k(f"v_cvt_pk_bf16_f32 v10, v{24+2*r}, v{25+2*r}\nv_lshlrev_b32 v11, 16, v10\nv_and_b32 v10, 0xffff0000, v10")
        k(f"v_mul_f32 v11, v11, v9\nv_mul_f32 v10, v10, v9\nv_cvt_pk_bf16_f32 v{24+r}, v11, v10")
    k(f"v_lshlrev_b32 v5, 4, v1\ns_lshl_b32 s25, s24, 14\ns_lshl_b32 s26, s4, 12\ns_add_u32 s25, s25, s26\ns_add_u32 s25, s25, {XN}")
    for s in range(4): k.bstore(vr(24+4*s,4), 5, 16, 's25', s*1024)
    k("p0_kernel_end:\ns_endpgm")
    return k

def ln_scalars(k, a, b, t):
    k(f"""v_mul_f32 v{a}, 0x3b000000, v{a}
    v_mul_f32 v{t}, v{a}, v{a}
    v_mul_f32 v{b}, 0x3b000000, v{b}
    v_sub_f32 v{b}, v{b}, v{t}
    v_max_f32 v{b}, 0, v{b}""")
    k.bfround(a); k.bfround(b)
    k(f"v_add_f32 v{b}, 0x3727c5ac, v{b}"); k.bfround(b)
    k(f"v_sqrt_f32 v{b}, v{b}\ns_nop 0"); k.bfround(b)
    k(f"v_rcp_f32 v{b}, v{b}\ns_nop 0")

def k1(rbx=4):
    k = Kern("p1_kernel", 256, 256, 98304+4096, 256, 0)
    k("s_cmp_ge_u32 s2, 256\ns_cbranch_scc1 p1_kernel_end")
    k.srds(dict(wqkv=8, ws=12))
    lane_setup(k)
    map16(k, rbx)
    XR, AC, WF, MS, HB = 16, 144, 192, 216, 232
    k("""v_lshrrev_b32 v5, 2, v1
    v_and_b32 v6, 3, v1
    v_bfe_u32 v7, v1, 5, 1
    v_lshlrev_b32 v7, 1, v7
    v_xor_b32 v6, v6, v7
    v_mul_u32_u24 v5, 3072, v5
    v_lshl_add_u32 v5, v6, 4, v5
    v_lshlrev_b32 v6, 4, v1""")
    k(f"""s_mul_i32 s22, s4, {32*3072}
    s_lshl_b32 s23, s21, 6
    s_add_u32 s22, s22, s23
    s_lshl_b32 s23, s4, 11
    s_lshl_b32 s24, s20, 17
    s_lshl_b32 s25, s4, 15
    s_add_u32 s24, s24, s25
    s_add_u32 s24, s24, {XN}
    s_lshl_b32 s26, s4, 10
    s_add_u32 m0, s26, 98304
    s_waitcnt lgkmcnt(0)""")
    k.dma(6, 12, 's26', 'u0')
    for u in range(4):
        for p in range(3):
            for j in range(2):
                k(f"s_add_u32 m0, s23, {p*32768 + u*8192 + j*1024}\ns_add_u32 s27, s22, {(u*128+j*16)*3072 + p*1024}")
                k.dma(5, 8, 's27', f'u{u}')
        for t in range(2):
            k(f"s_add_u32 s27, s24, {t*16384 + u*4096}")
            for c in range(4): k.bload(vr(XR + t*64 + (4*u+c)*4, 4), 6, 12, 's27', c*1024, f'u{u}')
    k("""v_lshrrev_b32 v8, 2, v2
    v_lshl_add_u32 v8, v3, 3, v8
    v_lshlrev_b32 v8, 6, v8
    v_and_b32 v9, 1, v3
    v_lshl_add_u32 v8, v9, 5, v8
    v_and_b32 v9, 3, v2
    v_lshl_add_u32 v8, v9, 3, v8
    v_xor_b32 v9, 32, v8
    v_add_u32 v10, 0x10000, v8
    v_add_u32 v11, 0x10000, v9
    v_lshlrev_b32 v12, 5, v3
    v_add_u32 v12, 0x18000, v12""")
    def rd_mods(kc):
        for j in range(4): k.dsr(vr(MS+4*j,4), 12, kc*128 + (j//2)*2048 + (j%2)*16, f'm{kc}')
    def modulate(kc):
        th = []
        for t in range(2):
            for r in range(4):
                x = XR + t*64 + kc*4 + r; T = HB + 2*((t*4+r) % 4)
                th.append(f"v_lshlrev_b32 v{T}, 16, v{x}")
                th.append(f"v_and_b32 v{T+1}, 0xffff0000, v{x}")
                th.append(f"v_fma_f32 v{T}, v{T}, v{MS+8+2*r}, v{MS+2*r}")
                th.append(f"v_fma_f32 v{T+1}, v{T+1}, v{MS+9+2*r}, v{MS+1+2*r}")
                th.append(f"v_cvt_pk_bf16_f32 v{x}, v{T}, v{T+1}")
        return th
    def rd_w(kc, p, t):
        for h in range(2):
            k.trd(vr(WF + (p*2+t)*4 + 2*h, 2), (8 if p < 2 else 10) + t, (p % 2)*32768*(p < 2) + kc*2048 + h*256, f'w{kc}{p}{t}')
    k.vm.wait('u0'); k("s_barrier")
    rd_mods(0); k.lg.all()
    for x in modulate(0): k(x)
    for kc in range(16):
        if kc % 4 == 3 and kc < 15:
            k.vm.wait(f'u{kc//4+1}'); k("s_barrier")
        if kc == 0:
            for p in range(3):
                for t in range(2): rd_w(0, p, t)
        if kc < 15: rd_mods(kc+1)
        fill = modulate(kc+1) if kc < 15 else []
        fi = 0
        for p in range(3):
            for t in range(2):
                k.lg.wait(f'w{kc}{p}{t}')
                for tk in range(2):
                    d = vr(AC + ((p*2+t)*2+tk)*4, 4); w = vr(WF+(p*2+t)*4, 4); h = vr(XR+tk*64+kc*4, 4)
                    c = '0' if kc == 0 else d
                    if p < 2: k.mfma16(d, w, h, c)
                    else: k.mfma16(d, h, w, c)
                    if fill and (p, t, tk) != (0, 0, 0):
                        if fi == 0: k.lg.wait(f'm{kc+1}')
                        for x in fill[fi:fi+4]: k(x)
                        fi += 4
                if kc < 15: rd_w(kc+1, p, t)
        k("s_nop 0")
    k(f"""v_lshlrev_b32 v5, 5, v2
    v_lshl_add_u32 v5, v3, 3, v5
    v_and_b32 v6, 1, v3
    v_lshlrev_b32 v6, 8, v6
    v_lshl_add_u32 v6, v2, 4, v6
    v_lshrrev_b32 v7, 1, v3
    v_lshl_add_u32 v6, v7, 3, v6
    s_lshl_b32 s22, s21, 17
    s_lshl_b32 s23, s20, 12
    s_add_u32 s22, s22, s23
    s_lshl_b32 s23, s4, 10
    s_add_u32 s22, s22, s23""")
    for p in range(3):
        for t in range(2):
            k(f"s_add_u32 s27, s22, {[Q,K,VT][p] + t*65536}")
            for tk in range(2):
                a = AC + ((p*2+t)*2+tk)*4
                k(f"v_cvt_pk_bf16_f32 v{a}, v{a}, v{a+1}\nv_cvt_pk_bf16_f32 v{a+1}, v{a+2}, v{a+3}")
                k.bstore(vr(a,2), 5 if p < 2 else 6, 12, 's27', tk*512, w=2)
    k("p1_kernel_end:\ns_endpgm")
    return k

def map16(k, rbx):
    cbx = 32//rbx; lr = rbx.bit_length()-1; ncg = 16//cbx
    lc = ncg.bit_length()-1
    k(f"""s_and_b32 s22, s2, 7
    s_lshr_b32 s23, s2, 3
    s_lshr_b32 s20, s22, {lc}
    s_lshl_b32 s20, s20, {lr}
    s_and_b32 s24, s23, {rbx-1}
    s_add_u32 s20, s20, s24
    s_and_b32 s21, s22, {ncg-1}
    s_mul_i32 s21, s21, {cbx}
    s_lshr_b32 s24, s23, {lr}
    s_add_u32 s21, s21, s24""")
```

```python
NAME = "adaLN_cond__sliding_block__glu_gated_glu__prompt"
MB = 1 << 20
MOD, UVP, STATS = 0, 16384, 65536
XN, Q, K, VT, O, X1, Y, HH = 1*MB, 3*MB, 5*MB, 7*MB, 9*MB, 11*MB, 13*MB, 15*MB
WS_SIZE = 24*MB
ARG = dict(x=0, wqkv=8, wo=16, wg=32, wu=40, wd=48, c=56, wmod=64, out=72, dbg=80, ws=88)
SIZE = dict(x=2*MB, wqkv=512*1536*2, wo=512*512*2, wg=512*1792*2, wu=512*1792*2, wd=1792*512*2,
            c=1024, wmod=512*3072*2, out=2*MB, dbg=256, ws=WS_SIZE)

def vr(b, n=1, p='v'):
    return f"{p}{b}" if n == 1 else f"{p}[{b}:{b+n-1}]"
def ar(b, n=1): return vr(b, n, 'a')
def sr(b, n=1): return vr(b, n, 's')

class Cnt:
    def __init__(s, k, name, mx): s.k, s.name, s.mx, s.q = k, name, mx, []
    def issue(s, tag): s.q.append(tag)
    def wait(s, *tags):
        idx = max((i for i, t in enumerate(s.q) if t in tags), default=None)
        if idx is None: return
        n = len(s.q) - 1 - idx
        s.k(f"s_waitcnt {s.name}({min(n, s.mx)})")
        if n > s.mx: s.q = s.q[len(s.q)-s.mx:]
        else: s.q = s.q[idx+1:]
    def all(s):
        s.k(f"s_waitcnt {s.name}(0)"); s.q = []

class Kern:
    def __init__(s, name, grid, block, lds, nv, na=0, ns=96):
        s.name, s.grid, s.block, s.lds, s.nv, s.na, s.ns = name, grid, block, lds, nv, na, ns
        s.L = []
        s.vm = Cnt(s, 'vmcnt', 63); s.lg = Cnt(s, 'lgkmcnt', 15)
    def __call__(s, line):
        for l in line.split('\n'):
            l = l.strip()
            if l: s.L.append(('' if l.endswith(':') else '  ') + l)
    def srds(s, m):
        for a, b in m.items(): s(f"s_load_dwordx2 {sr(b,2)}, s[0:1], {ARG[a]}")
        for a, b in m.items():
            s(f"s_mov_b32 s{b+2}, {SIZE[a]}\ns_mov_b32 s{b+3}, 0x20000")
    def bload(s, dst, voff, srd, soff=0, off=0, tag=None, w=4, fl=''):
        sx = {1: '', 2: 'x2', 4: 'x4'}[w]
        o = f" offset:{off}" if off else ''
        s(f"buffer_load_dword{sx} {dst}, v{voff}, {sr(srd,4)}, {soff} offen{o}{fl}"); s.vm.issue(tag)
    def bstore(s, src, voff, srd, soff=0, off=0, tag='st', w=4, fl=''):
        sx = {1: '', 2: 'x2', 4: 'x4'}[w]
        o = f" offset:{off}" if off else ''
        s(f"buffer_store_dword{sx} {src}, v{voff}, {sr(srd,4)}, {soff} offen{o}{fl}"); s.vm.issue(tag)
    def dma(s, voff, srd, soff, tag=None, fl=''):
        s(f"buffer_load_dwordx4 v{voff}, {sr(srd,4)}, {soff} offen lds{fl}"); s.vm.issue(tag)
    def trd(s, dst, va, off, tag=None):
        assert 0 <= off < 65536, off
        s(f"ds_read_b64_tr_b16 {dst}, v{va} offset:{off}"); s.lg.issue(tag)
    def dsr(s, dst, va, off, tag=None, w=128):
        assert 0 <= off < 65536, off
        s(f"ds_read_b{w} {dst}, v{va} offset:{off}"); s.lg.issue(tag)
    def dsw(s, va, src, off, tag=None, w=128):
        assert 0 <= off < 65536, off
        s(f"ds_write_b{w} v{va}, {src} offset:{off}"); s.lg.issue(tag)
    def mfma16(s, d, a, b, c): s(f"v_mfma_f32_16x16x32_bf16 {d}, {a}, {b}, {c}")
    def mfma32(s, d, a, b, c): s(f"v_mfma_f32_32x32x16_bf16 {d}, {a}, {b}, {c}")
    def bfround(s, v):
        s(f"v_cvt_pk_bf16_f32 v{v}, v{v}, v{v}\nv_and_b32 v{v}, 0xffff0000, v{v}")
    def xsum(s, v, t):
        s(f"v_mov_b32 v{t}, v{v}\ns_nop 1\nv_permlane16_swap_b32 v{t}, v{v}\ns_nop 1\nv_add_f32 v{v}, v{v}, v{t}")
        s(f"v_mov_b32 v{t}, v{v}\ns_nop 1\nv_permlane32_swap_b32 v{t}, v{v}\ns_nop 1\nv_add_f32 v{v}, v{v}, v{t}")
    def text(s):
        return (f".globl {s.name}\n.p2align 8\n.type {s.name},@function\n{s.name}:\n" + '\n'.join(s.L) + "\n")
    def desc(s):
        acc = (s.nv + 3)//4*4
        tot = acc + s.na if s.na else s.nv
        return f""".p2align 6
.amdhsa_kernel {s.name}
  .amdhsa_next_free_vgpr {tot}
  .amdhsa_next_free_sgpr {s.ns}
  .amdhsa_accum_offset {acc}
  .amdhsa_group_segment_fixed_size 0
  .amdhsa_kernarg_size 96
  .amdhsa_user_sgpr_count 2
  .amdhsa_user_sgpr_kernarg_segment_ptr 1
  .amdhsa_system_sgpr_workgroup_id_x 1
.end_amdhsa_kernel
"""

def interleave(main, fill, per):
    out = []; fi = 0; acc = 0.0
    for m in main:
        out.append(m); acc += per
        while acc >= 1 and fi < len(fill):
            out.append(fill[fi]); fi += 1; acc -= 1
    out += fill[fi:]
    return out

def emit(kerns, path, launches=None):
    hdr = open(f'cdna_kernels/{NAME}.s.ref').read().split('; Override launch')[0]
    s = hdr
    for k in (launches or kerns):
        s += f"; @launch kernel={k.name} grid=({k.grid},1,1) block=({k.block},1,1) lds={k.lds}\n"
    s += '.amdgcn_target "amdgcn-amd-amdhsa--gfx950"\n.text\n'
    for k in kerns: s += k.text()
    s += '.section .rodata,"a"\n'
    for k in kerns: s += k.desc()
    open(path, 'w').write(s)
```

```python
import sys
from lib import *
from k01 import *; from k23 import *; from k4 import *
ks = [k0(), k1(), k2(), k3(), k4(), k5()]
e = Kern("nop_kernel", 256, 256, 0, 8); e("s_endpgm")
emit(ks+[e], 'e_nop6.s', ks+[e]*6)
emit(ks, 'e_dup.s', [ks[0],ks[1],ks[2],ks[3],ks[4],ks[5],ks[0],ks[1],ks[2],ks[3],ks[4],ks[5]])
emit(ks, 'e_dup45.s', [ks[0],ks[1],ks[2],ks[3],ks[4],ks[4],ks[5],ks[5]])
```

```python
from lib import *
LOG2E = 0x3fb8aa3b
def lane_setup(k):
    k("""v_and_b32 v1, 63, v0
    v_lshrrev_b32 v4, 6, v0
    v_and_b32 v2, 15, v0
    v_readfirstlane_b32 s4, v4
    v_bfe_u32 v3, v0, 4, 2""")

def gemv_tile(k, wsrd, stride, scol, bfrag, pre):
    k(f"""v_lshrrev_b32 v5, 1, v1
    v_mul_u32_u24 v5, {stride}, v5
    v_and_b32 v6, 1, v1
    v_lshl_add_u32 v5, v6, 4, v5
    s_mul_i32 s5, s4, {128*stride}
    s_add_u32 s5, s5, s{scol}
    s_lshl_b32 s6, s4, 12""")
    k("s_waitcnt lgkmcnt(0)")
    pre()
    for p in range(4):
        k(f"s_add_u32 m0, s6, {p*1024}\ns_add_u32 s7, s5, {p*32*stride}")
        k.dma(5, wsrd, 's7', 'w')
    bfrag()
    k("""v_lshrrev_b32 v6, 2, v2
    v_lshl_add_u32 v6, v3, 3, v6
    v_lshlrev_b32 v6, 5, v6
    v_and_b32 v7, 3, v2
    v_lshl_add_u32 v6, v7, 3, v6
    v_add_u32 v6, s6, v6""")
    k.vm.wait('w')
    for s in range(4):
        for h in range(2): k.trd(vr(44+4*s+2*h, 2), 6, s*1024 + h*128)
    k.lg.all()
    for s in range(4): k.mfma16(vr(40,4), vr(44+4*s,4), vr(16+4*s,4), '0' if s == 0 else vr(40,4))
    k("v_lshlrev_b32 v7, 4, v0\ns_nop 7\ns_nop 1")
    k.dsw(7, vr(40,4), 16384); k.lg.all()
    k("s_barrier\ns_cmp_lg_u32 s4, 0\ns_cbranch_scc1 " + k.name + "_end")
    for w in range(1, 4): k.dsr(vr(40+4*w,4), 7, 16384 + w*1024)
    k.lg.all()
    for w in range(1, 4):
        for r in range(4): k(f"v_add_f32 v{40+r}, v{40+r}, v{40+4*w+r}")

def k0():
    k = Kern("p0_kernel", 320, 256, 20480, 64)
    k("s_cmp_ge_u32 s2, 320\ns_cbranch_scc1 p0_kernel_end")
    k.srds(dict(wmod=8, c=12, ws=16, x=20))
    lane_setup(k)
    k("s_cmp_ge_u32 s2, 192\ns_cbranch_scc1 p0_ln")
    k("s_and_b32 s24, s2, 7\ns_mul_i32 s24, s24, 24\ns_lshr_b32 s25, s2, 3\ns_add_u32 s24, s24, s25\ns_lshl_b32 s25, s24, 5")
    def pre():
        k("v_lshlrev_b32 v8, 4, v3\ns_lshl_b32 s26, s4, 8")
        for s in range(4): k.bload(vr(16+4*s,4), 8, 12, 's26', s*64, 'c')
    def bfrag():
        k.vm.wait('c')
        k(f"s_mov_b32 s27, 0x{LOG2E ^ 0x80000000:x}")
        for r in range(16):
            k(f"""v_lshlrev_b32 v32, 16, v{16+r}
            v_and_b32 v33, 0xffff0000, v{16+r}
            v_mul_f32 v34, s27, v32
            v_mul_f32 v35, s27, v33
            v_exp_f32 v34, v34
            v_exp_f32 v35, v35
            s_nop 0
            v_add_f32 v34, 1.0, v34
            v_add_f32 v35, 1.0, v35
            v_rcp_f32 v34, v34
            v_rcp_f32 v35, v35
            s_nop 0
            v_mul_f32 v34, v34, v32
            v_mul_f32 v35, v35, v33
            v_cvt_pk_bf16_f32 v{16+r}, v34, v35""")
    gemv_tile(k, 8, 6144, 25, bfrag, pre)
    for r in range(4): k.bfround(40+r)
    k("s_lshr_b32 s26, s24, 5\ns_cmp_eq_u32 s26, 1\ns_cselect_b32 s27, 1.0, 0\ns_cmp_eq_u32 s26, 4\ns_cselect_b32 s27, 1.0, s27")
    for r in range(4):
        k(f"v_add_f32 v{40+r}, s27, v{40+r}"); k.bfround(40+r)
    k("v_lshlrev_b32 v8, 4, v3\ns_lshl_b32 s26, s24, 6\nv_cmp_eq_u32 vcc, 0, v2\ns_and_saveexec_b64 s[28:29], vcc")
    k.bstore(vr(40,4), 8, 16, 's26', MOD)
    k("s_endpgm")
    k("p0_ln:\ns_sub_u32 s24, s2, 192")
    k("""v_lshlrev_b32 v5, 10, v2
    v_lshl_add_u32 v5, v3, 4, v5
    s_lshl_b32 s25, s24, 14
    s_lshl_b32 s26, s4, 8
    s_add_u32 s25, s25, s26
    s_waitcnt lgkmcnt(0)""")
    for s in range(4): k.bload(vr(8+4*s,4), 5, 20, 's25', s*64, 'x')
    k("v_mov_b32 v56, 0\nv_mov_b32 v57, 0")
    k.vm.all()
    for r in range(16):
        k(f"v_lshlrev_b32 v{24+2*r}, 16, v{8+r}\nv_and_b32 v{25+2*r}, 0xffff0000, v{8+r}")
    for r in range(32):
        k(f"v_add_f32 v56, v56, v{24+r}\nv_fmac_f32 v57, v{24+r}, v{24+r}")
    k.xsum(56, 58); k.xsum(57, 58)
    k("v_lshlrev_b32 v6, 3, v2\ns_lshl_b32 s26, s4, 7\nv_add_u32 v7, s26, v6")
    k.dsw(7, vr(56,2), 0, w=64); k.lg.all()
    k("s_barrier")
    for w in range(4): k.dsr(vr(8+2*w,2), 6, w*128, w=64)
    k.lg.all()
    k("""v_add_f32 v8, v8, v10
    v_add_f32 v12, v12, v14
    v_add_f32 v9, v9, v11
    v_add_f32 v13, v13, v15
    v_add_f32 v8, v8, v12
    v_add_f32 v9, v9, v13""")
    ln_scalars(k, 8, 9, 10)
    for r in range(32):
        k(f"v_sub_f32 v{24+r}, v{24+r}, v8")
    for r in range(16):
        k(f"v_cvt_pk_bf16_f32 v10, v{24+2*r}, v{25+2*r}\nv_lshlrev_b32 v11, 16, v10\nv_and_b32 v10, 0xffff0000, v10")
        k(f"v_mul_f32 v11, v11, v9\nv_mul_f32 v10, v10, v9\nv_cvt_pk_bf16_f32 v{24+r}, v11, v10")
    k(f"v_lshlrev_b32 v5, 4, v1\ns_lshl_b32 s25, s24, 14\ns_lshl_b32 s26, s4, 12\ns_add_u32 s25, s25, s26\ns_add_u32 s25, s25, {XN}")
    for s in range(4): k.bstore(vr(24+4*s,4), 5, 16, 's25', s*1024)
    k("p0_kernel_end:\ns_endpgm")
    return k

def ln_scalars(k, a, b, t, keep=None):
    k(f"""v_mul_f32 v{a}, 0x3b000000, v{a}
    v_mul_f32 v{t}, v{a}, v{a}
    v_mul_f32 v{b}, 0x3b000000, v{b}
    v_sub_f32 v{b}, v{b}, v{t}
    v_max_f32 v{b}, 0, v{b}""")
    k.bfround(a); k.bfround(b)
    k(f"v_add_f32 v{b}, 0x3727c5ac, v{b}"); k.bfround(b)
    k(f"v_sqrt_f32 v{b}, v{b}\ns_nop 0"); k.bfround(b)
    if keep: k(f"v_mov_b32 v{keep}, v{b}")
    k(f"v_rcp_f32 v{b}, v{b}\ns_nop 0")

def k1(rbx=4):
    k = Kern("p1_kernel", 256, 256, 98304+4096, 256, 0)
    k("s_cmp_ge_u32 s2, 256\ns_cbranch_scc1 p1_kernel_end")
    k.stamp()
    k.srds(dict(wqkv=8, ws=12))
    lane_setup(k)
    map16(k, rbx)
    XR, AC, WF, MS, HB = 16, 144, 192, 216, 232
    k("""v_lshrrev_b32 v5, 2, v1
    v_and_b32 v6, 3, v1
    v_bfe_u32 v7, v1, 5, 1
    v_lshlrev_b32 v7, 1, v7
    v_xor_b32 v6, v6, v7
    v_mul_u32_u24 v5, 3072, v5
    v_lshl_add_u32 v5, v6, 4, v5
    v_lshlrev_b32 v6, 4, v1""")
    k(f"""s_mul_i32 s22, s4, {32*3072}
    s_lshl_b32 s23, s21, 6
    s_add_u32 s22, s22, s23
    s_lshl_b32 s23, s4, 11
    s_lshl_b32 s24, s20, 17
    s_lshl_b32 s25, s4, 15
    s_add_u32 s24, s24, s25
    s_add_u32 s24, s24, {XN}
    s_lshl_b32 s26, s4, 10
    s_add_u32 m0, s26, 98304
    s_waitcnt lgkmcnt(0)""")
    k.dma(6, 12, 's26', 'u0')
    for u in range(4):
        for p in range(3):
            for j in range(2):
                k(f"s_add_u32 m0, s23, {p*32768 + u*8192 + j*1024}\ns_add_u32 s27, s22, {(u*128+j*16)*3072 + p*1024}")
                k.dma(5, 8, 's27', f'u{u}')
        for t in range(2):
            k(f"s_add_u32 s27, s24, {t*16384 + u*4096}")
            for c in range(4): k.bload(vr(XR + t*64 + (4*u+c)*4, 4), 6, 12, 's27', c*1024, f'u{u}')
    k("""v_lshrrev_b32 v8, 2, v2
    v_lshl_add_u32 v8, v3, 3, v8
    v_lshlrev_b32 v8, 6, v8
    v_and_b32 v9, 1, v3
    v_lshl_add_u32 v8, v9, 5, v8
    v_and_b32 v9, 3, v2
    v_lshl_add_u32 v8, v9, 3, v8
    v_xor_b32 v9, 32, v8
    v_add_u32 v10, 0x10000, v8
    v_add_u32 v11, 0x10000, v9
    v_lshlrev_b32 v12, 5, v3
    v_add_u32 v12, 0x18000, v12""")
    def rd_mods(kc):
        for j in range(4): k.dsr(vr(MS+4*j,4), 12, kc*128 + (j//2)*2048 + (j%2)*16, f'm{kc}')
    def modulate(kc):
        th = []
        for t in range(2):
            for r in range(4):
                x = XR + t*64 + kc*4 + r; T = HB + 2*((t*4+r) % 4)
                th.append(f"v_lshlrev_b32 v{T}, 16, v{x}")
                th.append(f"v_and_b32 v{T+1}, 0xffff0000, v{x}")
                th.append(f"v_fma_f32 v{T}, v{T}, v{MS+8+2*r}, v{MS+2*r}")
                th.append(f"v_fma_f32 v{T+1}, v{T+1}, v{MS+9+2*r}, v{MS+1+2*r}")
                th.append(f"v_cvt_pk_bf16_f32 v{x}, v{T}, v{T+1}")
        return th
    def rd_w(kc, p, t):
        for h in range(2):
            k.trd(vr(WF + (p*2+t)*4 + 2*h, 2), (8 if p < 2 else 10) + t, (p % 2)*32768*(p < 2) + kc*2048 + h*256, f'w{kc}{p}{t}')
    k.stamp(); k.vm.wait('u0'); k.stamp(); k("s_barrier")
    rd_mods(0); k.lg.all()
    for x in modulate(0): k(x)
    for kc in range(16):
        if kc % 2 == 0: k.stamp()
        if kc % 4 == 3 and kc < 15:
            k.vm.wait(f'u{kc//4+1}'); k("s_barrier")
        if kc == 0:
            for p in range(3):
                for t in range(2): rd_w(0, p, t)
        if kc < 15: rd_mods(kc+1)
        fill = modulate(kc+1) if kc < 15 else []
        fi = 0
        for p in range(3):
            for t in range(2):
                k.lg.wait(f'w{kc}{p}{t}')
                for tk in range(2):
                    d = vr(AC + ((p*2+t)*2+tk)*4, 4); w = vr(WF+(p*2+t)*4, 4); h = vr(XR+tk*64+kc*4, 4)
                    c = '0' if kc == 0 else d
                    if p < 2: k.mfma16(d, w, h, c)
                    else: k.mfma16(d, h, w, c)
                    if fill and (p, t, tk) != (0, 0, 0):
                        if fi == 0: k.lg.wait(f'm{kc+1}')
                        for x in fill[fi:fi+4]: k(x)
                        fi += 4
                if kc < 15: rd_w(kc+1, p, t)
        k("s_nop 0")
    k(f"""v_lshlrev_b32 v5, 5, v2
    v_lshl_add_u32 v5, v3, 3, v5
    v_and_b32 v6, 1, v3
    v_lshlrev_b32 v6, 8, v6
    v_lshl_add_u32 v6, v2, 4, v6
    v_lshrrev_b32 v7, 1, v3
    v_lshl_add_u32 v6, v7, 3, v6
    s_lshl_b32 s22, s21, 17
    s_lshl_b32 s23, s20, 12
    s_add_u32 s22, s22, s23
    s_lshl_b32 s23, s4, 10
    s_add_u32 s22, s22, s23""")
    for p in range(3):
        for t in range(2):
            k(f"s_add_u32 s27, s22, {[Q,K,VT][p] + t*65536}")
            for tk in range(2):
                a = AC + ((p*2+t)*2+tk)*4
                k(f"v_cvt_pk_bf16_f32 v{a}, v{a}, v{a+1}\nv_cvt_pk_bf16_f32 v{a+1}, v{a+2}, v{a+3}")
                k.bstore(vr(a,2), 5 if p < 2 else 6, 12, 's27', tk*512, w=2)
    k.stamp_end(1)
    k("p1_kernel_end:\ns_endpgm")
    return k

def map16(k, rbx):
    cbx = 32//rbx; lr = rbx.bit_length()-1; ncg = 16//cbx
    lc = ncg.bit_length()-1
    k(f"""s_and_b32 s22, s2, 7
    s_lshr_b32 s23, s2, 3
    s_lshr_b32 s20, s22, {lc}
    s_lshl_b32 s20, s20, {lr}
    s_and_b32 s24, s23, {rbx-1}
    s_add_u32 s20, s20, s24
    s_and_b32 s21, s22, {ncg-1}
    s_mul_i32 s21, s21, {cbx}
    s_lshr_b32 s24, s23, {lr}
    s_add_u32 s21, s21, s24""")
```

```python
from lib import *
from k01 import lane_setup, gemv_tile, ln_scalars, LOG2E
NG, NL, NU, NQ, NO, ND = 192, 64, 112, 48, 16, 56
def wait_mod(k, lo, lab):
    k(f"s_cmp_lg_u32 s4, 0\ns_cbranch_scc1 {lab}d")
    k(f"v_and_b32 v60, 15, v1\nv_lshlrev_b32 v60, 2, v60\ns_mov_b32 s36, 0x01010101\ns_mov_b32 s50, 0x40000\n{lab}:")
    k(f"buffer_load_dword v61, v60, s[32:35], 0 offen offset:{lo} sc1\ns_waitcnt vmcnt(0)")
    k(f"v_cmp_ne_u32 vcc, s36, v61\ns_cbranch_vccz {lab}d\ns_sleep 12\ns_sub_u32 s50, s50, 1\ns_cbranch_scc0 {lab}\n{lab}d:\ns_barrier")
    k.vm.q = []
def ka():
    T = NG+NL+NU+NQ+NO+ND
    k = Kern("pa_kernel", T, 256, 32768, 112)
    k(f"s_cmp_ge_u32 s2, {T}\ns_cbranch_scc1 pa_kernel_end")
    k.stamp()
    k.srds(dict(ws=16))
    lane_setup(k)
    k(f"s_cmp_ge_u32 s2, {NG}\ns_cbranch_scc1 pa_ln")
    k.srds(dict(wmod=8, c=12))
    k("s_and_b32 s24, s2, 7\ns_mul_i32 s24, s24, 24\ns_lshr_b32 s25, s2, 3\ns_add_u32 s24, s24, s25\ns_lshl_b32 s25, s24, 5")
    def pre():
        k("v_lshlrev_b32 v8, 4, v3\ns_lshl_b32 s26, s4, 8")
        for s in range(4): k.bload(vr(16+4*s,4), 8, 12, 's26', s*64, 'c')
    def bfrag():
        k(f"v_lshlrev_b32 v9, 2, v0\nv_mov_b32 v10, 0\ns_lshl_b32 s26, s2, 10\ns_add_u32 s26, s26, {CNT}\ns_cmp_ge_u32 s2, 128\ns_cbranch_scc1 pa_nz")
        k("buffer_store_dword v10, v9, s[16:19], s26 offen\npa_nz:\ns_waitcnt vmcnt(4)")
        k.vm.q = ['w']*4
        k(f"s_mov_b32 s27, 0x{LOG2E ^ 0x80000000:x}")
        for r in range(16):
            k(f"""v_lshlrev_b32 v32, 16, v{16+r}
            v_and_b32 v33, 0xffff0000, v{16+r}
            v_mul_f32 v34, s27, v32
            v_mul_f32 v35, s27, v33
            v_exp_f32 v34, v34
            v_exp_f32 v35, v35
            s_nop 0
            v_add_f32 v34, 1.0, v34
            v_add_f32 v35, 1.0, v35
            v_rcp_f32 v34, v34
            v_rcp_f32 v35, v35
            s_nop 0
            v_mul_f32 v34, v34, v32
            v_mul_f32 v35, v35, v33
            v_cvt_pk_bf16_f32 v{16+r}, v34, v35""")
    gemv_tile(k, 8, 6144, 25, bfrag, pre)
    for r in range(4): k.bfround(40+r)
    k("s_lshr_b32 s26, s24, 5\ns_cmp_eq_u32 s26, 1\ns_cselect_b32 s27, 1.0, 0\ns_cmp_eq_u32 s26, 4\ns_cselect_b32 s27, 1.0, s27")
    for r in range(4):
        k(f"v_add_f32 v{40+r}, s27, v{40+r}"); k.bfround(40+r)
    k("v_lshlrev_b32 v8, 4, v3\ns_lshl_b32 s26, s24, 6\nv_cmp_eq_u32 vcc, 0, v2\ns_and_saveexec_b64 s[28:29], vcc")
    k.bstore(vr(40,4), 8, 16, 's26', MOD)
    k(f"v_cvt_pk_bf16_f32 v44, v40, v41\nv_cvt_pk_bf16_f32 v45, v42, v43\nv_lshlrev_b32 v8, 3, v3\ns_lshl_b32 s26, s24, 5\ns_add_u32 s26, s26, {MODH}")
    k.bstore(vr(44,2), 8, 16, 's26', 0, w=2)
    k.stamp_end(6)
    k("s_endpgm")
    k(f"pa_ln:\ns_cmp_ge_u32 s2, {NG+NL}\ns_cbranch_scc1 pa_rl\ns_sub_u32 s24, s2, {NG}")
    k.vm.q = []; k.lg.q = []; k.nst = 2
    k.srds(dict(x=20))
    k("""v_and_b32 v2, 31, v1
    v_lshrrev_b32 v3, 5, v1
    v_lshlrev_b32 v5, 10, v2
    v_lshl_add_u32 v5, v3, 4, v5
    s_lshl_b32 s25, s24, 15
    s_lshl_b32 s26, s4, 8
    s_add_u32 s25, s25, s26
    s_waitcnt lgkmcnt(0)""")
    X = 64
    for s in range(8): k.bload(vr(X+4*s,4), 5, 20, 's25', s*32, 'x')
    k("v_mov_b32 v56, 0\nv_mov_b32 v57, 0")
    k.vm.all()
    for r in range(32):
        k(f"v_lshlrev_b32 v8, 16, v{X+r}\nv_and_b32 v9, 0xffff0000, v{X+r}\nv_add_f32 v56, v56, v8\nv_fmac_f32 v57, v8, v8\nv_add_f32 v56, v56, v9\nv_fmac_f32 v57, v9, v9")
    k("v_lshlrev_b32 v6, 3, v2\nv_lshlrev_b32 v7, 3, v0")
    k.dsw(7, vr(56,2), 0, w=64); k.lg.all()
    k("s_barrier")
    for w in range(8): k.dsr(vr(8+2*w,2), 6, w*256, w=64)
    k.lg.all()
    for w in range(1, 8): k(f"v_add_f32 v8, v8, v{8+2*w}\nv_add_f32 v9, v9, v{9+2*w}")
    ln_scalars(k, 8, 9, 10)
    for r in range(32):
        k(f"""v_lshlrev_b32 v10, 16, v{X+r}
        v_and_b32 v11, 0xffff0000, v{X+r}
        v_sub_f32 v10, v10, v8
        v_sub_f32 v11, v11, v8
        v_cvt_pk_bf16_f32 v10, v10, v11
        v_and_b32 v11, 0xffff0000, v10
        v_lshlrev_b32 v10, 16, v10
        v_mul_f32 v10, v10, v9
        v_mul_f32 v11, v11, v9
        v_cvt_pk_bf16_f32 v{X+r}, v10, v11""")
    k(f"v_lshlrev_b32 v6, 4, v1\ns_lshl_b32 s25, s24, 15\ns_lshl_b32 s27, s4, 13\ns_add_u32 s25, s25, s27\ns_add_u32 s25, s25, {H1}\ns_add_u32 s27, s25, 4096")
    for s in range(8): k.bstore(vr(X+4*s,4), 6, 16, 's25' if s < 4 else 's27', (s%4)*1024)
    k.stamp_end(6)
    k("s_endpgm")
    k.vm.q = []; k.lg.q = []; k.nst = 2
    k(f"pa_rl:\ns_sub_u32 s20, s2, {NG+NL}\ns_lshl_b32 s20, s20, 2\ns_add_u32 s20, s20, s4\ns_mov_b32 s30, 0\ns_cmp_ge_u32 s20, {4*NQ}\ns_cbranch_scc1 pa_r1")
    k.srds(dict(wqkv=8)); k.srds(dict(wqkv=12))
    k(f"""s_and_b32 s21, s20, 31
    s_lshr_b32 s22, s20, 5
    s_lshl_b32 s24, s22, 9
    s_mov_b32 s26, 3072
    s_and_b32 s23, s22, 1
    s_mul_i32 s27, s23, {8*96*KB}
    s_lshr_b32 s23, s22, 1
    s_lshl_b32 s23, s23, 15
    s_add_u32 s27, s27, s23
    s_lshl_b32 s23, s21, 10
    s_add_u32 s27, s27, s23
    s_add_u32 s27, s27, {WQ}
    s_mov_b32 s28, {192*KB}
    s_mov_b32 s37, {96*KB}
    s_mov_b32 s29, 0
    s_add_u32 s25, s24, 256
    s_branch pa_go
    pa_r1:
    s_sub_u32 s20, s20, {4*NQ}
    s_cmp_ge_u32 s20, {4*NU}
    s_cbranch_scc1 pa_r2""")
    k.srds(dict(wg=8, wu=12))
    k(f"""s_and_b32 s21, s20, 31
    s_lshr_b32 s22, s20, 5
    s_lshl_b32 s24, s22, 8
    s_mov_b32 s25, s24
    s_mov_b32 s26, 3584
    s_mul_i32 s27, s22, {8*32*KB}
    s_lshl_b32 s23, s21, 10
    s_add_u32 s27, s27, s23
    s_add_u32 s27, s27, {WGU}
    s_mov_b32 s28, {64*KB}
    s_mov_b32 s37, {32*KB}
    s_mov_b32 s29, 0
    s_mov_b32 s30, 1
    s_branch pa_go
    pa_r2:
    s_sub_u32 s20, s20, {4*NU}
    s_mov_b32 s26, 1024
    s_mov_b32 s37, 1024
    s_mov_b32 s29, 1
    s_cmp_ge_u32 s20, {4*NO}
    s_cbranch_scc1 pa_r3""")
    k.srds(dict(wo=8)); k.srds(dict(wo=12))
    k(f"s_mov_b32 s28, {64*KB}\ns_mov_b32 s27, {WO}\ns_branch pa_r4\npa_r3:\ns_sub_u32 s20, s20, {4*NO}")
    k.srds(dict(wd=8)); k.srds(dict(wd=12))
    k(f"""s_mov_b32 s28, {224*KB}
    s_mov_b32 s27, {WD}
    pa_r4:
    s_lshr_b32 s21, s20, 1
    s_and_b32 s22, s20, 1
    s_lshl_b32 s24, s22, 9
    s_add_u32 s25, s24, 256
    s_lshl_b32 s23, s22, 2
    s_mul_i32 s23, s23, s28
    s_add_u32 s27, s27, s23
    s_lshl_b32 s23, s21, 11
    s_add_u32 s27, s27, s23
    pa_go:""")
    k("""s_lshl_b32 s31, s26, 4
    s_mul_i32 s31, s31, s21
    s_add_u32 s24, s24, s31
    s_add_u32 s25, s25, s31
    s_lshl_b32 s31, s26, 2
    v_mul_lo_u32 v5, v3, s26
    v_lshl_add_u32 v5, v2, 4, v5
    s_lshl_b32 s6, s4, 13
    s_waitcnt lgkmcnt(0)""")
    for p in range(4):
        for hf in range(2):
            k(f"s_add_u32 m0, s6, {hf*4096 + p*1024}\ns_nop 0")
            k.dma(5, 8+4*hf, f's{24+hf}', 'w')
        if p < 3: k("s_add_u32 s24, s24, s31\ns_add_u32 s25, s25, s31")
    k("""v_lshrrev_b32 v6, 1, v3
    s_sub_u32 s22, 3, s29
    v_lshlrev_b32 v6, s22, v6
    v_lshrrev_b32 v7, 2, v2
    v_add_u32 v6, v6, v7
    v_lshlrev_b32 v6, 8, v6
    v_and_b32 v7, 3, v2
    v_lshl_add_u32 v6, v7, 3, v6
    v_and_b32 v7, 1, v3
    s_cmp_eq_u32 s30, 1
    s_cselect_b32 s22, 12, 5
    v_lshl_add_u32 v6, v7, s22, v6
    v_add_u32 v6, s6, v6
    s_lshl_b32 s22, 0x400, s29
    v_add_u32 v7, s22, v6
    v_lshlrev_b32 v8, 4, v1
    s_cmp_eq_u32 s30, 1""")
    k.vm.all()
    k("s_cbranch_scc1 pa_tg")
    for gu in range(2):
        for c in range(8):
            o = c*32 if gu else (c//4)*4096 + (c % 4)*64
            k.trd(vr(64+4*c,2), 6, o); k.trd(vr(66+4*c,2), 7, o)
        k("s_branch pa_tj\npa_tg:" if gu == 0 else "pa_tj:")
    k.lg.all()
    for c in range(8):
        if c % 2: k("s_add_u32 s22, s27, s37\ns_add_u32 s27, s27, s28")
        k.bstore(vr(64+4*c,4), 8, 16, 's22' if c % 2 else 's27', 0)
    k.stamp_end(6)
    k("pa_kernel_end:\ns_endpgm")
    return k
```

```python
from lib import *
from k01 import ln_scalars, LOG2E
import struct, math
def f2u(x): return struct.unpack('<I', struct.pack('<f', x))[0]
SC = ' sc1'
RR = 96*KB
def kb():
    k = Kern("pb_kernel", 256, 512, 163840, 256)
    W = 12
    def run(x): k(x) if isinstance(x, str) else x()
    def sadd(d, b, imm): k(f"s_add_u32 s{d}, s{b}, {imm}")
    def arrive(ph, sidx):
        k.vm.all(); k("s_barrier")
        lab = f"arr{k.uid()}"
        k(f"s_cmp_lg_u32 s4, 0\ns_cbranch_scc1 {lab}\ns_mov_b64 exec, 1\nv_mov_b32 v5, {CNT + ph*32768}\nv_mov_b32 v6, 1")
        k(f"buffer_store_dword v6, v5, s[{W}:{W+3}], s{sidx} offen sc1\ns_mov_b64 exec, -1\n{lab}:")
    def poll(addr):
        lab = f"pol{k.uid()}"
        k(f"s_cmp_lg_u32 s4, 7\ns_cbranch_scc1 {lab}e\ns_mov_b32 s50, 0x40000")
        k(addr)
        k(f"""{lab}:
        buffer_load_dword v6, v5, s[{W}:{W+3}], 0 offen sc1
        s_waitcnt vmcnt(0)
        v_cmp_eq_u32 vcc, 0, v6
        s_cbranch_vccz {lab}e
        s_sub_u32 s50, s50, 1
        s_cbranch_scc0 {lab}
        {lab}e:
        s_barrier""")
    def row16(ph, srow):
        return f"s_lshl_b32 s27, s{srow}, 11\ns_add_u32 s27, s27, {CNT + ph*32768}\nv_and_b32 v5, 15, v1\nv_lshlrev_b32 v5, 7, v5\nv_add_u32 v5, s27, v5"
    k("s_cmp_ge_u32 s2, 256\ns_cbranch_scc1 pb_kernel_end")
    k.stamp()
    k.srds(dict(ws=W, x=16, out=20))
    k("""v_and_b32 v1, 63, v0
    v_lshrrev_b32 v4, 6, v0
    v_lshlrev_b32 v2, 4, v1
    v_readfirstlane_b32 s4, v4
    v_and_b32 v3, 31, v0
    v_bfe_u32 v4, v0, 5, 1
    s_and_b32 s27, s2, 7
    s_lshr_b32 s28, s2, 3
    s_and_b32 s5, s28, 7
    s_lshr_b32 s28, s28, 3
    s_and_b32 s7, s4, 3
    s_and_b32 s8, s27, 1
    s_lshl_b32 s8, s8, 3
    s_add_u32 s8, s8, s5
    s_lshr_b32 s9, s27, 1
    s_lshl_b32 s9, s9, 2
    s_add_u32 s9, s9, s28
    s_and_b32 s10, s27, 3
    s_lshl_b32 s10, s10, 3
    s_add_u32 s10, s10, s5
    s_lshr_b32 s11, s27, 2
    s_lshl_b32 s11, s11, 2
    s_add_u32 s11, s11, s28""")
    k(f"""s_lshl_b32 s24, s8, 2
    s_add_u32 s24, s24, s7
    s_lshl_b32 s25, s10, 1
    s_and_b32 s27, s4, 1
    s_add_u32 s25, s25, s27
    s_lshr_b32 s26, s4, 1
    s_lshl_b32 s5, s8, 4
    s_add_u32 s5, s5, s9
    s_lshl_b32 s5, s5, 7
    s_lshl_b32 s6, s10, 3
    s_add_u32 s6, s6, s11
    s_lshl_b32 s6, s6, 7
    s_lshr_b32 s51, s10, 1
    s_lshl_b32 s40, s11, 16
    s_lshl_b32 s27, s26, 14
    s_add_u32 s40, s40, s27
    s_add_u32 s40, s40, {WO}
    s_mul_i32 s41, s9, {224*KB}
    s_add_u32 s41, s41, {WGU}
    s_mul_i32 s42, s11, {224*KB}
    s_mul_i32 s27, s4, {28*KB}
    s_add_u32 s42, s42, s27
    s_add_u32 s42, s42, {WD}
    v_add_u32 v14, 0x10000, v2
    v_add_u32 v15, 0x20000, v2
    s_waitcnt lgkmcnt(0)
    s_cmp_ge_u32 s4, 4
    s_cbranch_scc1 p1_L""")
    def ldsr(dst, off, tag):
        k.dsr(dst, [2, 14, 15][off >> 16], off & 0xffff, tag)
    def loads(dst, sbase, n, tag, fl='', step=1024, tags=None):
        for i in range(n):
            if (i*step) % 4096 == 0 or step > 1024: sadd(27, sbase, (i*step)//4096*4096 if step <= 1024 else i*step)
            k.bload(vr(dst+4*i,4), 2, W, 's27', (i*step) % 4096 if step <= 1024 else 0, tags(i) if tags else tag, fl=fl)
    def wo_loads(): loads(48, 40, 16, 'wo')
    from kb1 import p12
    p12(k, W, run, sadd, arrive, poll, ldsr, loads, wo_loads)
    XR, GA, A2, AC3, OFR = 8, 144, 152, 176, 112
    k(f"""v_lshlrev_b32 v7, 10, v3
    v_lshl_add_u32 v7, v4, 4, v7
    s_lshl_b32 s43, s25, 15
    s_lshl_b32 s27, s11, 7
    s_add_u32 s43, s43, s27
    s_lshl_b32 s27, s26, 5
    s_add_u32 s43, s43, s27
    v_lshlrev_b32 v12, 4, v4
    s_lshl_b32 s39, s11, 8
    s_lshl_b32 s27, s26, 6
    s_add_u32 s39, s39, s27
    s_add_u32 s28, s39, {MOD+4096}
    s_add_u32 s29, s39, {MOD+8192}""")
    k.bload(vr(XR,4), 7, 16, 's43', 0, 'e')
    for e in range(2):
        k.bload(vr(GA+4*e,4), 12, W, 's28', e*32, 'e'); k.bload(vr(A2+4*e,4), 12, W, 's29', e*32, 'e')
    k("s_cmp_lt_u32 s4, 4\ns_cbranch_scc1 p3_a\ns_add_u32 s28, s42, 0x4000")
    loads(208, 28, 12, 'wd'); k("p3_a:"); k.vm.q = []
    k(f"s_lshl_b32 s28, s25, 15\ns_lshl_b32 s27, s26, 13\ns_add_u32 s28, s28, s27\ns_add_u32 s28, s28, {OF}")
    poll(row16(1, 51)); k.stamp()
    loads(OFR, 28, 8, None, fl=SC, tags=lambda i: f'o{i}')
    for s in range(8):
        k.vm.wait(f'o{s}')
        for nt in range(2):
            d = vr(AC3+16*nt,16); k.mfma32(d, vr(48+8*s+4*nt,4), vr(OFR+4*s,4), '0' if s == 0 else d)
    k(f"""s_and_b32 s27, s4, 1
    s_lshl_b32 s27, s27, 13
    s_lshl_b32 s28, s26, 11
    s_add_u32 s28, s28, s27
    s_add_u32 s28, s28, {RR}
    v_add_u32 v13, s28, v2
    s_lshl_b32 s28, s4, 13
    s_add_u32 s28, s28, {RR}
    v_permlane32_swap_b32 v{XR}, v{XR+2}
    v_permlane32_swap_b32 v{XR+1}, v{XR+3}
    s_nop 4""")
    for q in range(4):
        for e in range(2): k.dsw(13, vr(AC3+8*q+4*e,4), q*16384 + e*1024)
    k("v_add_u32 v13, s28, v2"); k.lg.all(); k("s_barrier")
    for q in range(4):
        for e in range(2): k.dsr(vr(AC3+8*q+4*e,4), 13, q*2048 + e*1024, f'r{q}')
    for q in range(1, 4):
        k.lg.wait(f'r{q}')
        for r in range(8): k(f"v_add_f32 v{AC3+r}, v{AC3+r}, v{AC3+8*q+r}")
    k("v_mov_b32 v36, 0\nv_mov_b32 v37, 0")
    for r in range(4):
        k(f"""v_lshlrev_b32 v32, 16, v{XR+r}
        v_and_b32 v33, 0xffff0000, v{XR+r}
        v_fma_f32 v32, v{AC3+2*r}, v{GA+2*r}, v32
        v_fma_f32 v33, v{AC3+2*r+1}, v{GA+2*r+1}, v33
        v_cvt_pk_bf16_f32 v{XR+r}, v32, v33
        v_lshlrev_b32 v32, 16, v{XR+r}
        v_and_b32 v33, 0xffff0000, v{XR+r}
        v_add_f32 v36, v36, v32
        v_fmac_f32 v37, v32, v32
        v_add_f32 v36, v36, v33
        v_fmac_f32 v37, v33, v33
        v_mul_f32 v32, v32, v{A2+2*r}
        v_mul_f32 v33, v33, v{A2+2*r+1}
        v_cvt_pk_bf16_f32 v{40+r}, v32, v33""")
    k(f"""s_lshl_b32 s28, s25, 15
    s_lshl_b32 s27, s11, 12
    s_add_u32 s28, s28, s27
    s_lshl_b32 s27, s26, 10
    s_add_u32 s28, s28, s27
    s_add_u32 s28, s28, {YF}
    v_permlane32_swap_b32 v40, v42
    v_permlane32_swap_b32 v41, v43""")
    k.bstore(vr(40,4), 2, W, 's28', 0, fl=SC)
    k.dsw(13, vr(36,2), 0, w=64); k.lg.all(); k("s_barrier")
    k(f"""s_cmp_ge_u32 s4, 2
    s_cbranch_scc1 p3_b""")
    for q in range(4): k.dsr(vr(32+2*q,2), 13, q*16384, w=64)
    k.lg.all()
    k(f"""v_add_f32 v32, v32, v34
    v_add_f32 v33, v33, v35
    v_add_f32 v36, v36, v38
    v_add_f32 v37, v37, v39
    v_add_f32 v32, v32, v36
    v_add_f32 v33, v33, v37
    v_mov_b32 v34, v32
    v_mov_b32 v35, v33
    s_lshl_b32 s28, s25, 11
    s_lshl_b32 s27, s11, 3
    v_permlane32_swap_b32 v34, v32
    v_permlane32_swap_b32 v35, v33
    s_add_u32 s28, s28, s27
    s_add_u32 s28, s28, {STB}
    v_add_f32 v32, v32, v34
    v_add_f32 v33, v33, v35
    v_lshlrev_b32 v34, 6, v3
    s_mov_b32 exec_hi, 0""")
    k.bstore(vr(32,2), 34, W, 's28', 0, w=2, fl=SC)
    k("s_mov_b32 exec_hi, -1")
    k("p3_b:")
    k.stamp()
    arrive(2, 6); k.vm.q = []
    from kb2 import p45
    p45(k, W, run, sadd, arrive, poll, ldsr, loads, row16)
    k("pb_kernel_end:\ns_endpgm")
    return k
```

```python
from lib import *
import struct, math
def f2u(x): return struct.unpack('<I', struct.pack('<f', x))[0]
SC = ' sc1'
RR = 96*KB
LK, LV, LQ, LU, LM, L1 = RR, RR+24*KB, RR+48*KB, RR+56*KB, RR+58*KB, RR+63*KB
def p12(k, W, run, sadd, arrive, poll, ldsr, loads, wo_loads):
    def ldsw(src, off, base):
        k.dsw(base + (off >> 16) - 1, src, off & 0xffff)
    k(f"s_lshl_b32 s28, s24, 15\ns_add_u32 s28, s28, {H1}\nv_lshlrev_b32 v7, 5, v4\nv_add_u32 v7, {LM}, v7")
    def hld(i):
        if i % 4 == 0: sadd(29, 28, i*KB)
        k.bload(vr(128+4*i,4), 2, W, 's29', (i % 4)*KB, f'h{i}')
    HP, NF, PF, MS, TH = 10, 8, 4, 96, 112
    for i in range(HP): hld(i)
    seq = [(p, kc) for kc in range(32) for p in (1, 2)] + [(0, kc) for kc in range(32)]
    def rd(i): p, kc = seq[i]; ldsr(vr(64+4*(i % NF),4), p*32*KB + kc*KB, f'w{i}')
    def rdm(kc):
        for j in range(4): k.dsr(vr(MS+4*j,4), 7, kc*64 + (j//2)*2048 + (j % 2)*16, f'm{kc}')
    def modu(kc):
        th = [lambda: k.vm.wait(f'h{kc}'), lambda: k.lg.wait(f'm{kc}')]
        for r in range(4):
            x = 128+4*kc+r; T = TH+2*r
            th += [f"v_lshlrev_b32 v{T}, 16, v{x}", f"v_and_b32 v{T+1}, 0xffff0000, v{x}"]
        for r in range(8): th.append(f"v_fma_f32 v{TH+r}, v{TH+r}, v{MS+8+r}, v{MS+r}")
        if kc+1 < 32: th.append(lambda: rdm(kc+1))
        for r in range(4): th.append(f"v_cvt_pk_bf16_f32 v{128+4*kc+r}, v{TH+2*r}, v{TH+2*r+1}")
        if kc+HP < 32: th.append(lambda: hld(kc+HP))
        return th
    k(f"""s_lshl_b32 s30, s9, 17
    s_lshl_b32 s27, s24, 10
    s_add_u32 s31, s30, s27
    s_add_u32 s30, s31, s27
    s_add_u32 s31, s31, {KF}
    s_add_u32 s30, s30, {VF}
    s_add_u32 s32, s31, 0x10000
    s_lshl_b32 s27, s7, 10
    v_add_u32 v8, s27, v14
    v_add_u32 v9, s27, v15
    v_add_u32 v10, s27, v8
    v_add_u32 v11, s27, v9
    s_mov_b32 s33, 0x{f2u(0.25*math.log2(math.e)):x}""")
    def kvepi():
        th = []
        for p in (1, 2):
            for r in range(8): th.append(f"v_cvt_pk_bf16_f32 v{MS+8*(p-1)+r}, v{16*p+2*r}, v{16*p+2*r+1}")
            for hh in range(2):
                src = vr(MS+8*(p-1)+4*hh,4)
                if p == 1:
                    th.append(lambda src=src, hh=hh: k.bstore(src, 2, W, f's{31+hh}', 0, fl=SC))
                    th.append(lambda src=src, hh=hh: ldsw(src, LK + (hh*12+8)*KB, 8))
                else:
                    th.append(lambda src=src, hh=hh: k.bstore(src, 2, W, 's30', hh*KB, fl=SC))
                    th.append(lambda src=src, hh=hh: ldsw(src, LV + (16+hh)*KB, 10))
        return th
    k("s_barrier"); k.stamp()
    for q in range(PF): rd(q)
    rdm(0)
    for x in modu(0): run(x)
    fill = []
    for i, (p, kc) in enumerate(seq):
        if (i+PF) in (16, 32, 48, 64): k("s_barrier")
        if i+PF < 96: rd(i+PF)
        k.lg.wait(f'w{i}')
        d = vr([48,16,32][p],16); w = vr(64+4*(i % NF),4); h = vr(128+4*kc,4); c = '0' if kc == 0 else d
        if p < 2: k.mfma32(d, w, h, c)
        else: k.mfma32(d, h, w, c)
        if p == 1 and kc < 31: fill = modu(kc+1)
        if i == 66: fill = kvepi()
        nf = 14 if p == 1 else (len(fill) if p == 2 else 3)
        for x in fill[:nf]: run(x)
        fill = fill[nf:]
        if p == 2: k("s_nop 0")
    k.stamp()
    k("s_nop 7\ns_nop 3")
    for r in range(16): k(f"v_mul_f32 v{48+r}, s33, v{48+r}")
    for r in range(8): k(f"v_cvt_pk_bf16_f32 v{64+r}, v{48+2*r}, v{49+2*r}")
    for hh in range(2): ldsw(vr(64+4*hh,4), LQ + hh*4*KB, 8)
    k.lg.all()
    k("s_branch p1_J\np1_L:")
    k.vm.q = []; k.lg.q = []
    k(f"s_mul_i32 s28, s9, {96*KB}\ns_lshl_b32 s29, s7, 11\ns_add_u32 s28, s28, s29\ns_add_u32 s28, s28, {WQ}\ns_lshl_b32 s30, s7, 10\ns_add_u32 m0, s30, {LM}\ns_nop 0")
    k.dma(2, W, 's30', 'u0')
    def wq(u):
        for o in ([p*32*KB + u*8*KB + i*KB for i in range(2) for p in (1, 2)] if u < 4 else [q*8*KB + i*KB for q in range(4) for i in range(2)]):
            k(f"s_add_u32 m0, s29, {o}"); sadd(27, 28, o); k.dma(2, W, 's27', f'u{u}')
    wq(0); wq(1)
    for u in range(5):
        if u+2 < 5: wq(u+2)
        k.vm.wait(f'u{u}'); k("s_barrier")
    k("v_mov_b32 v8, 0x3f803f80\nv_mov_b32 v9, v8\nv_mov_b32 v10, v8\nv_mov_b32 v11, v8")
    k.dsw(15, vr(8,4), L1 & 0xffff)
    wo_loads(); k.lg.all()
    k("p1_J:")
    arrive(0, 5); k.stamp()
    k(f"s_lshr_b32 s34, s5, 8\ns_bitcmp1_b32 s5, 7\ns_cselect_b32 s34, 127, s34\ns_cmp_ge_u32 s34, 112\ns_cbranch_scc1 uv_a")
    k(f"""s_lshl_b32 s28, s34, 15
    s_lshl_b32 s27, s4, 12
    s_add_u32 s28, s28, s27
    s_add_u32 s28, s28, {WGU}
    v_and_b32 v7, 1, v1
    v_lshlrev_b32 v7, 10, v7
    v_sub_u32 v7, {MODH + 4096}, v7
    v_lshl_add_u32 v7, v4, 4, v7
    s_lshl_b32 s29, s4, 7""")
    k.vm.q = []
    loads(128, 28, 4, 'a')
    for c in range(4): k.bload(vr(144+4*c,4), 7, W, 's29', c*32, 'a')
    k(f"v_lshlrev_b32 v7, 7, v3\nv_lshl_add_u32 v7, v4, 4, v7\ns_lshl_b32 s27, s4, 8\ns_add_u32 s27, s27, {LU}\nv_add_u32 v7, s27, v7")
    k.vm.all()
    for c in range(4): k.mfma32(vr(160,16), vr(128+4*c,4), vr(144+4*c,4), '0' if c == 0 else vr(160,16))
    k("s_nop 7\ns_nop 3\ns_mov_b32 exec_lo, 3\ns_mov_b32 exec_hi, 3")
    for q in range(4): k.dsw(7, vr(160+4*q,4), q*32)
    k("s_mov_b64 exec, -1"); k.lg.all()
    k("uv_a:\ns_cmp_ge_u32 s4, 4\ns_cbranch_scc1 p1_K"); wo_loads(); k("p1_K:")
    k.vm.q = []
    OA, QR, VR, M0, M8, NM, SB, KR = 16, 32, 36, 112, 128, 144, 160, 208
    k(f"v_lshlrev_b32 v7, 2, v4\nv_sub_u32 v7, v3, v7\ns_mov_b32 s31, 0x{f2u(-1e30):x}\nv_mov_b32 v8, s31\nv_mov_b32 v9, 0")
    for r in range(16):
        k(f"v_cmp_gt_i32 s[{52+2*(r%4)}:{53+2*(r%4)}], {(r//4)*8 + r % 4}, v7")
        if r % 4 == 3:
            for q in range(r-3, r+1):
                m = f"s[{52+2*(q%4)}:{53+2*(q%4)}]"
                k(f"v_cndmask_b32 v{M0+q}, v8, v9, {m}\nv_cndmask_b32 v{M8+q}, v9, v8, {m}")
    k(f"""s_lshl_b32 s28, s8, 2
    s_add_u32 s28, s28, s4
    s_sub_u32 s28, s28, 8
    s_max_i32 s28, s28, 0
    s_lshl_b32 s27, s9, 17
    s_lshl_b32 s35, s28, 10
    s_add_u32 s36, s35, s27
    s_add_u32 s35, s36, s35
    s_add_u32 s36, s36, {KF}
    s_add_u32 s35, s35, {VF}
    s_lshl_b32 s38, s4, 10
    s_lshr_b32 s37, s4, 2
    s_mul_i32 s27, s37, {12*KB}
    s_lshl_b32 s28, s7, 10
    s_add_u32 s27, s27, s28
    s_add_u32 s27, s27, {LK}
    v_add_u32 v13, s27, v2
    s_lshl_b32 s27, s37, 8
    s_lshl_b32 s28, s7, 11
    s_add_u32 s27, s27, s28
    s_add_u32 s27, s27, {LV}
    v_add_u32 v12, s27, v2
    v_cmp_gt_u32 vcc, 16, v3
    v_mov_b32 v10, 0x400
    v_mov_b32 v11, {L1}
    v_cndmask_b32 v10, 0, v10, vcc
    v_cndmask_b32 v12, v11, v12, vcc
    v_add_u32 v11, s38, v15""")
    poll(f"""s_sub_u32 s27, s5, 2048
    s_cselect_b32 s27, s5, s27
    s_sub_u32 s28, s5, 4096
    s_cselect_b32 s28, s5, s28
    v_mov_b32 v5, s27
    v_mov_b32 v6, s28
    v_cndmask_b32 v5, v5, v6, vcc
    v_add_u32 v5, {CNT}, v5"""); k.stamp()
    for hh in range(2):
        k(f"s_add_u32 m0, s38, {LK + hh*12*KB}"); sadd(27, 36, hh*64*KB); k.dma(2, W, 's27', 'kv', fl=SC)
    k(f"s_lshl_b32 s38, s38, 1")
    for hh in range(2):
        k(f"s_add_u32 m0, s38, {LV + hh*KB}"); sadd(27, 35, hh*KB); k.dma(2, W, 's27', 'kv', fl=SC)
    k.dsr(vr(QR,4), 11, LQ & 0xffff)
    k(f"s_cmp_ge_u32 s34, 112\ns_cbranch_scc1 uv_b\ns_cmp_lg_u32 s4, 0\ns_cbranch_scc1 uv_b\nv_lshlrev_b32 v7, 2, v3\nv_add_u32 v7, {LU}, v7")
    for w in range(8):
        for n in range(2): k.dsr(vr(SB+2*w+n), 7, w*256 + n*128, w=32)
    k.lg.all()
    for w in range(1, 8): k(f"v_add_f32 v{SB}, v{SB}, v{SB+2*w}\nv_add_f32 v{SB+1}, v{SB+1}, v{SB+2*w+1}")
    for n in range(2):
        x = SB+n; t = SB+2+3*n
        k(f"v_and_b32 v{t}, 0xffff0000, v{x}\nv_sub_f32 v{x}, v{x}, v{t}\nv_and_b32 v{t+1}, 0xffff0000, v{x}\nv_sub_f32 v{t+2}, v{x}, v{t+1}")
    k(f"""v_cvt_pk_bf16_f32 v{SB+8}, v{SB+2}, v{SB+3}
    v_cvt_pk_bf16_f32 v{SB+9}, v{SB+4}, v{SB+5}
    v_cvt_pk_bf16_f32 v{SB+10}, v{SB+6}, v{SB+7}
    v_mov_b32 v{SB+11}, 0
    s_lshl_b32 s27, s34, 10
    s_add_u32 s27, s27, {UVB}
    buffer_store_dwordx4 v[{SB+8}:{SB+11}], v2, s[{W}:{W+3}], s27 offen sc1
    s_waitcnt vmcnt(1)
    s_branch uv_c
    uv_b:
    s_waitcnt vmcnt(0)
    uv_c:""")
    k.vm.q = []; k.lg.all(); k("s_barrier"); k.stamp()
    k(f"s_mul_i32 s29, s4, {12*KB}\ns_add_u32 s28, s41, s29")
    def gu(c): k(f"s_add_u32 m0, s29, {c*KB}"); sadd(27, 28, c*KB); k.dma(2, W, 's27', 'gu')
    def mx(b, first=False):
        for i in range(8):
            a = 8 + i % 2
            k(f"v_max_f32 v{a}, v{b+2*i}, v{b+2*i+1}" if first and i < 2 else f"v_max3_f32 v{a}, v{a}, v{b+2*i}, v{b+2*i+1}")
    def fin_max(m0):
        k("v_max_f32 v8, v8, v9\nv_mov_b32 v9, v8\ns_nop 1\nv_permlane32_swap_b32 v9, v8\ns_nop 1\nv_max_f32 v8, v8, v9")
        if m0:
            for r in range(16): k(f"v_sub_f32 v{M0+r}, v{M0+r}, v8")
        for r in range(16): k(f"v_sub_f32 v{NM+r}, 0, v8")
        for r in range(16): k(f"v_sub_f32 v{M8+r}, v{M8+r}, v8")
    def vrd(c): k.dsr(vr(VR+4*(c % 3),4), 12, 0, f'v{c}'); k("v_add_u32 v12, v12, v10")
    k("s_cmp_lt_u32 s8, 2\ns_cbranch_scc1 p2_slow")
    for j in range(9): k.dsr(vr(KR+4*j,4), 13, j*KB, f'k{j}')
    def sb(j): return SB + 16*(j % 3)
    def qk(j, c): k.mfma32(vr(sb(j),16), vr(KR+4*j,4), vr(QR,4), c)
    def c1(j): return vr(M0,16) if j == 0 else vr(M8,16) if j == 8 else '0'
    def c2(j): return vr(M0,16) if j == 0 else vr(M8,16) if j == 8 else vr(NM,16)
    for j in range(2): k.lg.wait(f'k{j}'); qk(j, c1(j))
    gu(0); gu(1)
    for j in range(9):
        if j+2 < 9: k.lg.wait(f'k{j+2}'); qk(j+2, c1(j+2))
        if j == 0: k("s_nop 3")
        if j == 8: vrd(0); vrd(1)
        mx(sb(j), j == 0)
    fin_max(True)
    qk(0, c2(0)); qk(1, c2(1)); gu(2); gu(3); k("s_nop 5")
    def pv(c):
        k.lg.wait(f'v{c}')
        k.mfma32(vr(OA,16), vr(VR+4*(c % 3),4), vr(sb(c//2)+8*(c % 2),4), '0' if c == 0 else vr(OA,16))
    for c in range(18):
        b = sb(c//2) + 8*(c % 2)
        for r in range(8): k(f"v_exp_f32 v{b+r}, v{b+r}")
        if c > 0: pv(c-1)
        if c % 2 == 0 and c//2+2 < 9: qk(c//2+2, c2(c//2+2))
        if c+2 < 18: vrd(c+2)
        if c % 2 == 1 and 4+c//2 < 12: gu(4+c//2)
        for r in range(4): k(f"v_cvt_pk_bf16_f32 v{b+r}, v{b+2*r}, v{b+2*r+1}")
    k("s_nop 1"); pv(17)
    k("s_branch p2_join\np2_slow:")
    for c in range(12): gu(c)
    k(f"s_sub_u32 s30, 8, s24\ns_lshl_b32 s27, s30, 10\nv_add_u32 v13, s27, v13\nv_mov_b32 v7, v13\ns_lshl_b32 s27, s30, 1\nv_mad_u32_u24 v12, v10, s27, v12\nv_mov_b32 v8, s31\nv_mov_b32 v9, s31")
    for r in range(16): k(f"v_mov_b32 v{OA+r}, 0")
    for ps in range(2):
        k(f"s_mov_b32 s32, s30\np2_l{ps}:")
        k.dsr(vr(KR,4), 13 if ps == 0 else 7, 0)
        k(f"v_add_u32 v{13 if ps == 0 else 7}, 0x400, v{13 if ps == 0 else 7}")
        if ps: vrd(0); vrd(1)
        k.lg.all()
        k(f"s_cmp_eq_u32 s32, 8\ns_cbranch_scc1 p2_m{ps}")
        k.mfma32(vr(SB,16), vr(KR,4), vr(QR,4), vr(NM,16) if ps else '0')
        k(f"s_branch p2_n{ps}\np2_m{ps}:")
        k.mfma32(vr(SB,16), vr(KR,4), vr(QR,4), vr(M8,16))
        k(f"p2_n{ps}:\ns_nop 7\ns_nop 3")
        if ps == 0: mx(SB)
        else:
            for r in range(16): k(f"v_exp_f32 v{SB+r}, v{SB+r}")
            k("s_nop 0")
            for r in range(8): k(f"v_cvt_pk_bf16_f32 v{SB+16+r}, v{SB+2*r}, v{SB+2*r+1}")
            k("s_nop 1")
            for c in range(2): k.mfma32(vr(OA,16), vr(VR+4*c,4), vr(SB+16+4*c,4), vr(OA,16))
        k(f"s_add_u32 s32, s32, 1\ns_cmp_le_u32 s32, 8\ns_cbranch_scc1 p2_l{ps}")
        if ps == 0: fin_max(False)
    k(f"""p2_join:
    s_lshl_b32 s28, s24, 15
    s_lshl_b32 s27, s9, 11
    s_add_u32 s28, s28, s27
    s_lshl_b32 s27, s37, 10
    s_add_u32 s28, s28, s27
    s_add_u32 s28, s28, {OF}
    s_nop 5
    v_rcp_f32 v8, v{OA+8}
    s_nop 0""")
    k.lg.q = []
    for r in range(8): k(f"v_mul_f32 v{OA+r}, v{OA+r}, v8")
    for r in range(4): k(f"v_cvt_pk_bf16_f32 v{OA+r}, v{OA+2*r}, v{OA+2*r+1}")
    k.bstore(vr(OA,4), 2, W, 's28', 0, fl=SC)
    k.stamp()
    arrive(1, 5); k.vm.q = []
```

```python
from lib import *
from k01 import ln_scalars, LOG2E
SC = ' sc1'
UVL = 144*KB
def p45(k, W, run, sadd, arrive, poll, ldsr, loads, row16):
    def unit_dma(u):
        for i in range(4):
            k(f"s_add_u32 m0, s29, {(u % 9)*16*KB + i*KB}"); sadd(27, 28, u*16*KB + i*KB); k.dma(2, W, 's27', f'u{u}')
    k("s_cmp_lt_u32 s4, 4\ns_cbranch_scc1 p4_a")
    k(f"s_lshl_b32 s29, s7, 12\ns_add_u32 s28, s41, s29")
    for u in (6, 7, 8): unit_dma(u)
    qL = list(k.vm.q)
    k("p4_a:")
    poll(row16(2, 8) + f"""
    s_mul_i32 s27, s9, {7*256}
    s_add_u32 s27, s27, {CNT + 32768}
    v_and_b32 v6, 7, v1
    v_min_u32 v6, 6, v6
    v_lshlrev_b32 v6, 8, v6
    v_add_u32 v6, s27, v6
    v_cmp_gt_u32 vcc, 16, v3
    s_nop 1
    v_cndmask_b32 v5, v6, v5, vcc"""); k.stamp()
    k("s_cmp_ge_u32 s4, 4\ns_cbranch_scc1 p4_L")
    k.vm.q = []
    AC, WF, XB, TM, OU, ST = 16, 64, 96, 100, 108, 112
    NF, PF = 8, 6
    k(f"""s_lshl_b32 s28, s24, 15
    s_add_u32 s28, s28, {YF}
    s_lshl_b32 s29, s24, 11
    s_add_u32 s29, s29, {STB}
    v_lshlrev_b32 v5, 6, v3
    v_lshl_add_u32 v5, v4, 5, v5""")
    loads(128, 28, 4, None, fl=SC, tags=lambda i: f'y{i}')
    for e in range(2): k.bload(vr(ST+4*e,4), 5, W, 's29', e*16, 'st', fl=SC)
    def yld(i):
        if i % 4 == 0: sadd(29, 28, i*KB)
        k.bload(vr(128+4*i,4), 2, W, 's29', (i % 4)*KB, f'y{i}', fl=SC)
    YP = 12
    for i in range(4, YP): yld(i)
    k(f"""s_mul_i32 s30, s24, {112*KB}
    s_mul_i32 s27, s9, {7*KB}
    s_add_u32 s30, s30, s27
    s_add_u32 s30, s30, {HF}
    s_add_u32 s31, s30, 4096
""")
    seq = [(p, kc) for kc in range(33) for p in (0, 1)] + [(p, kc) for p in range(2, 7) for kc in range(33)]
    def rd(i):
        p, kc = seq[i]
        ldsr(vr(WF+4*(i % NF),4), UVL + p*KB if kc == 32 else ((2*p + kc//16) % 9)*16*KB + (kc % 16)*KB, f'w{i}')
    def epi(p):
        ab = AC + (p % 3)*16; th = []
        R1, R2 = ST+1, ST+2
        for q in range(2):
            g = ab + 4*q; uu = ab + 8 + 4*q
            for r in range(4): th.append(f"v_mul_f32 v{TM+r}, v{g+r}, v{R2}")
            for r in range(4):
                th.append(f"v_exp_f32 v{TM+r}, v{TM+r}")
                th.append(f"v_mul_f32 v{TM+4+r}, v{uu+r}, v{R1}")
            for r in range(4): th.append(f"v_add_f32 v{TM+r}, 1.0, v{TM+r}")
            for r in range(4): th.append(f"v_rcp_f32 v{TM+r}, v{TM+r}")
            for r in range(4): th.append(f"v_mul_f32 v{TM+r}, v{TM+r}, v{TM+4+r}")
            for r in range(2): th.append(f"v_cvt_pk_bf16_f32 v{OU+2*q+r}, v{TM+2*r}, v{TM+2*r+1}")
        th.append(lambda: k.bstore(vr(OU,4), 2, W, 's30' if p < 4 else 's31', (p % 4)*1024, fl=SC))
        return th
    def stats():
        k.vm.wait('st')
        k(f"""v_add_f32 v{ST}, v{ST}, v{ST+2}
        v_add_f32 v{ST+1}, v{ST+1}, v{ST+3}
        v_add_f32 v{ST+4}, v{ST+4}, v{ST+6}
        v_add_f32 v{ST+5}, v{ST+5}, v{ST+7}
        v_add_f32 v{ST}, v{ST}, v{ST+4}
        v_add_f32 v{ST+1}, v{ST+1}, v{ST+5}
        v_mov_b32 v{ST+2}, v{ST}
        v_mov_b32 v{ST+3}, v{ST+1}
        s_nop 1
        v_permlane32_swap_b32 v{ST+2}, v{ST}
        v_permlane32_swap_b32 v{ST+3}, v{ST+1}
        s_nop 1
        v_add_f32 v{ST}, v{ST}, v{ST+2}
        v_add_f32 v{ST+1}, v{ST+1}, v{ST+3}""")
        ln_scalars(k, ST, ST+1, ST+2, keep=ST+3)
        k(f"""v_sub_f32 v{ST}, 0, v{ST}
        v_mul_f32 v{ST+2}, 0x{LOG2E ^ 0x80000000:x}, v{ST+1}
        v_mov_b32 v{XB}, 0
        v_mov_b32 v{XB+1}, 0
        v_mov_b32 v{XB+2}, 0
        v_mov_b32 v{XB+3}, 0
        s_mov_b32 exec_hi, 0
        v_cvt_pk_bf16_f32 v{XB}, v{ST}, v{ST}
        v_cvt_pk_bf16_f32 v{XB+1}, v{ST}, v{ST+3}
        v_cvt_pk_bf16_f32 v{XB+2}, v{ST+3}, v{ST+3}
        s_mov_b32 exec_hi, -1""")
    for q in range(PF): rd(q)
    fill = []; N = len(seq)
    bars = [64, 66+33, 66+66, 66+99, 66+132]
    for i, (p, kc) in enumerate(seq):
        if i == 68: fill = epi(0) + epi(1)
        if kc == 3 and p >= 3: fill += epi(p-1)
        if i+PF in bars: k("s_barrier")
        if i+PF < N: rd(i+PF)
        if p == 0 and kc < 32: k.vm.wait(f'y{kc}')
        if i % 2 == 0: k.lg.wait(f'w{i}', f'w{min(i+1, N-1)}')
        d = vr(AC + (p % 3)*16, 16)
        k.mfma32(d, vr(WF+4*(i % NF),4), vr(128+4*kc,4) if kc < 32 else vr(XB,4), '0' if kc == 0 else d)
        if p == 0 and kc + YP < 32: yld(kc+YP)
        if i == 10: stats()
        if i == 65: k.stamp()
        nf = 3 if p in (2, 3) else 2
        for x in fill[:nf]: run(x)
        fill = fill[nf:]
        if kc == 32 and p >= 2: assert len(fill) <= (53 if p == 2 else 0), (p, len(fill))
    k.stamp()
    k("s_nop 7\ns_nop 3")
    for x in epi(6): run(x)
    k("s_branch p4_J\np4_L:")
    k.vm.q = qL; k.lg.q = []
    k(f"s_lshl_b32 s30, s7, 11\ns_mul_i32 s31, s9, {7*KB}\ns_add_u32 s31, s31, s30\ns_add_u32 s31, s31, {UVB}")
    for i in range(2):
        k(f"s_add_u32 m0, s30, {UVL + i*KB}"); sadd(27, 31, i*KB); k.dma(2, W, 's27', 'uv', fl=SC)
    for b in range(5):
        k.vm.wait(*[['uv'], ['u6', 'u7'], ['u8', 'u9'], ['u10', 'u11'], ['u12', 'u13']][b])
        k("s_barrier")
        for u in {0: [9, 11], 1: [10, 12, 13]}.get(b, []): unit_dma(u)
        if b == 1: loads(144, 42, 16, 'wd')
    k("p4_J:")
    arrive(3, 5); k.vm.q = []; k.stamp()
    k("s_cmp_ge_u32 s4, 4\ns_cbranch_scc1 p5_a"); loads(144, 42, 28, 'wd'); k("p5_a:"); k.vm.q = []
    k(f"""s_and_b32 s28, s25, -2
    s_mul_i32 s28, s28, {112*KB}
    s_mul_i32 s27, s4, {14*KB}
    s_add_u32 s28, s28, s27
    s_add_u32 s28, s28, {HF}
    s_add_u32 s29, s28, {112*KB}
    s_add_u32 s39, s39, {MOD+10240}""")
    poll(row16(3, 51)); k.stamp()
    AR, WR, AC = 80, 144, 16
    def act(s):
        if s % 4 == 0: sadd(30, 28, s*KB); sadd(31, 29, s*KB)
        for th in range(2): k.bload(vr(AR+8*(s % 8)+4*th,4), 2, W, f's{30+th}', (s % 4)*KB, f'a{s}', fl=SC)
    for s in range(8): act(s)
    for s in range(14):
        k.vm.wait(f'a{s}')
        for th in range(2):
            for nt in range(2):
                d = vr(AC+32*th+16*nt,16); k.mfma32(d, vr(WR+8*s+4*nt,4), vr(AR+8*(s % 8)+4*th,4), '0' if s == 0 else d)
        if s+8 < 14: act(s+8)
        if s == 6:
            for e in range(2): k.bload(vr(WR+4*e,4), 12, W, 's39', e*32, 'gb')
    k.stamp()
    k("""s_lshl_b32 s28, s4, 11
    v_add_u32 v13, s28, v2
    v_add_u32 v14, s28, v14
    s_lshl_b32 s28, s4, 14
    v_add_u32 v15, s28, v2
    s_nop 6""")
    for th in range(2):
        for q in range(4):
            for e in range(2):
                o = (2*q+th)*16384 + e*1024
                k.dsw(13 + (o >> 16), vr(AC+32*th+8*q+4*e,4), o & 0xffff)
    k.lg.all(); k("s_barrier")
    for w in range(8):
        for e in range(2): k.dsr(vr(AC+8*w+4*e,4), 15, w*2048 + e*1024, f'r{w}')
    for w in range(1, 8):
        k.lg.wait(f'r{w}')
        for r in range(8): k(f"v_add_f32 v{AC+r}, v{AC+r}, v{AC+8*w+r}")
    k.vm.wait('gb')
    for r in range(4):
        k(f"""v_lshlrev_b32 v32, 16, v{8+r}
        v_and_b32 v33, 0xffff0000, v{8+r}
        v_fma_f32 v32, v{AC+2*r}, v{WR+2*r}, v32
        v_fma_f32 v33, v{AC+2*r+1}, v{WR+2*r+1}, v33
        v_cvt_pk_bf16_f32 v{8+r}, v32, v33""")
    k("s_nop 1\nv_permlane32_swap_b32 v8, v10\nv_permlane32_swap_b32 v9, v11")
    k.bstore(vr(8,4), 7, 20, 's43', 0)
    k.stamp_end(1)
```

```python
NAME = "adaLN_cond__sliding_block__glu_gated_glu__prompt"
MB = 1 << 20
import os
STAMP = bool(os.environ.get('STAMP'))
KB = 1024
MOD, MODH, CNT = 0, 16*KB, 128*KB
UVB = 29*MB + 256*KB
WQ, WO, WGU, WD = 256*KB, 256*KB+1536*KB, 256*KB+2048*KB, 256*KB+2048*KB+3584*KB
H1 = 8*MB; QF, KF, VF, OF, X1, YF, HF = 10*MB, 12*MB, 14*MB, 16*MB, 18*MB, 20*MB, 22*MB
STB = 29*MB
WS_SIZE = 30*MB
ARG = dict(x=0, wqkv=8, wo=16, wg=32, wu=40, wd=48, c=56, wmod=64, out=72, dbg=80, ws=88)
SIZE = dict(x=2*MB, wqkv=512*1536*2, wo=512*512*2, wg=512*1792*2, wu=512*1792*2, wd=1792*512*2,
            c=1024, wmod=512*3072*2, out=2*MB, dbg=256, ws=WS_SIZE)

def vr(b, n=1, p='v'):
    return f"{p}{b}" if n == 1 else f"{p}[{b}:{b+n-1}]"
def ar(b, n=1): return vr(b, n, 'a')
def sr(b, n=1): return vr(b, n, 's')

class Cnt:
    def __init__(s, k, name, mx): s.k, s.name, s.mx, s.q = k, name, mx, []
    def issue(s, tag): s.q.append(tag)
    def wait(s, *tags):
        idx = max((i for i, t in enumerate(s.q) if t in tags), default=None)
        if idx is None: return
        n = len(s.q) - 1 - idx
        s.k(f"s_waitcnt {s.name}({min(n, s.mx)})")
        if n > s.mx: s.q = s.q[len(s.q)-s.mx:]
        else: s.q = s.q[idx+1:]
    def all(s):
        s.k(f"s_waitcnt {s.name}(0)"); s.q = []

class Kern:
    def __init__(s, name, grid, block, lds, nv, na=0, ns=102):
        s.name, s.grid, s.block, s.lds, s.nv, s.na, s.ns = name, grid, block, lds, nv, na, ns
        s.L = []; s.nst = 0
        s.vm = Cnt(s, 'vmcnt', 63); s.lg = Cnt(s, 'lgkmcnt', 15)
    def __call__(s, line):
        for l in line.split('\n'):
            l = l.strip()
            if l: s.L.append(('' if l.endswith(':') else '  ') + l)
    def srds(s, m):
        for a, b in m.items(): s(f"s_load_dwordx2 {sr(b,2)}, s[0:1], {ARG[a]}")
        for a, b in m.items():
            s(f"s_mov_b32 s{b+2}, {SIZE[a]}\ns_mov_b32 s{b+3}, 0x20000")
    def bload(s, dst, voff, srd, soff=0, off=0, tag=None, w=4, fl=''):
        sx = {1: '', 2: 'x2', 4: 'x4'}[w]
        o = f" offset:{off}" if off else ''
        s(f"buffer_load_dword{sx} {dst}, v{voff}, {sr(srd,4)}, {soff} offen{o}{fl}"); s.vm.issue(tag)
    def bstore(s, src, voff, srd, soff=0, off=0, tag='st', w=4, fl=''):
        sx = {1: '', 2: 'x2', 4: 'x4'}[w]
        o = f" offset:{off}" if off else ''
        s(f"buffer_store_dword{sx} {src}, v{voff}, {sr(srd,4)}, {soff} offen{o}{fl}"); s.vm.issue(tag)
    def dma(s, voff, srd, soff, tag=None, fl=''):
        s(f"buffer_load_dwordx4 v{voff}, {sr(srd,4)}, {soff} offen{fl} lds"); s.vm.issue(tag)
    def trd(s, dst, va, off, tag=None):
        assert 0 <= off < 65536, off
        s(f"ds_read_b64_tr_b16 {dst}, v{va} offset:{off}"); s.lg.issue(tag)
    def dsr(s, dst, va, off, tag=None, w=128):
        assert 0 <= off < 65536, off
        s(f"ds_read_b{w} {dst}, v{va} offset:{off}"); s.lg.issue(tag)
    def dsw(s, va, src, off, tag=None, w=128):
        assert 0 <= off < 65536, off
        s(f"ds_write_b{w} v{va}, {src} offset:{off}"); s.lg.issue(tag)
    def mfma16(s, d, a, b, c): s(f"v_mfma_f32_16x16x32_bf16 {d}, {a}, {b}, {c}")
    def mfma32(s, d, a, b, c): s(f"v_mfma_f32_32x32x16_bf16 {d}, {a}, {b}, {c}")
    def bfround(s, v):
        s(f"v_cvt_pk_bf16_f32 v{v}, v{v}, v{v}\nv_and_b32 v{v}, 0xffff0000, v{v}")
    def xsum(s, v, t):
        s(f"v_mov_b32 v{t}, v{v}\ns_nop 1\nv_permlane16_swap_b32 v{t}, v{v}\ns_nop 1\nv_add_f32 v{v}, v{v}, v{t}")
        s(f"v_mov_b32 v{t}, v{v}\ns_nop 1\nv_permlane32_swap_b32 v{t}, v{v}\ns_nop 1\nv_add_f32 v{v}, v{v}, v{t}")
    def uid(s):
        s._u = getattr(s, '_u', 0) + 1; return s._u
    def stamp(s):
        if not STAMP: return
        i = s.nst; s.nst += 1
        if i >= 19: return
        s(f"s_{'memrealtime' if i == 0 else 'memtime'} s[{62+2*i}:{63+2*i}]\ns_waitcnt lgkmcnt(0)"); s.lg.q = []
        if i == 0: s.stamp()
    def stamp_end(s, kid, wv='s4'):
        if not STAMP: return
        s.stamp()
        s(f"s_memrealtime s[100:101]\ns_load_dwordx2 s[52:53], s[0:1], 88\ns_mov_b32 s54, 0x4000000\ns_mov_b32 s55, 0x20000\ns_mov_b64 exec, 1")
        s(f"s_lshl_b32 s58, s2, 11\ns_lshl_b32 s59, {wv}, 8\ns_add_u32 s58, s58, s59\ns_add_u32 s58, s58, {32*MB + kid*MB}\ns_waitcnt lgkmcnt(0)\nv_mov_b32 v0, 0")
        for i in range(20):
            if i < min(s.nst, 19) or i == 19: s(f"v_mov_b32 v2, s{62+2*i}\nv_mov_b32 v3, s{63+2*i}")
            else: s("v_mov_b32 v2, 0\nv_mov_b32 v3, 0")
            s(f"buffer_store_dwordx2 v[2:3], v0, s[52:55], s58 offen offset:{8*i}\ns_nop 1")
    def text(s):
        return (f".globl {s.name}\n.p2align 8\n.type {s.name},@function\n{s.name}:\n" + '\n'.join(s.L) + "\n")
    def desc(s):
        acc = (s.nv + 3)//4*4
        tot = acc + s.na if s.na else s.nv
        return f""".p2align 6
.amdhsa_kernel {s.name}
  .amdhsa_next_free_vgpr {tot}
  .amdhsa_next_free_sgpr {s.ns}
  .amdhsa_accum_offset {acc}
  .amdhsa_group_segment_fixed_size 0
  .amdhsa_kernarg_size 96
  .amdhsa_user_sgpr_count 2
  .amdhsa_user_sgpr_kernarg_segment_ptr 1
  .amdhsa_system_sgpr_workgroup_id_x 1
.end_amdhsa_kernel
"""

def interleave(main, fill, per):
    out = []; fi = 0; acc = 0.0
    for m in main:
        out.append(m); acc += per
        while acc >= 1 and fi < len(fill):
            out.append(fill[fi]); fi += 1; acc -= 1
    out += fill[fi:]
    return out

def emit(kerns, path, launches=None):
    hdr = open(f'cdna_kernels/{NAME}.s.ref').read().split('; Override launch')[0]
    s = hdr
    for k in (launches or kerns):
        s += f"; @launch kernel={k.name} grid=({k.grid},1,1) block=({k.block},1,1) lds={k.lds}\n"
    s += '.amdgcn_target "amdgcn-amd-amdhsa--gfx950"\n.text\n'
    for k in kerns: s += k.text()
    s += '.section .rodata,"a"\n'
    for k in kerns: s += k.desc()
    open(path, 'w').write(s)
```

```python
from lib import *
from k01 import lane_setup, gemv_tile, ln_scalars, LOG2E
NG, NL, NU, NQ, NO, ND = 192, 64, 112, 48, 16, 56
AF = os.environ.get('AF', '')
def wait_mod(k, lo, lab):
    k(f"s_cmp_lg_u32 s4, 0\ns_cbranch_scc1 {lab}d")
    k(f"v_mov_b32 v60, 0\ns_mov_b32 s36, 63\ns_mov_b32 s50, 0x40000\n{lab}:")
    k(f"buffer_load_dword v61, v60, s[32:35], 0 offen offset:{lo} sc1\ns_waitcnt vmcnt(0)")
    k(f"v_cmp_ne_u32 vcc, s36, v61\ns_cbranch_vccz {lab}d\ns_sleep 2\ns_sub_u32 s50, s50, 1\ns_cbranch_scc0 {lab}\n{lab}d:\ns_barrier")
    k.vm.q = []
def ka():
    T = NG+NL+NU+NQ+NO+ND
    k = Kern("pa_kernel", T, 256, 32768, 112)
    k(f"s_cmp_ge_u32 s2, {T}\ns_cbranch_scc1 pa_kernel_end")
    k.stamp()
    k.srds(dict(ws=16, dbg=32))
    lane_setup(k)
    k(f"s_cmp_ge_u32 s2, {NG}\ns_cbranch_scc1 pa_ln")
    k.srds(dict(wmod=8, c=12))
    k("s_and_b32 s24, s2, 7\ns_lshl_b32 s24, s24, 3\ns_bfe_u32 s25, s2, 0x30003\ns_add_u32 s24, s24, s25\ns_and_b32 s25, s2, 0xc0\ns_add_u32 s24, s24, s25\ns_lshl_b32 s25, s24, 5")
    def pre():
        k("v_lshlrev_b32 v8, 4, v3\ns_lshl_b32 s26, s4, 8")
        for s in range(4): k.bload(vr(16+4*s,4), 8, 12, 's26', s*64, 'c')
    def bfrag():
        k(f"v_lshlrev_b32 v9, 2, v0\nv_mov_b32 v10, 0\ns_lshl_b32 s26, s2, 10\ns_add_u32 s26, s26, {CNT}\ns_cmp_ge_u32 s2, 128\ns_cbranch_scc1 pa_nz")
        k("buffer_store_dword v10, v9, s[16:19], s26 offen\npa_nz:\ns_waitcnt vmcnt(4)")
        k.vm.q = ['w']*4
        k(f"s_mov_b32 s27, 0x{LOG2E ^ 0x80000000:x}")
        for r in range(16):
            k(f"""v_lshlrev_b32 v32, 16, v{16+r}
            v_and_b32 v33, 0xffff0000, v{16+r}
            v_mul_f32 v34, s27, v32
            v_mul_f32 v35, s27, v33
            v_exp_f32 v34, v34
            v_exp_f32 v35, v35
            s_nop 0
            v_add_f32 v34, 1.0, v34
            v_add_f32 v35, 1.0, v35
            v_rcp_f32 v34, v34
            v_rcp_f32 v35, v35
            s_nop 0
            v_mul_f32 v34, v34, v32
            v_mul_f32 v35, v35, v33
            v_cvt_pk_bf16_f32 v{16+r}, v34, v35""")
    gemv_tile(k, 8, 6144, 25, bfrag, pre)
    for r in range(4): k.bfround(40+r)
    k("s_lshr_b32 s26, s24, 5\ns_cmp_eq_u32 s26, 1\ns_cselect_b32 s27, 1.0, 0\ns_cmp_eq_u32 s26, 4\ns_cselect_b32 s27, 1.0, s27")
    for r in range(4):
        k(f"v_add_f32 v{40+r}, s27, v{40+r}"); k.bfround(40+r)
    k("v_lshlrev_b32 v8, 4, v3\ns_lshl_b32 s26, s24, 6\nv_cmp_eq_u32 vcc, 0, v2\ns_and_saveexec_b64 s[28:29], vcc")
    k.bstore(vr(40,4), 8, 16, 's26', MOD, fl=' sc1')
    k(f"v_cvt_pk_bf16_f32 v44, v40, v41\nv_cvt_pk_bf16_f32 v45, v42, v43\nv_lshlrev_b32 v8, 3, v3\ns_lshl_b32 s26, s24, 5\ns_add_u32 s26, s26, {MODH}")
    k.bstore(vr(44,2), 8, 16, 's26', 0, w=2)
    k("s_cmp_ge_u32 s24, 64\ns_cbranch_scc1 pa_nf\nv_mov_b32 v9, 1\nv_mov_b32 v8, 0\ns_mov_b64 exec, 1\ns_waitcnt vmcnt(0)\nbuffer_atomic_add v9, v8, s[32:35], 0 offen sc0 sc1\ns_waitcnt vmcnt(0)\nv_cmp_eq_u32 vcc, 63, v9\ns_cbranch_vccz pa_nf\nbuffer_store_dword v9, v8, s[32:35], 0 offen offset:128 sc1\npa_nf:")
    k.stamp_end(6)
    k("s_endpgm")
    k(f"pa_ln:\ns_cmp_ge_u32 s2, {NG+NL}\ns_cbranch_scc1 pa_rl\ns_sub_u32 s24, s2, {NG}")
    k.vm.q = []; k.lg.q = []; k.nst = 2
    k.srds(dict(x=20))
    k("""v_and_b32 v2, 31, v1
    v_lshrrev_b32 v3, 5, v1
    v_lshlrev_b32 v5, 10, v2
    v_lshl_add_u32 v5, v3, 4, v5
    s_lshl_b32 s25, s24, 15
    s_lshl_b32 s26, s4, 8
    s_add_u32 s25, s25, s26
    s_waitcnt lgkmcnt(0)""")
    X = 64
    for s in range(8): k.bload(vr(X+4*s,4), 5, 20, 's25', s*32, 'x')
    k("v_mov_b32 v56, 0\nv_mov_b32 v57, 0")
    k.vm.all()
    for r in range(32):
        k(f"v_lshlrev_b32 v8, 16, v{X+r}\nv_and_b32 v9, 0xffff0000, v{X+r}\nv_add_f32 v56, v56, v8\nv_fmac_f32 v57, v8, v8\nv_add_f32 v56, v56, v9\nv_fmac_f32 v57, v9, v9")
    k("v_lshlrev_b32 v6, 3, v2\nv_lshlrev_b32 v7, 3, v0")
    k.dsw(7, vr(56,2), 0, w=64); k.lg.all()
    k("s_barrier")
    for w in range(8): k.dsr(vr(8+2*w,2), 6, w*256, w=64)
    k.lg.all()
    for w in range(1, 8): k(f"v_add_f32 v8, v8, v{8+2*w}\nv_add_f32 v9, v9, v{9+2*w}")
    ln_scalars(k, 8, 9, 10)
    for r in range(32):
        k(f"""v_lshlrev_b32 v10, 16, v{X+r}
        v_and_b32 v11, 0xffff0000, v{X+r}
        v_sub_f32 v10, v10, v8
        v_sub_f32 v11, v11, v8
        v_cvt_pk_bf16_f32 v10, v10, v11
        v_and_b32 v11, 0xffff0000, v10
        v_lshlrev_b32 v10, 16, v10
        v_mul_f32 v10, v10, v9
        v_mul_f32 v11, v11, v9
        v_cvt_pk_bf16_f32 v{X+r}, v10, v11""")
    k(f"v_lshlrev_b32 v6, 4, v1\ns_lshl_b32 s25, s24, 15\ns_lshl_b32 s27, s4, 13\ns_add_u32 s25, s25, s27\ns_add_u32 s25, s25, {H1}\ns_add_u32 s27, s25, 4096")
    k.stamp(); wait_mod(k, 128, "pa_w1"); k.stamp()
    k("v_lshlrev_b32 v5, 4, v2\nv_lshl_add_u32 v5, v3, 11, v5\ns_lshl_b32 s26, s4, 9")
    k.bload(vr(8,4), 5, 16, 's26', MOD, 'm', fl=' sc1')
    k("v_lshlrev_b32 v7, 4, v0\ns_lshl_b32 s26, s4, 10\nv_lshlrev_b32 v5, 5, v3\nv_add_u32 v5, s26, v5")
    k.vm.all(); k.dsw(7, vr(8,4), 4096); k.lg.all()
    def ldm(s):
        for j in range(4): k.dsr(vr(8+16*(s%3)+4*j,4), 5, 4096 + (j//2)*512 + s*64 + (j%2)*16, f'm{s}')
    ldm(0); ldm(1)
    for s in range(8):
        if s+2 < 8: ldm(s+2)
        k.lg.wait(f'm{s}'); M = 8+16*(s%3)
        for r in range(4):
            k(f"""v_lshlrev_b32 v56, 16, v{X+4*s+r}
            v_and_b32 v57, 0xffff0000, v{X+4*s+r}
            v_pk_fma_f32 v[56:57], v[56:57], v[{M+8+2*r}:{M+9+2*r}], v[{M+2*r}:{M+1+2*r}]
            v_cvt_pk_bf16_f32 v{X+4*s+r}, v56, v57""")
        k.bstore(vr(X+4*s,4), 6, 16, 's25' if s < 4 else 's27', (s%4)*1024, fl=AF)
    k.stamp_end(6)
    k("s_endpgm")
    k.vm.q = []; k.lg.q = []; k.nst = 2
    k(f"pa_rl:\ns_sub_u32 s20, s2, {NG+NL}\ns_lshl_b32 s20, s20, 2\ns_add_u32 s20, s20, s4\ns_mov_b32 s30, 0\ns_cmp_ge_u32 s20, {4*NQ}\ns_cbranch_scc1 pa_r1")
    k.srds(dict(wqkv=8)); k.srds(dict(wqkv=12))
    k(f"""s_and_b32 s21, s20, 31
    s_lshr_b32 s22, s20, 5
    s_lshl_b32 s24, s22, 9
    s_mov_b32 s26, 3072
    s_and_b32 s23, s22, 1
    s_mul_i32 s27, s23, {8*96*KB}
    s_lshr_b32 s23, s22, 1
    s_lshl_b32 s23, s23, 15
    s_add_u32 s27, s27, s23
    s_lshl_b32 s23, s21, 10
    s_add_u32 s27, s27, s23
    s_add_u32 s27, s27, {WQ}
    s_mov_b32 s28, {192*KB}
    s_mov_b32 s37, {96*KB}
    s_mov_b32 s29, 0
    s_add_u32 s25, s24, 256
    s_branch pa_go
    pa_r1:
    s_sub_u32 s20, s20, {4*NQ}
    s_cmp_ge_u32 s20, {4*NU}
    s_cbranch_scc1 pa_r2""")
    k.srds(dict(wg=8, wu=12))
    k(f"""s_and_b32 s21, s20, 31
    s_lshr_b32 s22, s20, 5
    s_lshl_b32 s24, s22, 8
    s_mov_b32 s25, s24
    s_mov_b32 s26, 3584
    s_mul_i32 s27, s22, {8*32*KB}
    s_lshl_b32 s23, s21, 10
    s_add_u32 s27, s27, s23
    s_add_u32 s27, s27, {WGU}
    s_mov_b32 s28, {64*KB}
    s_mov_b32 s37, {32*KB}
    s_mov_b32 s29, 0
    s_mov_b32 s30, 1
    s_branch pa_go
    pa_r2:
    s_sub_u32 s20, s20, {4*NU}
    s_mov_b32 s26, 1024
    s_mov_b32 s37, 1024
    s_mov_b32 s29, 1
    s_cmp_ge_u32 s20, {4*NO}
    s_cbranch_scc1 pa_r3""")
    k.srds(dict(wo=8)); k.srds(dict(wo=12))
    k(f"s_mov_b32 s28, {64*KB}\ns_mov_b32 s27, {WO}\ns_branch pa_r4\npa_r3:\ns_sub_u32 s20, s20, {4*NO}")
    k.srds(dict(wd=8)); k.srds(dict(wd=12))
    k(f"""s_mov_b32 s28, {224*KB}
    s_mov_b32 s27, {WD}
    pa_r4:
    s_lshr_b32 s21, s20, 1
    s_and_b32 s22, s20, 1
    s_lshl_b32 s24, s22, 9
    s_add_u32 s25, s24, 256
    s_lshl_b32 s23, s22, 2
    s_mul_i32 s23, s23, s28
    s_add_u32 s27, s27, s23
    s_lshl_b32 s23, s21, 11
    s_add_u32 s27, s27, s23
    pa_go:""")
    k("""s_lshl_b32 s31, s26, 4
    s_mul_i32 s31, s31, s21
    s_add_u32 s24, s24, s31
    s_add_u32 s25, s25, s31
    s_lshl_b32 s31, s26, 2
    v_mul_lo_u32 v5, v3, s26
    v_lshl_add_u32 v5, v2, 4, v5
    s_lshl_b32 s6, s4, 13
    s_waitcnt lgkmcnt(0)""")
    for p in range(4):
        for hf in range(2):
            k(f"s_add_u32 m0, s6, {hf*4096 + p*1024}\ns_nop 0")
            k.dma(5, 8+4*hf, f's{24+hf}', 'w')
        if p < 3: k("s_add_u32 s24, s24, s31\ns_add_u32 s25, s25, s31")
    k("""v_lshrrev_b32 v6, 1, v3
    s_sub_u32 s22, 3, s29
    v_lshlrev_b32 v6, s22, v6
    v_lshrrev_b32 v7, 2, v2
    v_add_u32 v6, v6, v7
    v_lshlrev_b32 v6, 8, v6
    v_and_b32 v7, 3, v2
    v_lshl_add_u32 v6, v7, 3, v6
    v_and_b32 v7, 1, v3
    s_cmp_eq_u32 s30, 1
    s_cselect_b32 s22, 12, 5
    v_lshl_add_u32 v6, v7, s22, v6
    v_add_u32 v6, s6, v6
    s_lshl_b32 s22, 0x400, s29
    v_add_u32 v7, s22, v6
    v_lshlrev_b32 v8, 4, v1
    s_cmp_eq_u32 s30, 1""")
    k.vm.all()
    k("s_cbranch_scc1 pa_tg")
    for gu in range(2):
        for c in range(8):
            o = c*32 if gu else (c//4)*4096 + (c % 4)*64
            k.trd(vr(64+4*c,2), 6, o); k.trd(vr(66+4*c,2), 7, o)
        k("s_branch pa_tj\npa_tg:" if gu == 0 else "pa_tj:")
    k.lg.all()
    for c in range(8):
        if c % 2: k("s_add_u32 s22, s27, s37\ns_add_u32 s27, s27, s28")
        k.bstore(vr(64+4*c,4), 8, 16, 's22' if c % 2 else 's27', 0, fl=AF)
    k.stamp_end(6)
    k("pa_kernel_end:\ns_endpgm")
    return k
```

```python
from lib import *
from k01 import ln_scalars, LOG2E
import struct, math
def f2u(x): return struct.unpack('<I', struct.pack('<f', x))[0]
SC = ' sc1'
RR = 96*KB
def kb():
    k = Kern("pb_kernel", 256, 512, 163840, 256)
    W = 12
    def run(x): k(x) if isinstance(x, str) else x()
    def sadd(d, b, imm): k(f"s_add_u32 s{d}, s{b}, {imm}")
    def arrive(ph, sidx):
        k.vm.all(); k("s_barrier")
        lab = f"arr{k.uid()}"
        k(f"s_cmp_lg_u32 s4, 0\ns_cbranch_scc1 {lab}\ns_mov_b64 exec, 1\nv_mov_b32 v5, {CNT + ph*32768}\nv_mov_b32 v6, 1")
        k(f"buffer_store_dword v6, v5, s[{W}:{W+3}], s{sidx} offen sc1\ns_mov_b64 exec, -1\n{lab}:")
    def poll(addr):
        lab = f"pol{k.uid()}"
        k(f"s_cmp_lg_u32 s4, 3\ns_cbranch_scc1 {lab}e\ns_mov_b32 s50, 0x40000")
        k(addr)
        k(f"""{lab}:
        buffer_load_dword v6, v5, s[{W}:{W+3}], 0 offen sc1
        s_waitcnt vmcnt(0)
        v_cmp_eq_u32 vcc, 0, v6
        s_cbranch_vccz {lab}e
        s_sub_u32 s50, s50, 1
        s_cbranch_scc0 {lab}
        {lab}e:
        s_barrier""")
    def row16(ph, srow):
        return f"s_lshl_b32 s27, s{srow}, 11\ns_add_u32 s27, s27, {CNT + ph*32768}\nv_and_b32 v5, 15, v1\nv_lshlrev_b32 v5, 7, v5\nv_add_u32 v5, s27, v5"
    k("s_cmp_ge_u32 s2, 256\ns_cbranch_scc1 pb_kernel_end")
    k.stamp()
    k.srds(dict(ws=W, x=16, out=20))
    k("""v_and_b32 v1, 63, v0
    v_lshrrev_b32 v4, 6, v0
    v_lshlrev_b32 v2, 4, v1
    v_readfirstlane_b32 s4, v4
    v_and_b32 v3, 31, v0
    v_bfe_u32 v4, v0, 5, 1
    s_and_b32 s27, s2, 7
    s_lshr_b32 s28, s2, 3
    s_and_b32 s5, s28, 7
    s_lshr_b32 s28, s28, 3
    s_and_b32 s7, s4, 3
    s_and_b32 s8, s27, 1
    s_lshl_b32 s8, s8, 3
    s_add_u32 s8, s8, s5
    s_lshr_b32 s9, s27, 1
    s_lshl_b32 s9, s9, 2
    s_add_u32 s9, s9, s28
    s_and_b32 s10, s27, 3
    s_lshl_b32 s10, s10, 3
    s_add_u32 s10, s10, s5
    s_lshr_b32 s11, s27, 2
    s_lshl_b32 s11, s11, 2
    s_add_u32 s11, s11, s28""")
    k(f"""s_lshl_b32 s24, s8, 2
    s_add_u32 s24, s24, s7
    s_lshl_b32 s25, s10, 1
    s_and_b32 s27, s4, 1
    s_add_u32 s25, s25, s27
    s_lshr_b32 s26, s4, 1
    s_lshl_b32 s5, s8, 4
    s_add_u32 s5, s5, s9
    s_lshl_b32 s5, s5, 7
    s_lshl_b32 s6, s10, 3
    s_add_u32 s6, s6, s11
    s_lshl_b32 s6, s6, 7
    s_lshr_b32 s51, s10, 1
    s_lshr_b32 s34, s5, 8
    s_bitcmp1_b32 s5, 7
    s_cselect_b32 s34, 127, s34
    s_lshl_b32 s40, s11, 16
    s_lshl_b32 s27, s26, 14
    s_add_u32 s40, s40, s27
    s_add_u32 s40, s40, {WO}
    s_mul_i32 s41, s9, {224*KB}
    s_add_u32 s41, s41, {WGU}
    s_mul_i32 s42, s11, {224*KB}
    s_mul_i32 s27, s4, {28*KB}
    s_add_u32 s42, s42, s27
    s_add_u32 s42, s42, {WD}
    v_add_u32 v14, 0x10000, v2
    v_add_u32 v15, 0x20000, v2
    s_waitcnt lgkmcnt(0)
    s_cmp_ge_u32 s4, 4
    s_cbranch_scc1 p1_L""")
    def ldsr(dst, off, tag):
        k.dsr(dst, [2, 14, 15][off >> 16], off & 0xffff, tag)
    def loads(dst, sbase, n, tag, fl='', step=1024, tags=None):
        for i in range(n):
            if (i*step) % 4096 == 0 or step > 1024: sadd(27, sbase, (i*step)//4096*4096 if step <= 1024 else i*step)
            k.bload(vr(dst+4*i,4), 2, W, 's27', (i*step) % 4096 if step <= 1024 else 0, tags(i) if tags else tag, fl=fl)
    def wo_loads(): loads(48, 40, 16, 'wo')
    from kb1 import p12
    p12(k, W, run, sadd, arrive, poll, ldsr, loads, wo_loads)
    XR, GA, A2, AC3, OFR = 8, 16, 24, 144, 112
    k(f"""v_lshlrev_b32 v7, 10, v3
    v_lshl_add_u32 v7, v4, 4, v7
    s_lshl_b32 s43, s25, 15
    s_lshl_b32 s27, s11, 7
    s_add_u32 s43, s43, s27
    s_lshl_b32 s27, s26, 5
    s_add_u32 s43, s43, s27
    v_lshlrev_b32 v12, 4, v4
    s_lshl_b32 s39, s11, 8
    s_lshl_b32 s27, s26, 6
    s_add_u32 s39, s39, s27
    s_add_u32 s28, s39, {MOD+4096}
    s_add_u32 s29, s39, {MOD+8192}""")
    k.bload(vr(XR,4), 7, 16, 's43', 0, 'e')
    for e in range(2):
        k.bload(vr(GA+4*e,4), 12, W, 's28', e*32, 'e'); k.bload(vr(A2+4*e,4), 12, W, 's29', e*32, 'e')
    k("s_cmp_lt_u32 s4, 4\ns_cbranch_scc1 p3_a\ns_add_u32 s28, s42, 0x2000")
    loads(176, 28, 20, 'wd'); k("p3_a:"); k.vm.q = []
    k(f"s_lshl_b32 s28, s25, 15\ns_lshl_b32 s27, s26, 13\ns_add_u32 s28, s28, s27\ns_add_u32 s28, s28, {OF}")
    poll(row16(1, 51)); k.stamp()
    loads(OFR, 28, 8, None, fl=SC, tags=lambda i: f'o{i}')
    for s in range(8):
        k.vm.wait(f'o{s}')
        for nt in range(2):
            d = vr(AC3+16*nt,16); k.mfma32(d, vr(48+8*s+4*nt,4), vr(OFR+4*s,4), '0' if s == 0 else d)
    k(f"""s_and_b32 s27, s4, 1
    s_lshl_b32 s27, s27, 13
    s_lshl_b32 s28, s26, 11
    s_add_u32 s28, s28, s27
    s_add_u32 s28, s28, {RR}
    v_add_u32 v13, s28, v2
    s_lshl_b32 s28, s4, 13
    s_add_u32 s28, s28, {RR}
    v_permlane32_swap_b32 v{XR}, v{XR+2}
    v_permlane32_swap_b32 v{XR+1}, v{XR+3}
    s_nop 4""")
    for q in range(4):
        for e in range(2): k.dsw(13, vr(AC3+8*q+4*e,4), q*16384 + e*1024)
    k("v_add_u32 v13, s28, v2"); k.lg.all(); k("s_barrier")
    for q in range(4):
        for e in range(2): k.dsr(vr(AC3+8*q+4*e,4), 13, q*2048 + e*1024, f'r{q}')
    for q in range(1, 4):
        k.lg.wait(f'r{q}')
        for r in range(8): k(f"v_add_f32 v{AC3+r}, v{AC3+r}, v{AC3+8*q+r}")
    k("v_mov_b32 v36, 0\nv_mov_b32 v37, 0")
    for r in range(4):
        k(f"""v_lshlrev_b32 v32, 16, v{XR+r}
        v_and_b32 v33, 0xffff0000, v{XR+r}
        v_fma_f32 v32, v{AC3+2*r}, v{GA+2*r}, v32
        v_fma_f32 v33, v{AC3+2*r+1}, v{GA+2*r+1}, v33
        v_cvt_pk_bf16_f32 v{XR+r}, v32, v33
        v_lshlrev_b32 v32, 16, v{XR+r}
        v_and_b32 v33, 0xffff0000, v{XR+r}
        v_add_f32 v36, v36, v32
        v_fmac_f32 v37, v32, v32
        v_add_f32 v36, v36, v33
        v_fmac_f32 v37, v33, v33
        v_mul_f32 v32, v32, v{A2+2*r}
        v_mul_f32 v33, v33, v{A2+2*r+1}
        v_cvt_pk_bf16_f32 v{40+r}, v32, v33""")
    k(f"""s_lshl_b32 s28, s25, 15
    s_lshl_b32 s27, s11, 12
    s_add_u32 s28, s28, s27
    s_lshl_b32 s27, s26, 10
    s_add_u32 s28, s28, s27
    s_add_u32 s28, s28, {YF}
    v_permlane32_swap_b32 v40, v42
    v_permlane32_swap_b32 v41, v43""")
    k.bstore(vr(40,4), 2, W, 's28', 0, fl=SC)
    k.dsw(13, vr(36,2), 0, w=64); k.lg.all(); k("s_barrier")
    k(f"""s_cmp_ge_u32 s4, 2
    s_cbranch_scc1 p3_b""")
    for q in range(4): k.dsr(vr(32+2*q,2), 13, q*16384, w=64)
    k.lg.all()
    k(f"""v_add_f32 v32, v32, v34
    v_add_f32 v33, v33, v35
    v_add_f32 v36, v36, v38
    v_add_f32 v37, v37, v39
    v_add_f32 v32, v32, v36
    v_add_f32 v33, v33, v37
    v_mov_b32 v34, v32
    v_mov_b32 v35, v33
    s_lshl_b32 s28, s25, 11
    s_lshl_b32 s27, s11, 8
    v_permlane32_swap_b32 v34, v32
    v_permlane32_swap_b32 v35, v33
    s_add_u32 s28, s28, s27
    s_add_u32 s28, s28, {STB}
    v_add_f32 v32, v32, v34
    v_add_f32 v33, v33, v35
    v_lshlrev_b32 v34, 3, v3
    s_mov_b32 exec_hi, 0""")
    k.bstore(vr(32,2), 34, W, 's28', 0, w=2, fl=SC)
    k("s_mov_b32 exec_hi, -1")
    k("p3_b:")
    k.stamp()
    arrive(2, 6); k.vm.q = []
    from kb2 import p45
    p45(k, W, run, sadd, arrive, poll, ldsr, loads, row16)
    k("pb_kernel_end:\ns_endpgm")
    return k
```

```python
from lib import *
import struct, math
def f2u(x): return struct.unpack('<I', struct.pack('<f', x))[0]
SC = ' sc1'
RR = 96*KB
LK, LV, LQ, LU, LM, L1 = RR, RR+24*KB, RR+48*KB, RR+56*KB, RR+58*KB, RR+63*KB
def p12(k, W, run, sadd, arrive, poll, ldsr, loads, wo_loads):
    def ldsw(src, off, base):
        k.dsw(base + (off >> 16) - 1, src, off & 0xffff)
    k(f"s_lshl_b32 s28, s24, 15\ns_add_u32 s28, s28, {H1}")
    def hld(i):
        if i % 4 == 0: sadd(29, 28, i*KB)
        k.bload(vr(128+4*i,4), 2, W, 's29', (i % 4)*KB, f'h{i}')
    HP, NF, PF, MS = int(os.environ.get('HP', 20)), 8, 6, 96
    for i in range(HP): hld(i)
    seq = [(p, kc) for kc in range(32) for p in (1, 2)] + [(0, kc) for kc in range(32)]
    def rd(i): p, kc = seq[i]; ldsr(vr(64+4*(i % NF),4), p*32*KB + kc*KB, f'w{i}')
    k(f"""s_lshl_b32 s30, s9, 17
    s_lshl_b32 s27, s24, 10
    s_add_u32 s31, s30, s27
    s_add_u32 s30, s31, s27
    s_add_u32 s31, s31, {KF}
    s_add_u32 s30, s30, {VF}
    s_add_u32 s32, s31, 0x10000
    s_lshl_b32 s27, s7, 10
    v_add_u32 v8, s27, v14
    v_add_u32 v9, s27, v15
    v_add_u32 v10, s27, v8
    v_add_u32 v11, s27, v9
    s_mov_b32 s33, 0x{f2u(0.25*math.log2(math.e)):x}""")
    def kvepi():
        th = []
        for p in (1, 2):
            for r in range(8): th.append(f"v_cvt_pk_bf16_f32 v{MS+8*(p-1)+r}, v{16*p+2*r}, v{16*p+2*r+1}")
            for hh in range(2):
                src = vr(MS+8*(p-1)+4*hh,4)
                if p == 1:
                    th.append(lambda src=src, hh=hh: k.bstore(src, 2, W, f's{31+hh}', 0, fl=SC))
                    th.append(lambda src=src, hh=hh: ldsw(src, LK + (hh*12+8)*KB, 8))
                else:
                    th.append(lambda src=src, hh=hh: k.bstore(src, 2, W, 's30', hh*KB, fl=SC))
                    th.append(lambda src=src, hh=hh: ldsw(src, LV + (16+hh)*KB, 10))
        return th
    k("s_barrier"); k.stamp()
    for q in range(PF): rd(q)
    fill = []
    for i, (p, kc) in enumerate(seq):
        if (i+PF) in (16, 32, 48, 64): k("s_barrier")
        if i+PF < 96: rd(i+PF)
        if p == 1: k.vm.wait(f'h{kc}')
        if i % 2 == 0: k.lg.wait(f'w{i+1}')
        d = vr([48,16,32][p],16); w = vr(64+4*(i % NF),4); h = vr(128+4*kc,4); c = '0' if kc == 0 else d
        if p < 2: k.mfma32(d, w, h, c)
        else: k.mfma32(d, h, w, c)
        if p == 2 and kc+HP < 32: hld(kc+HP)
        if i == 67: fill = kvepi()
        for x in fill[:2]: run(x)
        fill = fill[2:]
    k.stamp()
    k("s_nop 7\ns_nop 3")
    for r in range(16): k(f"v_mul_f32 v{48+r}, s33, v{48+r}")
    for r in range(8): k(f"v_cvt_pk_bf16_f32 v{64+r}, v{48+2*r}, v{49+2*r}")
    for hh in range(2): ldsw(vr(64+4*hh,4), LQ + hh*4*KB, 8)
    k.lg.all()
    k("s_branch p1_J\np1_L:")
    k.vm.q = []; k.lg.q = []
    k(f"s_mul_i32 s28, s9, {96*KB}\ns_lshl_b32 s29, s7, 11\ns_add_u32 s28, s28, s29\ns_add_u32 s28, s28, {WQ}\ns_and_b32 s30, s7, 1\ns_lshl_b32 s30, s30, 10\ns_add_u32 m0, s30, {LM}\ns_add_u32 s30, s30, {MODH + 3072}")
    k.dma(2, W, 's30', 'u0')
    def wq(u):
        for o in ([p*32*KB + u*8*KB + i*KB for i in range(2) for p in (1, 2)] if u < 4 else [q*8*KB + i*KB for q in range(4) for i in range(2)]):
            k(f"s_add_u32 m0, s29, {o}"); sadd(27, 28, o); k.dma(2, W, 's27', f'u{u}')
    wq(0); wq(1)
    for u in range(5):
        if u+2 < 5: wq(u+2)
        k.vm.wait(f'u{u}'); k("s_barrier")
    k("v_mov_b32 v8, 0x3f803f80\nv_mov_b32 v9, v8\nv_mov_b32 v10, v8\nv_mov_b32 v11, v8")
    k.dsw(15, vr(8,4), L1 & 0xffff)
    k("s_cmp_ge_u32 s34, 112\ns_cbranch_scc1 uv_a")
    k(f"""s_lshl_b32 s28, s34, 15
    s_lshl_b32 s27, s7, 13
    s_add_u32 s28, s28, s27
    s_add_u32 s28, s28, {WGU}
    v_and_b32 v7, 1, v1
    v_lshlrev_b32 v7, 10, v7
    v_sub_u32 v7, {LM + 1024}, v7
    v_lshl_add_u32 v7, v4, 4, v7
    s_lshl_b32 s27, s7, 8
    v_add_u32 v7, s27, v7""")
    loads(128, 28, 8, 'a')
    for c in range(8): k.dsr(vr(160+4*c,4), 7, c*32)
    k(f"v_lshlrev_b32 v7, 7, v3\nv_lshl_add_u32 v7, v4, 4, v7\ns_lshl_b32 s27, s7, 8\ns_add_u32 s27, s27, {LU}\nv_add_u32 v7, s27, v7")
    k.vm.all(); k.lg.all()
    for c in range(8): k.mfma32(vr(192,16), vr(128+4*c,4), vr(160+4*c,4), '0' if c == 0 else vr(192,16))
    k("s_nop 7\ns_nop 3\ns_mov_b32 exec_lo, 3\ns_mov_b32 exec_hi, 3")
    for q in range(4): k.dsw(7, vr(192+4*q,4), q*32)
    k("s_mov_b64 exec, -1\nuv_a:"); wo_loads(); k.lg.all()
    k("p1_J:")
    arrive(0, 5); k.stamp(); k.vm.q = []
    SB = 160
    k(f"s_cmp_ge_u32 s34, 112\ns_cbranch_scc1 uv_b\ns_cmp_lg_u32 s4, 4\ns_cbranch_scc1 uv_b\nv_lshlrev_b32 v7, 2, v3\nv_add_u32 v7, {LU}, v7")
    for w in range(4):
        for n in range(2): k.dsr(vr(SB+2*w+n), 7, w*256 + n*128, w=32)
    k.lg.all()
    for w in range(1, 4): k(f"v_add_f32 v{SB}, v{SB}, v{SB+2*w}\nv_add_f32 v{SB+1}, v{SB+1}, v{SB+2*w+1}")
    for n in range(2):
        x = SB+n; t = SB+2+3*n
        k(f"v_and_b32 v{t}, 0xffff0000, v{x}\nv_sub_f32 v{x}, v{x}, v{t}\nv_and_b32 v{t+1}, 0xffff0000, v{x}\nv_sub_f32 v{t+2}, v{x}, v{t+1}")
    k(f"""v_cvt_pk_bf16_f32 v{SB+8}, v{SB+2}, v{SB+3}
    v_cvt_pk_bf16_f32 v{SB+9}, v{SB+4}, v{SB+5}
    v_cvt_pk_bf16_f32 v{SB+10}, v{SB+6}, v{SB+7}
    v_mov_b32 v{SB+11}, 0
    s_lshl_b32 s27, s34, 10
    s_add_u32 s27, s27, {UVB}
    buffer_store_dwordx4 v[{SB+8}:{SB+11}], v2, s[{W}:{W+3}], s27 offen sc1
    uv_b:""")
    OA, QR, VR, M0, M8, NM, SB, KR = 16, 32, 36, 112, 128, 144, 160, 208
    k(f"v_lshlrev_b32 v7, 2, v4\nv_sub_u32 v7, v3, v7\ns_mov_b32 s31, 0x{f2u(-1e30):x}\nv_mov_b32 v8, s31\nv_mov_b32 v9, 0")
    for r in range(16):
        k(f"v_cmp_gt_i32 s[{52+2*(r%4)}:{53+2*(r%4)}], {(r//4)*8 + r % 4}, v7")
        if r % 4 == 3:
            for q in range(r-3, r+1):
                m = f"s[{52+2*(q%4)}:{53+2*(q%4)}]"
                k(f"v_cndmask_b32 v{M0+q}, v8, v9, {m}\nv_cndmask_b32 v{M8+q}, v9, v8, {m}")
    k(f"""s_lshl_b32 s28, s8, 2
    s_add_u32 s28, s28, s4
    s_sub_u32 s28, s28, 8
    s_max_i32 s28, s28, 0
    s_lshl_b32 s27, s9, 17
    s_lshl_b32 s35, s28, 10
    s_add_u32 s36, s35, s27
    s_add_u32 s35, s36, s35
    s_add_u32 s36, s36, {KF}
    s_add_u32 s35, s35, {VF}
    s_lshl_b32 s38, s4, 10
    s_lshr_b32 s37, s4, 2
    s_mul_i32 s27, s37, {12*KB}
    s_lshl_b32 s28, s7, 10
    s_add_u32 s27, s27, s28
    s_add_u32 s27, s27, {LK}
    v_add_u32 v13, s27, v2
    s_lshl_b32 s27, s37, 8
    s_lshl_b32 s28, s7, 11
    s_add_u32 s27, s27, s28
    s_add_u32 s27, s27, {LV}
    v_add_u32 v12, s27, v2
    v_cmp_gt_u32 vcc, 16, v3
    v_mov_b32 v10, 0x400
    v_mov_b32 v11, {L1}
    v_cndmask_b32 v10, 0, v10, vcc
    v_cndmask_b32 v12, v11, v12, vcc
    v_add_u32 v11, s38, v15""")
    poll(f"""s_sub_u32 s27, s5, 2048
    s_cselect_b32 s27, s5, s27
    s_sub_u32 s28, s5, 4096
    s_cselect_b32 s28, s5, s28
    v_mov_b32 v5, s27
    v_mov_b32 v6, s28
    v_cndmask_b32 v5, v5, v6, vcc
    v_add_u32 v5, {CNT}, v5"""); k.stamp()
    for hh in range(2):
        k(f"s_add_u32 m0, s38, {LK + hh*12*KB}"); sadd(27, 36, hh*64*KB); k.dma(2, W, 's27', 'kv', fl=SC)
    k(f"s_lshl_b32 s38, s38, 1")
    for hh in range(2):
        k(f"s_add_u32 m0, s38, {LV + hh*KB}"); sadd(27, 35, hh*KB); k.dma(2, W, 's27', 'kv', fl=SC)
    k.dsr(vr(QR,4), 11, LQ & 0xffff)
    k.vm.all()
    k.vm.q = []; k.lg.all(); k("s_barrier"); k.stamp()
    k(f"s_mul_i32 s29, s4, {12*KB}\ns_add_u32 s28, s41, s29\ns_mov_b32 vcc_hi, 0\ns_mov_b32 vcc_lo, s37")
    def gu(c): k(f"s_add_u32 m0, s29, {c*KB}"); sadd(27, 28, c*KB); k.dma(2, W, 's27', 'gu')
    def wo(i):
        if i % 4 == 0: sadd(30, 40, i*KB)
        lb = f"wo{k.uid()}"
        k(f"s_cbranch_vccnz {lb}"); k.bload(vr(48+4*i,4), 2, W, 's30', (i % 4)*KB, 'wo'); k(f"{lb}:")
    pre = [x for i in range(16) for x in ([(wo, i), (gu, i)] if i < 12 else [(wo, i)])]
    def pf(n=1):
        for _ in range(n):
            if pre: f, i = pre.pop(0); f(i)
    def mx(b, first=False):
        for i in range(8):
            a = 8 + i % 2
            k(f"v_max_f32 v{a}, v{b+2*i}, v{b+2*i+1}" if first and i < 2 else f"v_max3_f32 v{a}, v{a}, v{b+2*i}, v{b+2*i+1}")
    def fin_max(m0):
        k("v_max_f32 v8, v8, v9\nv_mov_b32 v9, v8\ns_nop 1\nv_permlane32_swap_b32 v9, v8\ns_nop 1\nv_max_f32 v8, v8, v9")
        if m0:
            for r in range(16): k(f"v_sub_f32 v{M0+r}, v{M0+r}, v8")
        for r in range(16): k(f"v_sub_f32 v{NM+r}, 0, v8")
        for r in range(16): k(f"v_sub_f32 v{M8+r}, v{M8+r}, v8")
    def vrd(c): k.dsr(vr(VR+4*(c % 3),4), 12, 0, f'v{c}'); k("v_add_u32 v12, v12, v10")
    k("s_cmp_lt_u32 s8, 2\ns_cbranch_scc1 p2_slow")
    for j in range(9): k.dsr(vr(KR+4*j,4), 13, j*KB, f'k{j}')
    def sb(j): return SB + 16*(j % 3)
    def qk(j, c): k.mfma32(vr(sb(j),16), vr(KR+4*j,4), vr(QR,4), c)
    def c1(j): return vr(M0,16) if j == 0 else vr(M8,16) if j == 8 else '0'
    def c2(j): return vr(M0,16) if j == 0 else vr(M8,16) if j == 8 else vr(NM,16)
    for j in range(2): k.lg.wait(f'k{j}'); qk(j, c1(j))
    pf(2); k('s_nop 2')
    for j in range(9):
        if j+2 < 9: k.lg.wait(f'k{j+2}'); qk(j+2, c1(j+2))
        if j == 0: k("s_nop 3")
        if j == 8: vrd(0); vrd(1)
        mx(sb(j), j == 0); pf()
    fin_max(True)
    qk(0, c2(0)); qk(1, c2(1)); pf(); k("s_nop 7\ns_nop 1")
    def pv(c):
        k.lg.wait(f'v{c}')
        k.mfma32(vr(OA,16), vr(VR+4*(c % 3),4), vr(sb(c//2)+8*(c % 2),4), '0' if c == 0 else vr(OA,16))
    for c in range(18):
        b = sb(c//2) + 8*(c % 2)
        for r in range(8): k(f"v_exp_f32 v{b+r}, v{b+r}")
        if c > 0: pv(c-1)
        if c % 2 == 0 and c//2+2 < 9: qk(c//2+2, c2(c//2+2))
        if c+2 < 18: vrd(c+2)
        pf(2 if c < 4 else 1)
        for r in range(4): k(f"v_cvt_pk_bf16_f32 v{b+r}, v{b+2*r}, v{b+2*r+1}")
    k("s_nop 1"); pv(17)
    k("s_branch p2_join\np2_slow:")
    assert not pre
    for c in range(8): wo(c)
    k(f"s_sub_u32 s30, 8, s24\ns_lshl_b32 s27, s30, 10\nv_add_u32 v13, s27, v13\nv_mov_b32 v7, v13\ns_lshl_b32 s27, s30, 1\nv_mad_u32_u24 v12, v10, s27, v12\nv_mov_b32 v8, s31\nv_mov_b32 v9, s31")
    for r in range(16): k(f"v_mov_b32 v{OA+r}, 0")
    for ps in range(2):
        k(f"s_mov_b32 s32, s30\np2_l{ps}:")
        k.dsr(vr(KR,4), 13 if ps == 0 else 7, 0)
        k(f"v_add_u32 v{13 if ps == 0 else 7}, 0x400, v{13 if ps == 0 else 7}")
        if ps: vrd(0); vrd(1)
        k.lg.all()
        k(f"s_cmp_eq_u32 s32, 8\ns_cbranch_scc1 p2_m{ps}")
        k.mfma32(vr(SB,16), vr(KR,4), vr(QR,4), vr(NM,16) if ps else '0')
        k(f"s_branch p2_n{ps}\np2_m{ps}:")
        k.mfma32(vr(SB,16), vr(KR,4), vr(QR,4), vr(M8,16))
        k(f"p2_n{ps}:\ns_nop 7\ns_nop 3")
        if ps == 0: mx(SB)
        else:
            for r in range(16): k(f"v_exp_f32 v{SB+r}, v{SB+r}")
            k("s_nop 0")
            for r in range(8): k(f"v_cvt_pk_bf16_f32 v{SB+16+r}, v{SB+2*r}, v{SB+2*r+1}")
            k("s_nop 1")
            for c in range(2): k.mfma32(vr(OA,16), vr(VR+4*c,4), vr(SB+16+4*c,4), vr(OA,16))
        k(f"s_add_u32 s32, s32, 1\ns_cmp_le_u32 s32, 8\ns_cbranch_scc1 p2_l{ps}")
        if ps == 0:
            fin_max(False)
            k('s_mov_b32 s49, s30')
            for c in range(8, 16): wo(c)
            k('s_mov_b32 s30, s49')
    for c in range(12): gu(c)
    k(f"""p2_join:
    s_lshl_b32 s28, s24, 15
    s_lshl_b32 s27, s9, 11
    s_add_u32 s28, s28, s27
    s_lshl_b32 s27, s37, 10
    s_add_u32 s28, s28, s27
    s_add_u32 s28, s28, {OF}
    s_nop 5
    v_rcp_f32 v8, v{OA+8}
    s_nop 0""")
    k.lg.q = []
    for r in range(8): k(f"v_mul_f32 v{OA+r}, v{OA+r}, v8")
    for r in range(4): k(f"v_cvt_pk_bf16_f32 v{OA+r}, v{OA+2*r}, v{OA+2*r+1}")
    k.bstore(vr(OA,4), 2, W, 's28', 0, fl=SC)
    k.stamp()
    arrive(1, 5); k.vm.q = []
```

```python
from lib import *
from k01 import ln_scalars, LOG2E
SC = ' sc1'
UVL = 144*KB
WSL = [5, 6, 7, 8, 0, 1]
PK = int(os.environ.get('PK', 0))
BUD = int(os.environ.get('BUD', 8))
def p45(k, W, run, sadd, arrive, poll, ldsr, loads, row16):
    TH = int(os.environ.get('TH', 60))
    def thr():
        if len(k.vm.q) > TH: k(f"s_waitcnt vmcnt({TH})"); k.vm.q = k.vm.q[-TH:]
    def unit_dma(u):
        for i in range(4):
            k(f"s_add_u32 m0, s29, {(u % 9)*16*KB + i*KB}"); sadd(27, 28, u*16*KB + i*KB); thr(); k.dma(2, W, 's27', f'u{u}')
    k(f"s_cmp_lt_u32 s4, 4\ns_cbranch_scc1 p4_a\ns_lshl_b32 s29, s7, 12\ns_add_u32 s28, s41, s29\ns_sub_u32 s32, s42, {4*28*KB}")
    for u in (6, 7, 8): unit_dma(u)
    loads(144, 42, 8, 'wd'); qL = list(k.vm.q)
    k("p4_a:")
    poll(row16(2, 8) + f"""
    s_mul_i32 s27, s9, {7*256}
    s_add_u32 s27, s27, {CNT + 32768}
    v_and_b32 v6, 7, v1
    v_min_u32 v6, 6, v6
    v_lshlrev_b32 v6, 8, v6
    v_add_u32 v6, s27, v6
    v_cmp_gt_u32 vcc, 16, v3
    s_nop 1
    v_cndmask_b32 v5, v6, v5, vcc"""); k.stamp()
    k("s_cmp_ge_u32 s4, 4\ns_cbranch_scc1 p4_L")
    k.vm.q = []
    AC, WF, XB, TM, OU, ST = 16, 80, 112, 116, 124, 116
    NF, PF = 8, 6
    k(f"""s_lshl_b32 s28, s24, 15
    s_add_u32 s28, s28, {YF}
    s_lshl_b32 s29, s24, 11
    s_add_u32 s29, s29, {STB}
    v_lshlrev_b32 v5, 3, v3
    v_lshl_add_u32 v5, v4, 10, v5""")
    loads(128, 28, 4, None, fl=SC, tags=lambda i: f'y{i}')
    for e in range(4): k.bload(vr(ST+2*e,2), 5, W, 's29', e*256, 'st', w=2, fl=SC)
    def yld(i):
        if i % 4 == 0: sadd(29, 28, i*KB)
        k.bload(vr(128+4*i,4), 2, W, 's29', (i % 4)*KB, f'y{i}', fl=SC)
    YP = int(os.environ.get('YP', 16))
    for i in range(4, YP): yld(i)
    k(f"""s_mul_i32 s30, s24, {112*KB}
    s_mul_i32 s27, s9, {7*KB}
    s_add_u32 s30, s30, s27
    s_add_u32 s30, s30, {HF}
    s_add_u32 s31, s30, 4096
""")
    seq = [(p, kc) for kc in range(33) for p in (0, 1)] + [(p, kc) for p in range(2, 7) for kc in range(33)]
    def rd(i):
        p, kc = seq[i]
        ldsr(vr(WF+4*(i % NF),4), UVL + p*KB if kc == 32 else ((2*p + kc//16) % 9)*16*KB + (kc % 16)*KB, f'w{i}')
    def epi(p):
        ab = AC + (p % 4)*16; th = []
        R1, R2 = 5, 6
        for q in range(2):
            g = ab + 4*q; uu = ab + 8 + 4*q
            P = lambda x: f"v[{x}:{x+1}]"
            if PK:
                for r in (0, 2): th.append(f"v_pk_mul_f32 {P(TM+r)}, {P(g+r)}, {P(TM+4)} op_sel_hi:[1,0]")
            else:
                for r in range(4): th.append(f"v_mul_f32 v{TM+r}, v{g+r}, v{TM+4}")
            for r in range(4): th.append(f"v_exp_f32 v{TM+r}, v{TM+r}")
            if PK:
                for r in (0, 2): th.append(f"v_pk_fma_f32 {P(TM+r)}, {P(TM+r)}, {P(TM+6)}, {P(TM+6)} op_sel_hi:[1,0,0]")
            else:
                for r in range(4): th.append(f"v_fma_f32 v{TM+r}, v{TM+r}, v{TM+6}, v{TM+6}")
            for r in range(4): th.append(f"v_rcp_f32 v{TM+r}, v{TM+r}")
            if PK:
                for r in (0, 2): th.append(f"v_pk_mul_f32 {P(TM+r)}, {P(TM+r)}, {P(uu+r)}")
            else:
                for r in range(4): th.append(f"v_mul_f32 v{TM+r}, v{TM+r}, v{uu+r}")
            for r in range(2): th.append(f"v_cvt_pk_bf16_f32 v{OU+2*q+r}, v{TM+2*r}, v{TM+2*r+1}")
        th.append(lambda: k.bstore(vr(OU,4), 2, W, 's30' if p < 4 else 's31', (p % 4)*1024, fl=SC))
        return th
    def stats():
        k.vm.wait('st')
        k(f"""v_add_f32 v{ST}, v{ST}, v{ST+2}
        v_add_f32 v{ST+1}, v{ST+1}, v{ST+3}
        v_add_f32 v{ST+4}, v{ST+4}, v{ST+6}
        v_add_f32 v{ST+5}, v{ST+5}, v{ST+7}
        v_add_f32 v{ST}, v{ST}, v{ST+4}
        v_add_f32 v{ST+1}, v{ST+1}, v{ST+5}
        v_mov_b32 v{ST+2}, v{ST}
        v_mov_b32 v{ST+3}, v{ST+1}
        s_nop 1
        v_permlane32_swap_b32 v{ST+2}, v{ST}
        v_permlane32_swap_b32 v{ST+3}, v{ST+1}
        s_nop 1
        v_add_f32 v{ST}, v{ST}, v{ST+2}
        v_add_f32 v{ST+1}, v{ST+1}, v{ST+3}""")
        ln_scalars(k, ST, ST+1, ST+2, keep=ST+3)
        k(f"""v_sub_f32 v{ST}, 0, v{ST}
        v_mul_f32 v{TM+4}, 0x{LOG2E ^ 0x80000000:x}, v{ST+1}
        v_mov_b32 v{TM+6}, v{ST+3}
        v_mov_b32 v{XB}, 0
        v_mov_b32 v{XB+1}, 0
        v_mov_b32 v{XB+2}, 0
        v_mov_b32 v{XB+3}, 0
        s_mov_b32 exec_hi, 0
        v_cvt_pk_bf16_f32 v{XB}, v{ST}, v{ST}
        v_cvt_pk_bf16_f32 v{XB+1}, v{ST}, v{ST+3}
        v_cvt_pk_bf16_f32 v{XB+2}, v{ST+3}, v{ST+3}
        s_mov_b32 exec_hi, -1""")
    for q in range(PF): rd(q)
    fill = []; N = len(seq)
    bars = [64, 66+33, 66+66, 66+99, 66+132]
    for i, (p, kc) in enumerate(seq):
        if i == 68: fill = epi(0) + epi(1)
        if kc == 3 and p >= 3: fill += epi(p-1)
        if i+PF in bars: k("s_barrier")
        if i+PF < N: rd(i+PF)
        if p == 0 and kc < 32: k.vm.wait(f'y{kc}')
        if i % 3 == 0: k.lg.wait(f'w{min(i+2, N-1)}')
        d = vr(AC + (p % 4)*16, 16)
        k.mfma32(d, vr(WF+4*(i % NF),4), vr(128+4*kc,4) if kc < 32 else vr(XB,4), '0' if kc == 0 else d)
        if p == 0 and kc + YP < 32: yld(kc+YP)
        if i == 10: stats()
        if i == 65: k.stamp()
        bud = BUD
        while fill:
            cst = 8 if isinstance(fill[0], str) and fill[0][2:5] in ('exp', 'rcp') else 4
            if cst > bud: break
            bud -= cst; run(fill.pop(0))
        if kc == 32 and p >= 3: assert len(fill) <= 2*len(epi(0)), (p, len(fill))
    for x in fill: run(x)
    k.stamp()
    k("s_nop 7\ns_nop 3")
    for x in epi(6): run(x)
    k("s_branch p4_J\np4_L:")
    k.vm.q = qL; k.lg.q = []
    k(f"s_lshl_b32 s30, s7, 11\ns_mul_i32 s31, s9, {7*KB}\ns_add_u32 s31, s31, s30\ns_add_u32 s31, s31, {UVB}")
    for i in range(2):
        k(f"s_add_u32 m0, s30, {UVL + i*KB}"); sadd(27, 31, i*KB); k.dma(2, W, 's27', 'uv', fl=SC)
    def wdc(j):
        for i in range(4):
            k(f"s_add_u32 m0, s29, {WSL[j]*16*KB + i*KB}"); sadd(27, 32, (4*j+i)*KB); thr(); k.dma(2, W, 's27', 'wc')
    for b in range(5):
        k.vm.wait(*[['uv'], ['u6', 'u7'], ['u8', 'u9'], ['u10', 'u11'], ['u12', 'u13']][b])
        k("s_barrier")
        for u in {0: [9, 11], 1: [10, 12, 13]}.get(b, []): unit_dma(u)
        if b >= 2: wdc(2*b-4); wdc(2*b-3)
    k("p4_J:")
    arrive(3, 5); k.vm.q = []; k.stamp()
    k("s_cmp_ge_u32 s4, 4\ns_cbranch_scc1 p5_a"); sadd(28, 42, 24*KB); loads(240, 28, 4, 'wd')
    k("s_lshl_b32 s27, s4, 12\nv_add_u32 v16, s27, v2\nv_add_u32 v17, s27, v14\nv_add_u32 v18, s27, v15")
    for i in range(24):
        o = WSL[i//4]*16*KB + (i % 4)*KB; k.dsr(vr(144+4*i,4), 16 + (o >> 16), o & 0xffff)
    k.lg.all(); k("p5_a:"); k.vm.q = []
    k(f"""s_and_b32 s28, s25, -2
    s_mul_i32 s28, s28, {112*KB}
    s_mul_i32 s27, s4, {14*KB}
    s_add_u32 s28, s28, s27
    s_add_u32 s28, s28, {HF}
    s_add_u32 s29, s28, {112*KB}
    s_add_u32 s39, s39, {MOD+10240}""")
    poll(row16(3, 51)); k.stamp()
    AR, WR, AC = 80, 144, 16
    def act(s):
        if s % 4 == 0: sadd(30, 28, s*KB); sadd(31, 29, s*KB)
        for th in range(2): k.bload(vr(AR+8*(s % 8)+4*th,4), 2, W, f's{30+th}', (s % 4)*KB, f'a{s}', fl=SC)
    for s in range(8): act(s)
    for s in range(14):
        k.vm.wait(f'a{s}')
        for th in range(2):
            for nt in range(2):
                d = vr(AC+32*th+16*nt,16); k.mfma32(d, vr(WR+8*s+4*nt,4), vr(AR+8*(s % 8)+4*th,4), '0' if s == 0 else d)
        if s+8 < 14: act(s+8)
        if s == 6:
            for e in range(2): k.bload(vr(WR+4*e,4), 12, W, 's39', e*32, 'gb')
    k.stamp()
    k("""s_lshl_b32 s28, s4, 11
    v_add_u32 v13, s28, v2
    v_add_u32 v14, s28, v14
    s_lshl_b32 s28, s4, 14
    v_add_u32 v15, s28, v2
    s_nop 6""")
    for th in range(2):
        for q in range(4):
            for e in range(2):
                o = (2*q+th)*16384 + e*1024
                k.dsw(13 + (o >> 16), vr(AC+32*th+8*q+4*e,4), o & 0xffff)
    k.lg.all(); k("s_barrier")
    for w in range(8):
        for e in range(2): k.dsr(vr(AC+8*w+4*e,4), 15, w*2048 + e*1024, f'r{w}')
    for w in range(1, 8):
        k.lg.wait(f'r{w}')
        for r in range(8): k(f"v_add_f32 v{AC+r}, v{AC+r}, v{AC+8*w+r}")
    k.vm.wait('gb')
    for r in range(4):
        k(f"""v_lshlrev_b32 v32, 16, v{8+r}
        v_and_b32 v33, 0xffff0000, v{8+r}
        v_fma_f32 v32, v{AC+2*r}, v{WR+2*r}, v32
        v_fma_f32 v33, v{AC+2*r+1}, v{WR+2*r+1}, v33
        v_cvt_pk_bf16_f32 v{8+r}, v32, v33""")
    k("s_nop 1\nv_permlane32_swap_b32 v8, v10\nv_permlane32_swap_b32 v9, v11")
    k.bstore(vr(8,4), 7, 20, 's43', 0)
    k.stamp_end(1)
```

```python
from lib import *
from ka import ka
from kb import kb
a, b = ka(), kb()
e = Kern("nop_kernel", 256, 256, 0, 8); e("s_endpgm")
emit([a, b], 'd_abab.s', [a, b, a, b])
emit([a, b], 'd_aab.s', [a, a, b])
emit([a, b, e], 'd_nab.s', [e, a, b])
```

```python
from lib import *
LOG2E = 0x3fb8aa3b
def lane_setup(k):
    k("""v_and_b32 v1, 63, v0
    v_lshrrev_b32 v4, 6, v0
    v_and_b32 v2, 15, v0
    v_readfirstlane_b32 s4, v4
    v_bfe_u32 v3, v0, 4, 2""")

def gemv_tile(k, wsrd, stride, scol, bfrag, pre, LB=0, end=None):
    k(f"""v_lshrrev_b32 v5, 1, v1
    v_mul_u32_u24 v5, {stride}, v5
    v_and_b32 v6, 1, v1
    v_lshl_add_u32 v5, v6, 4, v5
    s_mul_i32 s5, s4, {128*stride}
    s_add_u32 s5, s5, s{scol}
    s_lshl_b32 s6, s4, 12
    s_add_u32 s6, s6, {LB}""")
    k("s_waitcnt lgkmcnt(0)")
    pre()
    for p in range(4):
        k(f"s_add_u32 m0, s6, {p*1024}\ns_add_u32 s7, s5, {p*32*stride}")
        k.dma(5, wsrd, 's7', 'w')
    bfrag()
    k("""v_lshrrev_b32 v6, 2, v2
    v_lshl_add_u32 v6, v3, 3, v6
    v_lshlrev_b32 v6, 5, v6
    v_and_b32 v7, 3, v2
    v_lshl_add_u32 v6, v7, 3, v6
    v_add_u32 v6, s6, v6""")
    k.vm.wait('w')
    for s in range(4):
        for h in range(2): k.trd(vr(44+4*s+2*h, 2), 6, s*1024 + h*128)
    k.lg.all()
    for s in range(4): k.mfma16(vr(40,4), vr(44+4*s,4), vr(16+4*s,4), '0' if s == 0 else vr(40,4))
    k(f"v_lshlrev_b32 v7, 4, v0\nv_add_u32 v7, {LB}, v7\ns_nop 7\ns_nop 1")
    k.dsw(7, vr(40,4), 16384); k.lg.all()
    k("s_barrier\ns_cmp_lg_u32 s4, 0\ns_cbranch_scc1 " + (end or k.name + "_end"))
    for w in range(1, 4): k.dsr(vr(40+4*w,4), 7, 16384 + w*1024)
    k.lg.all()
    for w in range(1, 4):
        for r in range(4): k(f"v_add_f32 v{40+r}, v{40+r}, v{40+4*w+r}")

def k0():
    k = Kern("p0_kernel", 320, 256, 20480, 64)
    k("s_cmp_ge_u32 s2, 320\ns_cbranch_scc1 p0_kernel_end")
    k.srds(dict(wmod=8, c=12, ws=16, x=20))
    lane_setup(k)
    k("s_cmp_ge_u32 s2, 192\ns_cbranch_scc1 p0_ln")
    k("s_and_b32 s24, s2, 7\ns_mul_i32 s24, s24, 24\ns_lshr_b32 s25, s2, 3\ns_add_u32 s24, s24, s25\ns_lshl_b32 s25, s24, 5")
    def pre():
        k("v_lshlrev_b32 v8, 4, v3\ns_lshl_b32 s26, s4, 8")
        for s in range(4): k.bload(vr(16+4*s,4), 8, 12, 's26', s*64, 'c')
    def bfrag():
        k.vm.wait('c')
        k(f"s_mov_b32 s27, 0x{LOG2E ^ 0x80000000:x}")
        for r in range(16):
            k(f"""v_lshlrev_b32 v32, 16, v{16+r}
            v_and_b32 v33, 0xffff0000, v{16+r}
            v_mul_f32 v34, s27, v32
            v_mul_f32 v35, s27, v33
            v_exp_f32 v34, v34
            v_exp_f32 v35, v35
            s_nop 0
            v_add_f32 v34, 1.0, v34
            v_add_f32 v35, 1.0, v35
            v_rcp_f32 v34, v34
            v_rcp_f32 v35, v35
            s_nop 0
            v_mul_f32 v34, v34, v32
            v_mul_f32 v35, v35, v33
            v_cvt_pk_bf16_f32 v{16+r}, v34, v35""")
    gemv_tile(k, 8, 6144, 25, bfrag, pre)
    for r in range(4): k.bfround(40+r)
    k("s_lshr_b32 s26, s24, 5\ns_cmp_eq_u32 s26, 1\ns_cselect_b32 s27, 1.0, 0\ns_cmp_eq_u32 s26, 4\ns_cselect_b32 s27, 1.0, s27")
    for r in range(4):
        k(f"v_add_f32 v{40+r}, s27, v{40+r}"); k.bfround(40+r)
    k("v_lshlrev_b32 v8, 4, v3\ns_lshl_b32 s26, s24, 6\nv_cmp_eq_u32 vcc, 0, v2\ns_and_saveexec_b64 s[28:29], vcc")
    k.bstore(vr(40,4), 8, 16, 's26', MOD)
    k("s_endpgm")
    k("p0_ln:\ns_sub_u32 s24, s2, 192")
    k("""v_lshlrev_b32 v5, 10, v2
    v_lshl_add_u32 v5, v3, 4, v5
    s_lshl_b32 s25, s24, 14
    s_lshl_b32 s26, s4, 8
    s_add_u32 s25, s25, s26
    s_waitcnt lgkmcnt(0)""")
    for s in range(4): k.bload(vr(8+4*s,4), 5, 20, 's25', s*64, 'x')
    k("v_mov_b32 v56, 0\nv_mov_b32 v57, 0")
    k.vm.all()
    for r in range(16):
        k(f"v_lshlrev_b32 v{24+2*r}, 16, v{8+r}\nv_and_b32 v{25+2*r}, 0xffff0000, v{8+r}")
    for r in range(32):
        k(f"v_add_f32 v56, v56, v{24+r}\nv_fmac_f32 v57, v{24+r}, v{24+r}")
    k.xsum(56, 58); k.xsum(57, 58)
    k("v_lshlrev_b32 v6, 3, v2\ns_lshl_b32 s26, s4, 7\nv_add_u32 v7, s26, v6")
    k.dsw(7, vr(56,2), 0, w=64); k.lg.all()
    k("s_barrier")
    for w in range(4): k.dsr(vr(8+2*w,2), 6, w*128, w=64)
    k.lg.all()
    k("""v_add_f32 v8, v8, v10
    v_add_f32 v12, v12, v14
    v_add_f32 v9, v9, v11
    v_add_f32 v13, v13, v15
    v_add_f32 v8, v8, v12
    v_add_f32 v9, v9, v13""")
    ln_scalars(k, 8, 9, 10)
    for r in range(32):
        k(f"v_sub_f32 v{24+r}, v{24+r}, v8")
    for r in range(16):
        k(f"v_cvt_pk_bf16_f32 v10, v{24+2*r}, v{25+2*r}\nv_lshlrev_b32 v11, 16, v10\nv_and_b32 v10, 0xffff0000, v10")
        k(f"v_mul_f32 v11, v11, v9\nv_mul_f32 v10, v10, v9\nv_cvt_pk_bf16_f32 v{24+r}, v11, v10")
    k(f"v_lshlrev_b32 v5, 4, v1\ns_lshl_b32 s25, s24, 14\ns_lshl_b32 s26, s4, 12\ns_add_u32 s25, s25, s26\ns_add_u32 s25, s25, {XN}")
    for s in range(4): k.bstore(vr(24+4*s,4), 5, 16, 's25', s*1024)
    k("p0_kernel_end:\ns_endpgm")
    return k

def ln_scalars(k, a, b, t, keep=None):
    k(f"""v_mul_f32 v{a}, 0x3b000000, v{a}
    v_mul_f32 v{t}, v{a}, v{a}
    v_mul_f32 v{b}, 0x3b000000, v{b}
    v_sub_f32 v{b}, v{b}, v{t}
    v_max_f32 v{b}, 0, v{b}""")
    k.bfround(a); k.bfround(b)
    k(f"v_add_f32 v{b}, 0x3727c5ac, v{b}"); k.bfround(b)
    k(f"v_sqrt_f32 v{b}, v{b}\ns_nop 0"); k.bfround(b)
    if keep: k(f"v_mov_b32 v{keep}, v{b}")
    k(f"v_rcp_f32 v{b}, v{b}\ns_nop 0")

def k1(rbx=4):
    k = Kern("p1_kernel", 256, 256, 98304+4096, 256, 0)
    k("s_cmp_ge_u32 s2, 256\ns_cbranch_scc1 p1_kernel_end")
    k.stamp()
    k.srds(dict(wqkv=8, ws=12))
    lane_setup(k)
    map16(k, rbx)
    XR, AC, WF, MS, HB = 16, 144, 192, 216, 232
    k("""v_lshrrev_b32 v5, 2, v1
    v_and_b32 v6, 3, v1
    v_bfe_u32 v7, v1, 5, 1
    v_lshlrev_b32 v7, 1, v7
    v_xor_b32 v6, v6, v7
    v_mul_u32_u24 v5, 3072, v5
    v_lshl_add_u32 v5, v6, 4, v5
    v_lshlrev_b32 v6, 4, v1""")
    k(f"""s_mul_i32 s22, s4, {32*3072}
    s_lshl_b32 s23, s21, 6
    s_add_u32 s22, s22, s23
    s_lshl_b32 s23, s4, 11
    s_lshl_b32 s24, s20, 17
    s_lshl_b32 s25, s4, 15
    s_add_u32 s24, s24, s25
    s_add_u32 s24, s24, {XN}
    s_lshl_b32 s26, s4, 10
    s_add_u32 m0, s26, 98304
    s_waitcnt lgkmcnt(0)""")
    k.dma(6, 12, 's26', 'u0')
    for u in range(4):
        for p in range(3):
            for j in range(2):
                k(f"s_add_u32 m0, s23, {p*32768 + u*8192 + j*1024}\ns_add_u32 s27, s22, {(u*128+j*16)*3072 + p*1024}")
                k.dma(5, 8, 's27', f'u{u}')
        for t in range(2):
            k(f"s_add_u32 s27, s24, {t*16384 + u*4096}")
            for c in range(4): k.bload(vr(XR + t*64 + (4*u+c)*4, 4), 6, 12, 's27', c*1024, f'u{u}')
    k("""v_lshrrev_b32 v8, 2, v2
    v_lshl_add_u32 v8, v3, 3, v8
    v_lshlrev_b32 v8, 6, v8
    v_and_b32 v9, 1, v3
    v_lshl_add_u32 v8, v9, 5, v8
    v_and_b32 v9, 3, v2
    v_lshl_add_u32 v8, v9, 3, v8
    v_xor_b32 v9, 32, v8
    v_add_u32 v10, 0x10000, v8
    v_add_u32 v11, 0x10000, v9
    v_lshlrev_b32 v12, 5, v3
    v_add_u32 v12, 0x18000, v12""")
    def rd_mods(kc):
        for j in range(4): k.dsr(vr(MS+4*j,4), 12, kc*128 + (j//2)*2048 + (j%2)*16, f'm{kc}')
    def modulate(kc):
        th = []
        for t in range(2):
            for r in range(4):
                x = XR + t*64 + kc*4 + r; T = HB + 2*((t*4+r) % 4)
                th.append(f"v_lshlrev_b32 v{T}, 16, v{x}")
                th.append(f"v_and_b32 v{T+1}, 0xffff0000, v{x}")
                th.append(f"v_fma_f32 v{T}, v{T}, v{MS+8+2*r}, v{MS+2*r}")
                th.append(f"v_fma_f32 v{T+1}, v{T+1}, v{MS+9+2*r}, v{MS+1+2*r}")
                th.append(f"v_cvt_pk_bf16_f32 v{x}, v{T}, v{T+1}")
        return th
    def rd_w(kc, p, t):
        for h in range(2):
            k.trd(vr(WF + (p*2+t)*4 + 2*h, 2), (8 if p < 2 else 10) + t, (p % 2)*32768*(p < 2) + kc*2048 + h*256, f'w{kc}{p}{t}')
    k.stamp(); k.vm.wait('u0'); k.stamp(); k("s_barrier")
    rd_mods(0); k.lg.all()
    for x in modulate(0): k(x)
    for kc in range(16):
        if kc % 2 == 0: k.stamp()
        if kc % 4 == 3 and kc < 15:
            k.vm.wait(f'u{kc//4+1}'); k("s_barrier")
        if kc == 0:
            for p in range(3):
                for t in range(2): rd_w(0, p, t)
        if kc < 15: rd_mods(kc+1)
        fill = modulate(kc+1) if kc < 15 else []
        fi = 0
        for p in range(3):
            for t in range(2):
                k.lg.wait(f'w{kc}{p}{t}')
                for tk in range(2):
                    d = vr(AC + ((p*2+t)*2+tk)*4, 4); w = vr(WF+(p*2+t)*4, 4); h = vr(XR+tk*64+kc*4, 4)
                    c = '0' if kc == 0 else d
                    if p < 2: k.mfma16(d, w, h, c)
                    else: k.mfma16(d, h, w, c)
                    if fill and (p, t, tk) != (0, 0, 0):
                        if fi == 0: k.lg.wait(f'm{kc+1}')
                        for x in fill[fi:fi+4]: k(x)
                        fi += 4
                if kc < 15: rd_w(kc+1, p, t)
        k("s_nop 0")
    k(f"""v_lshlrev_b32 v5, 5, v2
    v_lshl_add_u32 v5, v3, 3, v5
    v_and_b32 v6, 1, v3
    v_lshlrev_b32 v6, 8, v6
    v_lshl_add_u32 v6, v2, 4, v6
    v_lshrrev_b32 v7, 1, v3
    v_lshl_add_u32 v6, v7, 3, v6
    s_lshl_b32 s22, s21, 17
    s_lshl_b32 s23, s20, 12
    s_add_u32 s22, s22, s23
    s_lshl_b32 s23, s4, 10
    s_add_u32 s22, s22, s23""")
    for p in range(3):
        for t in range(2):
            k(f"s_add_u32 s27, s22, {[Q,K,VT][p] + t*65536}")
            for tk in range(2):
                a = AC + ((p*2+t)*2+tk)*4
                k(f"v_cvt_pk_bf16_f32 v{a}, v{a}, v{a+1}\nv_cvt_pk_bf16_f32 v{a+1}, v{a+2}, v{a+3}")
                k.bstore(vr(a,2), 5 if p < 2 else 6, 12, 's27', tk*512, w=2)
    k.stamp_end(1)
    k("p1_kernel_end:\ns_endpgm")
    return k

def map16(k, rbx):
    cbx = 32//rbx; lr = rbx.bit_length()-1; ncg = 16//cbx
    lc = ncg.bit_length()-1
    k(f"""s_and_b32 s22, s2, 7
    s_lshr_b32 s23, s2, 3
    s_lshr_b32 s20, s22, {lc}
    s_lshl_b32 s20, s20, {lr}
    s_and_b32 s24, s23, {rbx-1}
    s_add_u32 s20, s20, s24
    s_and_b32 s21, s22, {ncg-1}
    s_mul_i32 s21, s21, {cbx}
    s_lshr_b32 s24, s23, {lr}
    s_add_u32 s21, s21, s24""")
```

```python
from lib import *
from k01 import lane_setup, gemv_tile, ln_scalars, LOG2E
NG, NL, NU, NQ, NO, ND = 192, 64, 112, 48, 16, 56
AF = ' sc1'
RR = 96*KB; LC = RR + 32*KB; LCN = RR + 62*KB
F0C, F0L = CNT + 4*32768, CNT + 5*32768
def spin(k, lab, vaddr, vtmp, srd, off=0):
    k(f"""s_mov_b32 s50, 0x40000
    {lab}:
    buffer_load_dword v{vtmp}, v{vaddr}, s[{srd}:{srd+3}], 0 offen offset:{off} sc1
    s_waitcnt vmcnt(0)
    v_cmp_eq_u32 vcc, 0, v{vtmp}
    s_cbranch_vccz {lab}e
    s_sleep 1
    s_sub_u32 s50, s50, 1
    s_cbranch_scc0 {lab}
    {lab}e:""")
def last_signal(k, cnt, flag, sidx, lab):
    k(f"""s_waitcnt vmcnt(0)
    s_mov_b64 exec, 1
    v_mov_b32 v8, {LCN + cnt*4}
    v_mov_b32 v9, 1
    ds_add_rtn_u32 v10, v8, v9
    v_mov_b32 v8, {flag}
    s_lshl_b32 s27, s{sidx}, 7
    s_waitcnt lgkmcnt(0)
    v_cmp_eq_u32 vcc, 3, v10
    s_cbranch_vccz {lab}
    buffer_store_dword v9, v8, s[16:19], s27 offen sc1
    {lab}:
    s_mov_b64 exec, -1
    s_branch p0_done""")
def phase0(k):
    k.srds(dict(ws=16, dbg=56))
    lane_setup(k)
    k("s_and_b32 s24, s2, 7\ns_lshl_b32 s24, s24, 3\ns_bfe_u32 s25, s2, 0x30003\ns_add_u32 s24, s24, s25\ns_and_b32 s25, s2, 0xc0\ns_add_u32 s24, s24, s25")
    k(f"s_cmp_ge_u32 s2, {NG}\ns_cselect_b32 s24, s2, s24\ns_cmp_ge_u32 s4, 4\ns_cbranch_scc1 pa_rl\ns_cmp_ge_u32 s2, {NG}\ns_cbranch_scc1 pa_ln")
    k.srds(dict(wmod=8, c=12))
    k("s_lshl_b32 s25, s24, 5")
    def pre():
        k("v_lshlrev_b32 v8, 4, v3\ns_lshl_b32 s26, s4, 8")
        for s in range(4): k.bload(vr(16+4*s,4), 8, 12, 's26', s*64, 'c')
    def bfrag():
        k.vm.wait('c')
        k(f"s_mov_b32 s27, 0x{LOG2E ^ 0x80000000:x}")
        for r in range(16):
            k(f"""v_lshlrev_b32 v32, 16, v{16+r}
            v_and_b32 v33, 0xffff0000, v{16+r}
            v_mul_f32 v34, s27, v32
            v_mul_f32 v35, s27, v33
            v_exp_f32 v34, v34
            v_exp_f32 v35, v35
            s_nop 0
            v_add_f32 v34, 1.0, v34
            v_add_f32 v35, 1.0, v35
            v_rcp_f32 v34, v34
            v_rcp_f32 v35, v35
            s_nop 0
            v_mul_f32 v34, v34, v32
            v_mul_f32 v35, v35, v33
            v_cvt_pk_bf16_f32 v{16+r}, v34, v35""")
    gemv_tile(k, 8, 6144, 25, bfrag, pre, LC, 'p0_done')
    for r in range(4): k.bfround(40+r)
    k("s_lshr_b32 s26, s24, 5\ns_cmp_eq_u32 s26, 1\ns_cselect_b32 s27, 1.0, 0\ns_cmp_eq_u32 s26, 4\ns_cselect_b32 s27, 1.0, s27")
    for r in range(4):
        k(f"v_add_f32 v{40+r}, s27, v{40+r}"); k.bfround(40+r)
    k("v_lshlrev_b32 v8, 4, v3\ns_lshl_b32 s26, s24, 6\nv_cmp_eq_u32 vcc, 0, v2\ns_and_saveexec_b64 s[28:29], vcc")
    k.bstore(vr(40,4), 8, 16, 's26', MOD, fl=' sc1')
    k(f"v_cvt_pk_bf16_f32 v44, v40, v41\nv_cvt_pk_bf16_f32 v45, v42, v43\nv_lshlrev_b32 v8, 3, v3\ns_lshl_b32 s26, s24, 5\ns_add_u32 s26, s26, {MODH}")
    k.bstore(vr(44,2), 8, 16, 's26', 0, w=2, fl=AF)
    k(f"v_mov_b32 v9, 1\nv_mov_b32 v8, {F0C}\ns_lshl_b32 s27, s24, 7\ns_mov_b64 exec, 1\ns_waitcnt vmcnt(0)\nbuffer_store_dword v9, v8, s[16:19], s27 offen sc1\ns_mov_b64 exec, -1\ns_branch p0_done")
    k(f"pa_ln:\ns_sub_u32 s24, s2, {NG}")
    k.vm.q = []; k.lg.q = []
    k.srds(dict(x=20))
    k("""v_and_b32 v2, 31, v1
    v_lshrrev_b32 v3, 5, v1
    v_lshlrev_b32 v5, 10, v2
    v_lshl_add_u32 v5, v3, 4, v5
    s_lshl_b32 s25, s24, 15
    s_lshl_b32 s26, s4, 8
    s_add_u32 s25, s25, s26
    s_waitcnt lgkmcnt(0)""")
    X = 64
    for s in range(8): k.bload(vr(X+4*s,4), 5, 20, 's25', s*32, 'x')
    k("v_mov_b32 v56, 0\nv_mov_b32 v57, 0")
    k.vm.all()
    for r in range(32):
        k(f"v_lshlrev_b32 v8, 16, v{X+r}\nv_and_b32 v9, 0xffff0000, v{X+r}\nv_add_f32 v56, v56, v8\nv_fmac_f32 v57, v8, v8\nv_add_f32 v56, v56, v9\nv_fmac_f32 v57, v9, v9")
    k(f"v_lshlrev_b32 v6, 3, v2\nv_lshlrev_b32 v7, 3, v0\nv_add_u32 v6, {LC}, v6\nv_add_u32 v7, {LC}, v7")
    k.dsw(7, vr(56,2), 0, w=64); k.lg.all()
    k("s_barrier")
    for w in range(8): k.dsr(vr(8+2*w,2), 6, w*256, w=64)
    k.lg.all()
    for w in range(1, 8): k(f"v_add_f32 v8, v8, v{8+2*w}\nv_add_f32 v9, v9, v{9+2*w}")
    ln_scalars(k, 8, 9, 10)
    for r in range(32):
        k(f"""v_lshlrev_b32 v10, 16, v{X+r}
        v_and_b32 v11, 0xffff0000, v{X+r}
        v_sub_f32 v10, v10, v8
        v_sub_f32 v11, v11, v8
        v_cvt_pk_bf16_f32 v10, v10, v11
        v_and_b32 v11, 0xffff0000, v10
        v_lshlrev_b32 v10, 16, v10
        v_mul_f32 v10, v10, v9
        v_mul_f32 v11, v11, v9
        v_cvt_pk_bf16_f32 v{X+r}, v10, v11""")
    k(f"v_lshlrev_b32 v6, 4, v1\ns_lshl_b32 s25, s24, 15\ns_lshl_b32 s27, s4, 13\ns_add_u32 s25, s25, s27\ns_add_u32 s25, s25, {H1}\ns_add_u32 s27, s25, 4096")
    k(f"v_mov_b32 v60, 0"); spin(k, "pa_g1", 60, 61, 56, 128)
    k(f"v_and_b32 v60, 7, v1\nv_bfe_u32 v61, v1, 3, 1\nv_lshl_add_u32 v60, v61, 5, v60\ns_lshl_b32 s26, s4, 3\nv_add_u32 v60, s26, v60\nv_lshlrev_b32 v60, 7, v60\nv_add_u32 v60, {F0C}, v60")
    spin(k, "pa_w1", 60, 61, 16)
    k("v_lshlrev_b32 v5, 4, v2\nv_lshl_add_u32 v5, v3, 11, v5\ns_lshl_b32 s26, s4, 9")
    k.bload(vr(8,4), 5, 16, 's26', MOD, 'm', fl=' sc1')
    k(f"v_lshlrev_b32 v7, 4, v0\nv_add_u32 v7, {LC}, v7\ns_lshl_b32 s26, s4, 10\ns_add_u32 s26, s26, {LC}\nv_lshlrev_b32 v5, 5, v3\nv_add_u32 v5, s26, v5")
    k.vm.all(); k.dsw(7, vr(8,4), 4096); k.lg.all()
    def ldm(s):
        for j in range(4): k.dsr(vr(8+16*(s%3)+4*j,4), 5, 4096 + (j//2)*512 + s*64 + (j%2)*16, f'm{s}')
    ldm(0); ldm(1)
    for s in range(8):
        if s+2 < 8: ldm(s+2)
        k.lg.wait(f'm{s}'); M = 8+16*(s%3)
        for r in range(4):
            k(f"""v_lshlrev_b32 v56, 16, v{X+4*s+r}
            v_and_b32 v57, 0xffff0000, v{X+4*s+r}
            v_pk_fma_f32 v[56:57], v[56:57], v[{M+8+2*r}:{M+9+2*r}], v[{M+2*r}:{M+1+2*r}]
            v_cvt_pk_bf16_f32 v{X+4*s+r}, v56, v57""")
        k.bstore(vr(X+4*s,4), 6, 16, 's25' if s < 4 else 's27', (s%4)*1024, fl=AF)
    last_signal(k, 0, F0C, 2, "pa_s1")
    k.vm.q = []; k.lg.q = []
    k("pa_rl:\ns_cmp_lg_u32 s4, 7\ns_cbranch_scc1 pa_z1")
    k(f"""s_lshl_b32 s24, s24, 7
    s_lshl_b32 s25, s2, 7
    s_mov_b64 exec, 0x3f
    v_mov_b32 v8, s25
    v_writelane_b32 v8, s24, 4
    v_lshl_add_u32 v8, v1, 15, v8
    v_add_u32 v8, {CNT}, v8
    v_mov_b32 v9, 0
    v_mov_b32 v10, 0
    v_mov_b32 v11, {LCN}
    ds_write_b64 v11, v[9:10]
    s_waitcnt lgkmcnt(0)
    buffer_store_dword v9, v8, s[16:19], 0 offen sc1
    s_mov_b64 exec, 1
    v_mov_b32 v10, 1
    s_waitcnt vmcnt(0)
    buffer_atomic_add v10, v9, s[56:59], 0 offen sc0 sc1
    s_mov_b64 exec, -1
    pa_z1:
    s_sub_u32 s20, s2, 64
    s_and_b32 s20, s20, 255
    s_lshl_b32 s20, s20, 2
    s_and_b32 s7, s4, 3
    s_add_u32 s20, s20, s7
    s_mov_b32 s30, 0
    s_mov_b32 s38, s20
    s_cmp_lt_u32 s20, {4*NQ}
    s_cbranch_scc1 pa_r0""".replace("v[9:10]", "v[12:13]").replace("    v_mov_b32 v11,", "    v_mov_b32 v12, 0\n    v_mov_b32 v13, 0\n    v_mov_b32 v11,"))
    def go():
        u = k.uid()
        k(f"""s_cmp_lg_u32 s4, 7
        s_cbranch_scc1 pa_q{u}
        s_waitcnt vmcnt(0)
        v_readfirstlane_b32 s39, v10
        s_cmp_lg_u32 s39, 255
        s_cbranch_scc1 pa_q{u}
        s_mov_b64 exec, 1
        buffer_store_dword v10, v9, s[56:59], 0 offen offset:128 sc1
        s_mov_b64 exec, -1
        pa_q{u}:""")
    k("s_barrier"); go()
    k(f"s_cmp_ge_u32 s20, {4*(NQ+NU+NO+ND)}\ns_cbranch_scc1 pa_fin\ns_branch pa_r1\npa_r0:")
    k.srds(dict(wqkv=8)); k.srds(dict(wqkv=12))
    k(f"""s_and_b32 s21, s20, 31
    s_lshr_b32 s22, s20, 5
    s_lshl_b32 s24, s22, 9
    s_mov_b32 s26, 3072
    s_and_b32 s23, s22, 1
    s_mul_i32 s27, s23, {8*96*KB}
    s_lshr_b32 s23, s22, 1
    s_lshl_b32 s23, s23, 15
    s_add_u32 s27, s27, s23
    s_lshl_b32 s23, s21, 10
    s_add_u32 s27, s27, s23
    s_add_u32 s27, s27, {WQ}
    s_mov_b32 s28, {192*KB}
    s_mov_b32 s37, {96*KB}
    s_mov_b32 s29, 0
    s_add_u32 s25, s24, 256
    s_branch pa_go
    pa_r1:
    s_sub_u32 s20, s20, {4*NQ}
    s_cmp_ge_u32 s20, {4*NU}
    s_cbranch_scc1 pa_r2""")
    k.srds(dict(wg=8, wu=12))
    k(f"""s_and_b32 s21, s20, 31
    s_lshr_b32 s22, s20, 5
    s_lshl_b32 s24, s22, 8
    s_mov_b32 s25, s24
    s_mov_b32 s26, 3584
    s_mul_i32 s27, s22, {8*32*KB}
    s_lshl_b32 s23, s21, 10
    s_add_u32 s27, s27, s23
    s_add_u32 s27, s27, {WGU}
    s_mov_b32 s28, {64*KB}
    s_mov_b32 s37, {32*KB}
    s_mov_b32 s29, 0
    s_mov_b32 s30, 1
    s_branch pa_go
    pa_r2:
    s_sub_u32 s20, s20, {4*NU}
    s_mov_b32 s26, 1024
    s_mov_b32 s37, 1024
    s_mov_b32 s29, 1
    s_cmp_ge_u32 s20, {4*NO}
    s_cbranch_scc1 pa_r3""")
    k.srds(dict(wo=8)); k.srds(dict(wo=12))
    k(f"s_mov_b32 s28, {64*KB}\ns_mov_b32 s27, {WO}\ns_branch pa_r4\npa_r3:\ns_sub_u32 s20, s20, {4*NO}")
    k.srds(dict(wd=8)); k.srds(dict(wd=12))
    k(f"""s_mov_b32 s28, {224*KB}
    s_mov_b32 s27, {WD}
    pa_r4:
    s_lshr_b32 s21, s20, 1
    s_and_b32 s22, s20, 1
    s_lshl_b32 s24, s22, 9
    s_add_u32 s25, s24, 256
    s_lshl_b32 s23, s22, 2
    s_mul_i32 s23, s23, s28
    s_add_u32 s27, s27, s23
    s_lshl_b32 s23, s21, 11
    s_add_u32 s27, s27, s23
    pa_go:""")
    k("""s_lshl_b32 s31, s26, 4
    s_mul_i32 s31, s31, s21
    s_add_u32 s24, s24, s31
    s_add_u32 s25, s25, s31
    s_lshl_b32 s31, s26, 2
    v_mul_lo_u32 v5, v3, s26
    v_lshl_add_u32 v5, v2, 4, v5
    s_lshl_b32 s6, s7, 13
    s_add_u32 s6, s6, 0x18000
    s_waitcnt lgkmcnt(0)""")
    for p in range(4):
        for hf in range(2):
            k(f"s_add_u32 m0, s6, {hf*4096 + p*1024}\ns_nop 0")
            k.dma(5, 8+4*hf, f's{24+hf}', 'w')
        if p < 3: k("s_add_u32 s24, s24, s31\ns_add_u32 s25, s25, s31")
    k("""v_lshrrev_b32 v6, 1, v3
    s_sub_u32 s22, 3, s29
    v_lshlrev_b32 v6, s22, v6
    v_lshrrev_b32 v7, 2, v2
    v_add_u32 v6, v6, v7
    v_lshlrev_b32 v6, 8, v6
    v_and_b32 v7, 3, v2
    v_lshl_add_u32 v6, v7, 3, v6
    v_and_b32 v7, 1, v3
    s_cmp_eq_u32 s30, 1
    s_cselect_b32 s22, 12, 5
    v_lshl_add_u32 v6, v7, s22, v6
    v_add_u32 v6, s6, v6
    s_lshl_b32 s22, 0x400, s29
    v_add_u32 v7, s22, v6
    v_lshlrev_b32 v8, 4, v1
    s_cmp_ge_u32 s38, 192
    s_cbranch_scc1 pa_ng""")
    go(); k("pa_ng:\ns_cmp_eq_u32 s30, 1")
    k.vm.all()
    k("s_cbranch_scc1 pa_tg")
    for gu in range(2):
        for c in range(8):
            o = c*32 if gu else (c//4)*4096 + (c % 4)*64
            k.trd(vr(64+4*c,2), 6, o); k.trd(vr(66+4*c,2), 7, o)
        k("s_branch pa_tj\npa_tg:" if gu == 0 else "pa_tj:")
    k.lg.all()
    for c in range(8):
        if c % 2: k("s_add_u32 s22, s27, s37\ns_add_u32 s27, s27, s28")
        k.bstore(vr(64+4*c,4), 8, 16, 's22' if c % 2 else 's27', 0, fl=AF)
    k(f"s_cmp_ge_u32 s38, {4*NQ}\ns_cbranch_scc1 pa_fin\ns_barrier\npa_fin:")
    last_signal(k, 1, F0L, 2, "pa_s2")
    k("p0_done:"); k.vm.q = []; k.lg.q = []
```

```python
from lib import *
from k01 import ln_scalars, LOG2E
import struct, math
def f2u(x): return struct.unpack('<I', struct.pack('<f', x))[0]
SC = ' sc1'
RR = 96*KB
def kb():
    k = Kern(NAME + "_kernel", 256, 512, 163840, 256)
    W = 12
    def run(x): k(x) if isinstance(x, str) else x()
    def sadd(d, b, imm): k(f"s_add_u32 s{d}, s{b}, {imm}")
    def arrive(ph, sidx):
        k.vm.all(); k("s_barrier")
        lab = f"arr{k.uid()}"
        k(f"s_cmp_lg_u32 s4, 0\ns_cbranch_scc1 {lab}\ns_mov_b64 exec, 1\nv_mov_b32 v5, {CNT + ph*32768}\nv_mov_b32 v6, 1")
        k(f"buffer_store_dword v6, v5, s[{W}:{W+3}], s{sidx} offen sc1\ns_mov_b64 exec, -1\n{lab}:")
    def poll(addr):
        lab = f"pol{k.uid()}"
        k(f"s_cmp_lg_u32 s4, 3\ns_cbranch_scc1 {lab}e\ns_mov_b32 s50, 0x40000")
        k(addr)
        k(f"""{lab}:
        buffer_load_dword v6, v5, s[{W}:{W+3}], 0 offen sc1
        s_waitcnt vmcnt(0)
        v_cmp_eq_u32 vcc, 0, v6
        s_cbranch_vccz {lab}e
        s_sub_u32 s50, s50, 1
        s_cbranch_scc0 {lab}
        {lab}e:
        s_barrier""")
    def row16(ph, srow):
        return f"s_lshl_b32 s27, s{srow}, 11\ns_add_u32 s27, s27, {CNT + ph*32768}\nv_and_b32 v5, 15, v1\nv_lshlrev_b32 v5, 7, v5\nv_add_u32 v5, s27, v5"
    k("s_cmp_ge_u32 s2, 256\ns_cbranch_scc1 pb_kernel_end")
    k.stamp()
    from ka import phase0, spin, F0C, F0L
    phase0(k); k.stamp()
    k.srds(dict(ws=W, x=16, out=20))
    k("""v_and_b32 v1, 63, v0
    v_lshrrev_b32 v4, 6, v0
    v_lshlrev_b32 v2, 4, v1
    v_readfirstlane_b32 s4, v4
    v_and_b32 v3, 31, v0
    v_bfe_u32 v4, v0, 5, 1
    s_and_b32 s7, s4, 3""")
    def tmap(nr, R, sr_, sc_):
        lr = R.bit_length()-1; ng = nr//R; lg_ = ng.bit_length()-1
        k(f"""s_and_b32 s27, s2, {ng-1}
        s_lshl_b32 s{sr_}, s27, {lr}
        s_bfe_u32 s27, s2, {(lr << 16) | 3}
        s_add_u32 s{sr_}, s{sr_}, s27
        s_bfe_u32 s27, s2, {((3-lg_) << 16) | lg_}
        s_lshl_b32 s{sc_}, s27, {5-lr}
        s_lshr_b32 s27, s2, {3+lr}
        s_add_u32 s{sc_}, s{sc_}, s27""")
    tmap(16, int(os.environ.get('R1', 8)), 8, 9); tmap(32, int(os.environ.get('R3', 8)), 10, 11); tmap(16, int(os.environ.get('R4', 8)), 44, 45)
    k("s_lshl_b32 s46, s44, 2\ns_add_u32 s46, s46, s7\ns_lshl_b32 s47, s44, 4\ns_add_u32 s47, s47, s45\ns_lshl_b32 s47, s47, 7")
    k(f"""s_lshl_b32 s24, s8, 2
    s_add_u32 s24, s24, s7
    s_lshl_b32 s25, s10, 1
    s_and_b32 s27, s4, 1
    s_add_u32 s25, s25, s27
    s_lshr_b32 s26, s4, 1
    s_lshl_b32 s5, s8, 4
    s_add_u32 s5, s5, s9
    s_lshl_b32 s5, s5, 7
    s_lshl_b32 s6, s10, 3
    s_add_u32 s6, s6, s11
    s_lshl_b32 s6, s6, 7
    s_lshr_b32 s51, s10, 1
    s_lshr_b32 s34, s5, 8
    s_bitcmp1_b32 s5, 7
    s_cselect_b32 s34, 127, s34
    s_lshl_b32 s40, s11, 16
    s_lshl_b32 s27, s26, 14
    s_add_u32 s40, s40, s27
    s_add_u32 s40, s40, {WO}
    s_mul_i32 s41, s45, {224*KB}
    s_add_u32 s41, s41, {WGU}
    s_mul_i32 s42, s11, {224*KB}
    s_mul_i32 s27, s4, {28*KB}
    s_add_u32 s42, s42, s27
    s_add_u32 s42, s42, {WD}
    v_add_u32 v14, 0x10000, v2
    v_add_u32 v15, 0x20000, v2
    s_waitcnt lgkmcnt(0)
    s_cmp_lg_u32 s4, 3
    s_cbranch_scc1 p1_g
    v_mov_b32 v5, 0""")
    spin(k, "p1_go", 5, 6, 56, 128); k("p1_g:")
    poll(f"""v_min_u32 v5, 23, v1
    v_lshrrev_b32 v6, 3, v5
    v_and_b32 v5, 7, v5
    v_lshl_add_u32 v5, v6, 4, v5
    s_and_b32 s27, s9, 8
    s_add_u32 s27, s27, {64 + 256}
    v_add_u32 v5, s27, v5
    v_and_b32 v6, 3, v1
    s_lshl_b32 s27, s8, 2
    s_add_u32 s27, s27, 192
    v_add_u32 v6, s27, v6
    v_cmp_gt_u32 vcc, 32, v1
    s_nop 1
    v_cndmask_b32 v5, v6, v5, vcc
    v_lshlrev_b32 v5, 7, v5
    v_add_u32 v5, {F0C}, v5"""); k.stamp()
    k("s_cmp_ge_u32 s4, 4\ns_cbranch_scc1 p1_L")
    def ldsr(dst, off, tag):
        k.dsr(dst, [2, 14, 15][off >> 16], off & 0xffff, tag)
    def loads(dst, sbase, n, tag, fl=SC, step=1024, tags=None):
        for i in range(n):
            if (i*step) % 4096 == 0 or step > 1024: sadd(27, sbase, (i*step)//4096*4096 if step <= 1024 else i*step)
            k.bload(vr(dst+4*i,4), 2, W, 's27', (i*step) % 4096 if step <= 1024 else 0, tags(i) if tags else tag, fl=fl)
    def wo_loads(): loads(48, 40, 16, 'wo')
    from kb1 import p12
    p12(k, W, run, sadd, arrive, poll, ldsr, loads, wo_loads)
    XR, GA, A2, AC3, OFR = 8, 16, 24, 144, 112
    k(f"""v_lshlrev_b32 v7, 10, v3
    v_lshl_add_u32 v7, v4, 4, v7
    s_lshl_b32 s43, s25, 15
    s_lshl_b32 s27, s11, 7
    s_add_u32 s43, s43, s27
    s_lshl_b32 s27, s26, 5
    s_add_u32 s43, s43, s27
    v_lshlrev_b32 v12, 4, v4
    s_lshl_b32 s39, s11, 8
    s_lshl_b32 s27, s26, 6
    s_add_u32 s39, s39, s27
    s_add_u32 s28, s39, {MOD+4096}
    s_add_u32 s29, s39, {MOD+8192}""")
    k.bload(vr(XR,4), 7, 16, 's43', 0, 'e')
    for e in range(2):
        k.bload(vr(GA+4*e,4), 12, W, 's28', e*32, 'e', fl=SC); k.bload(vr(A2+4*e,4), 12, W, 's29', e*32, 'e', fl=SC)
    k("s_cmp_lt_u32 s4, 4\ns_cbranch_scc1 p3_a\ns_add_u32 s28, s42, 0x2000")
    loads(176, 28, 20, 'wd'); k("p3_a:"); k.vm.q = []
    k(f"s_lshl_b32 s28, s25, 15\ns_lshl_b32 s27, s26, 13\ns_add_u32 s28, s28, s27\ns_add_u32 s28, s28, {OF}")
    poll(row16(1, 51)); k.stamp()
    loads(OFR, 28, 8, None, fl=SC, tags=lambda i: f'o{i}')
    for s in range(8):
        k.vm.wait(f'o{s}')
        for nt in range(2):
            d = vr(AC3+16*nt,16); k.mfma32(d, vr(48+8*s+4*nt,4), vr(OFR+4*s,4), '0' if s == 0 else d)
    k(f"""s_and_b32 s27, s4, 1
    s_lshl_b32 s27, s27, 13
    s_lshl_b32 s28, s26, 11
    s_add_u32 s28, s28, s27
    s_add_u32 s28, s28, {RR}
    v_add_u32 v13, s28, v2
    s_lshl_b32 s28, s4, 13
    s_add_u32 s28, s28, {RR}
    v_permlane32_swap_b32 v{XR}, v{XR+2}
    v_permlane32_swap_b32 v{XR+1}, v{XR+3}
    s_nop 4""")
    for q in range(4):
        for e in range(2): k.dsw(13, vr(AC3+8*q+4*e,4), q*16384 + e*1024)
    k("v_add_u32 v13, s28, v2"); k.lg.all(); k("s_barrier")
    for q in range(4):
        for e in range(2): k.dsr(vr(AC3+8*q+4*e,4), 13, q*2048 + e*1024, f'r{q}')
    for q in range(1, 4):
        k.lg.wait(f'r{q}')
        for r in range(8): k(f"v_add_f32 v{AC3+r}, v{AC3+r}, v{AC3+8*q+r}")
    k("v_mov_b32 v36, 0\nv_mov_b32 v37, 0")
    for r in range(4):
        k(f"""v_lshlrev_b32 v32, 16, v{XR+r}
        v_and_b32 v33, 0xffff0000, v{XR+r}
        v_fma_f32 v32, v{AC3+2*r}, v{GA+2*r}, v32
        v_fma_f32 v33, v{AC3+2*r+1}, v{GA+2*r+1}, v33
        v_cvt_pk_bf16_f32 v{XR+r}, v32, v33
        v_lshlrev_b32 v32, 16, v{XR+r}
        v_and_b32 v33, 0xffff0000, v{XR+r}
        v_add_f32 v36, v36, v32
        v_fmac_f32 v37, v32, v32
        v_add_f32 v36, v36, v33
        v_fmac_f32 v37, v33, v33
        v_mul_f32 v32, v32, v{A2+2*r}
        v_mul_f32 v33, v33, v{A2+2*r+1}
        v_cvt_pk_bf16_f32 v{40+r}, v32, v33""")
    k(f"""s_lshl_b32 s28, s25, 15
    s_lshl_b32 s27, s11, 12
    s_add_u32 s28, s28, s27
    s_lshl_b32 s27, s26, 10
    s_add_u32 s28, s28, s27
    s_add_u32 s28, s28, {YF}
    v_permlane32_swap_b32 v40, v42
    v_permlane32_swap_b32 v41, v43""")
    k.bstore(vr(40,4), 2, W, 's28', 0, fl=SC)
    k.dsw(13, vr(36,2), 0, w=64); k.lg.all(); k("s_barrier")
    k(f"""s_cmp_ge_u32 s4, 2
    s_cbranch_scc1 p3_b""")
    for q in range(4): k.dsr(vr(32+2*q,2), 13, q*16384, w=64)
    k.lg.all()
    k(f"""v_add_f32 v32, v32, v34
    v_add_f32 v33, v33, v35
    v_add_f32 v36, v36, v38
    v_add_f32 v37, v37, v39
    v_add_f32 v32, v32, v36
    v_add_f32 v33, v33, v37
    v_mov_b32 v34, v32
    v_mov_b32 v35, v33
    s_lshl_b32 s28, s25, 11
    s_lshl_b32 s27, s11, 8
    v_permlane32_swap_b32 v34, v32
    v_permlane32_swap_b32 v35, v33
    s_add_u32 s28, s28, s27
    s_add_u32 s28, s28, {STB}
    v_add_f32 v32, v32, v34
    v_add_f32 v33, v33, v35
    v_lshlrev_b32 v34, 3, v3
    s_mov_b32 exec_hi, 0""")
    k.bstore(vr(32,2), 34, W, 's28', 0, w=2, fl=SC)
    k("s_mov_b32 exec_hi, -1")
    k("p3_b:")
    k.stamp()
    arrive(2, 6); k.vm.q = []
    from kb2 import p45
    p45(k, W, run, sadd, arrive, poll, ldsr, loads, row16)
    k("pb_kernel_end:\ns_endpgm")
    return k
```

```python
from lib import *
import struct, math
def f2u(x): return struct.unpack('<I', struct.pack('<f', x))[0]
SC = ' sc1'
RR = 96*KB
LK, LV, LQ, LU, LM, L1 = RR, RR+24*KB, RR+48*KB, RR+56*KB, RR+58*KB, RR+63*KB
def p12(k, W, run, sadd, arrive, poll, ldsr, loads, wo_loads):
    def ldsw(src, off, base):
        k.dsw(base + (off >> 16) - 1, src, off & 0xffff)
    k(f"s_lshl_b32 s28, s24, 15\ns_add_u32 s28, s28, {H1}")
    def hld(i):
        if i % 4 == 0: sadd(29, 28, i*KB)
        k.bload(vr(128+4*i,4), 2, W, 's29', (i % 4)*KB, f'h{i}', fl=SC)
    HP, NF, PF, MS = int(os.environ.get('HP', 20)), 8, 6, 96
    for i in range(HP): hld(i)
    seq = [(p, kc) for kc in range(32) for p in (1, 2)] + [(0, kc) for kc in range(32)]
    def rd(i): p, kc = seq[i]; ldsr(vr(64+4*(i % NF),4), p*32*KB + kc*KB, f'w{i}')
    k(f"""s_lshl_b32 s30, s9, 17
    s_lshl_b32 s27, s24, 10
    s_add_u32 s31, s30, s27
    s_add_u32 s30, s31, s27
    s_add_u32 s31, s31, {KF}
    s_add_u32 s30, s30, {VF}
    s_add_u32 s32, s31, 0x10000
    s_lshl_b32 s27, s7, 10
    v_add_u32 v8, s27, v14
    v_add_u32 v9, s27, v15
    v_add_u32 v10, s27, v8
    v_add_u32 v11, s27, v9
    s_mov_b32 s33, 0x{f2u(0.25*math.log2(math.e)):x}""")
    def kvepi():
        th = []
        for p in (1, 2):
            for r in range(8): th.append(f"v_cvt_pk_bf16_f32 v{MS+8*(p-1)+r}, v{16*p+2*r}, v{16*p+2*r+1}")
            for hh in range(2):
                src = vr(MS+8*(p-1)+4*hh,4)
                if p == 1:
                    th.append(lambda src=src, hh=hh: k.bstore(src, 2, W, f's{31+hh}', 0, fl=SC))
                    th.append(lambda src=src, hh=hh: ldsw(src, LK + (hh*12+8)*KB, 8))
                else:
                    th.append(lambda src=src, hh=hh: k.bstore(src, 2, W, 's30', hh*KB, fl=SC))
                    th.append(lambda src=src, hh=hh: ldsw(src, LV + (16+hh)*KB, 10))
        return th
    k("s_barrier")
    for q in range(PF): rd(q)
    fill = []
    for i, (p, kc) in enumerate(seq):
        if (i+PF) in (16, 32, 48, 64): k("s_barrier")
        if i+PF < 96: rd(i+PF)
        if p == 1: k.vm.wait(f'h{kc}')
        if i % 2 == 0: k.lg.wait(f'w{i+1}')
        d = vr([48,16,32][p],16); w = vr(64+4*(i % NF),4); h = vr(128+4*kc,4); c = '0' if kc == 0 else d
        if p < 2: k.mfma32(d, w, h, c)
        else: k.mfma32(d, h, w, c)
        if p == 2 and kc+HP < 32: hld(kc+HP)
        if i == 67: fill = kvepi()
        for x in fill[:2]: run(x)
        fill = fill[2:]
    k.stamp()
    k("s_nop 7\ns_nop 3")
    for r in range(16): k(f"v_mul_f32 v{48+r}, s33, v{48+r}")
    for r in range(8): k(f"v_cvt_pk_bf16_f32 v{64+r}, v{48+2*r}, v{49+2*r}")
    for hh in range(2): ldsw(vr(64+4*hh,4), LQ + hh*4*KB, 8)
    k.lg.all()
    k("s_branch p1_J\np1_L:")
    k.vm.q = []; k.lg.q = []
    k(f"s_mul_i32 s28, s9, {96*KB}\ns_lshl_b32 s29, s7, 11\ns_add_u32 s28, s28, s29\ns_add_u32 s28, s28, {WQ}")
    def wq(u):
        for o in ([p*32*KB + u*8*KB + i*KB for i in range(2) for p in (1, 2)] if u < 4 else [q*8*KB + i*KB for q in range(4) for i in range(2)]):
            k(f"s_add_u32 m0, s29, {o}"); sadd(27, 28, o); k.dma(2, W, 's27', f'u{u}')
    wq(0); wq(1)
    for u in range(5):
        if u+2 < 5: wq(u+2)
        k.vm.wait(f'u{u}')
        if u == 4:
            from ka import spin, F0C
            k(f"s_lshl_b32 s27, s7, 14\ns_add_u32 s27, s27, {F0C}\nv_lshlrev_b32 v5, 7, v1\nv_add_u32 v5, s27, v5\nv_add_u32 v7, 0x2000, v5")
            spin(k, "p1_f0", 5, 6, W); spin(k, "p1_f1", 7, 6, W)
        k("s_barrier")
    k("v_mov_b32 v8, 0x3f803f80\nv_mov_b32 v9, v8\nv_mov_b32 v10, v8\nv_mov_b32 v11, v8")
    k.dsw(15, vr(8,4), L1 & 0xffff)
    k("s_cmp_ge_u32 s34, 112\ns_cbranch_scc1 uv_a")
    k(f"""s_lshl_b32 s28, s34, 15
    s_lshl_b32 s27, s7, 13
    s_add_u32 s28, s28, s27
    s_add_u32 s28, s28, {WGU}
    v_and_b32 v7, 1, v1
    v_lshlrev_b32 v7, 10, v7
    v_sub_u32 v7, {LM + 1024}, v7
    v_lshl_add_u32 v7, v4, 4, v7
    s_lshl_b32 s27, s7, 8
    v_add_u32 v7, s27, v7""")
    for i in range(2):
        k(f"s_mov_b32 m0, {LM + i*KB}\ns_mov_b32 s27, {MODH + 3072 + i*KB}"); k.dma(2, W, 's27', 'mh')
    loads(128, 28, 8, 'a'); k.vm.wait('mh')
    for c in range(8): k.dsr(vr(160+4*c,4), 7, c*32)
    k(f"v_lshlrev_b32 v7, 7, v3\nv_lshl_add_u32 v7, v4, 4, v7\ns_lshl_b32 s27, s7, 8\ns_add_u32 s27, s27, {LU}\nv_add_u32 v7, s27, v7")
    k.vm.all(); k.lg.all()
    for c in range(8): k.mfma32(vr(192,16), vr(128+4*c,4), vr(160+4*c,4), '0' if c == 0 else vr(192,16))
    k("s_nop 7\ns_nop 3\ns_mov_b32 exec_lo, 3\ns_mov_b32 exec_hi, 3")
    for q in range(4): k.dsw(7, vr(192+4*q,4), q*32)
    k("s_mov_b64 exec, -1\nuv_a:"); wo_loads(); k.lg.all()
    k("p1_J:")
    arrive(0, 5); k.stamp(); k.vm.q = []
    SB = 160
    k(f"s_cmp_ge_u32 s34, 112\ns_cbranch_scc1 uv_b\ns_cmp_lg_u32 s4, 4\ns_cbranch_scc1 uv_b\nv_lshlrev_b32 v7, 2, v3\nv_add_u32 v7, {LU}, v7")
    for w in range(4):
        for n in range(2): k.dsr(vr(SB+2*w+n), 7, w*256 + n*128, w=32)
    k.lg.all()
    for w in range(1, 4): k(f"v_add_f32 v{SB}, v{SB}, v{SB+2*w}\nv_add_f32 v{SB+1}, v{SB+1}, v{SB+2*w+1}")
    for n in range(2):
        x = SB+n; t = SB+2+3*n
        k(f"v_and_b32 v{t}, 0xffff0000, v{x}\nv_sub_f32 v{x}, v{x}, v{t}\nv_and_b32 v{t+1}, 0xffff0000, v{x}\nv_sub_f32 v{t+2}, v{x}, v{t+1}")
    k(f"""v_cvt_pk_bf16_f32 v{SB+8}, v{SB+2}, v{SB+3}
    v_cvt_pk_bf16_f32 v{SB+9}, v{SB+4}, v{SB+5}
    v_cvt_pk_bf16_f32 v{SB+10}, v{SB+6}, v{SB+7}
    v_mov_b32 v{SB+11}, 0
    s_lshl_b32 s27, s34, 10
    s_add_u32 s27, s27, {UVB}
    buffer_store_dwordx4 v[{SB+8}:{SB+11}], v2, s[{W}:{W+3}], s27 offen sc1
    uv_b:""")
    OA, QR, VR, M0, M8, NM, SB, KR = 16, 32, 36, 112, 128, 144, 160, 208
    k(f"v_lshlrev_b32 v7, 2, v4\nv_sub_u32 v7, v3, v7\ns_mov_b32 s31, 0x{f2u(-1e30):x}\nv_mov_b32 v8, s31\nv_mov_b32 v9, 0")
    for r in range(16):
        k(f"v_cmp_gt_i32 s[{52+2*(r%4)}:{53+2*(r%4)}], {(r//4)*8 + r % 4}, v7")
        if r % 4 == 3:
            for q in range(r-3, r+1):
                m = f"s[{52+2*(q%4)}:{53+2*(q%4)}]"
                k(f"v_cndmask_b32 v{M0+q}, v8, v9, {m}\nv_cndmask_b32 v{M8+q}, v9, v8, {m}")
    k(f"""s_lshl_b32 s28, s8, 2
    s_add_u32 s28, s28, s4
    s_sub_u32 s28, s28, 8
    s_max_i32 s28, s28, 0
    s_lshl_b32 s27, s9, 17
    s_lshl_b32 s35, s28, 10
    s_add_u32 s36, s35, s27
    s_add_u32 s35, s36, s35
    s_add_u32 s36, s36, {KF}
    s_add_u32 s35, s35, {VF}
    s_lshl_b32 s38, s4, 10
    s_lshr_b32 s37, s4, 2
    s_mul_i32 s27, s37, {12*KB}
    s_lshl_b32 s28, s7, 10
    s_add_u32 s27, s27, s28
    s_add_u32 s27, s27, {LK}
    v_add_u32 v13, s27, v2
    s_lshl_b32 s27, s37, 8
    s_lshl_b32 s28, s7, 11
    s_add_u32 s27, s27, s28
    s_add_u32 s27, s27, {LV}
    v_add_u32 v12, s27, v2
    v_cmp_gt_u32 vcc, 16, v3
    v_mov_b32 v10, 0x400
    v_mov_b32 v11, {L1}
    v_cndmask_b32 v10, 0, v10, vcc
    v_cndmask_b32 v12, v11, v12, vcc
    v_add_u32 v11, s38, v15""")
    poll(f"""s_sub_u32 s27, s5, 2048
    s_cselect_b32 s27, s5, s27
    s_sub_u32 s28, s5, 4096
    s_cselect_b32 s28, s5, s28
    v_mov_b32 v5, s27
    v_mov_b32 v6, s28
    v_cndmask_b32 v5, v5, v6, vcc
    v_add_u32 v5, {CNT}, v5"""); k.stamp()
    for hh in range(2):
        k(f"s_add_u32 m0, s38, {LK + hh*12*KB}"); sadd(27, 36, hh*64*KB); k.dma(2, W, 's27', 'kv', fl=SC)
    k(f"s_lshl_b32 s38, s38, 1")
    for hh in range(2):
        k(f"s_add_u32 m0, s38, {LV + hh*KB}"); sadd(27, 35, hh*KB); k.dma(2, W, 's27', 'kv', fl=SC)
    k.dsr(vr(QR,4), 11, LQ & 0xffff)
    k.vm.all()
    k.vm.q = []; k.lg.all(); k("s_barrier"); k.stamp()
    k(f"s_mul_i32 s29, s4, {12*KB}\ns_add_u32 s28, s41, s29\ns_mov_b32 vcc_hi, 0\ns_mov_b32 vcc_lo, s37")
    def gu(c): k(f"s_add_u32 m0, s29, {c*KB}"); sadd(27, 28, c*KB); k.dma(2, W, 's27', 'gu')
    def wo(i):
        if i % 4 == 0: sadd(30, 40, i*KB)
        lb = f"wo{k.uid()}"
        k(f"s_cbranch_vccnz {lb}"); k.bload(vr(48+4*i,4), 2, W, 's30', (i % 4)*KB, 'wo', fl=SC); k(f"{lb}:")
    pre = [x for i in range(16) for x in ([(wo, i), (gu, i)] if i < 12 else [(wo, i)])]
    def pf(n=1):
        for _ in range(n):
            if pre: f, i = pre.pop(0); f(i)
    def mx(b, first=False):
        for i in range(8):
            a = 8 + i % 2
            k(f"v_max_f32 v{a}, v{b+2*i}, v{b+2*i+1}" if first and i < 2 else f"v_max3_f32 v{a}, v{a}, v{b+2*i}, v{b+2*i+1}")
    def fin_max(m0):
        k("v_max_f32 v8, v8, v9\nv_mov_b32 v9, v8\ns_nop 1\nv_permlane32_swap_b32 v9, v8\ns_nop 1\nv_max_f32 v8, v8, v9")
        if m0:
            for r in range(16): k(f"v_sub_f32 v{M0+r}, v{M0+r}, v8")
        for r in range(16): k(f"v_sub_f32 v{NM+r}, 0, v8")
        for r in range(16): k(f"v_sub_f32 v{M8+r}, v{M8+r}, v8")
    def vrd(c): k.dsr(vr(VR+4*(c % 3),4), 12, 0, f'v{c}'); k("v_add_u32 v12, v12, v10")
    k("s_cmp_lt_u32 s8, 2\ns_cbranch_scc1 p2_slow")
    for j in range(9): k.dsr(vr(KR+4*j,4), 13, j*KB, f'k{j}')
    def sb(j): return SB + 16*(j % 3)
    def qk(j, c): k.mfma32(vr(sb(j),16), vr(KR+4*j,4), vr(QR,4), c)
    def c1(j): return vr(M0,16) if j == 0 else vr(M8,16) if j == 8 else '0'
    def c2(j): return vr(M0,16) if j == 0 else vr(M8,16) if j == 8 else vr(NM,16)
    for j in range(2): k.lg.wait(f'k{j}'); qk(j, c1(j))
    pf(2); k('s_nop 2')
    for j in range(9):
        if j+2 < 9: k.lg.wait(f'k{j+2}'); qk(j+2, c1(j+2))
        if j == 0: k("s_nop 3")
        if j == 8: vrd(0); vrd(1)
        mx(sb(j), j == 0); pf()
    fin_max(True)
    qk(0, c2(0)); qk(1, c2(1)); pf(); k("s_nop 7\ns_nop 1")
    def pv(c):
        k.lg.wait(f'v{c}')
        k.mfma32(vr(OA,16), vr(VR+4*(c % 3),4), vr(sb(c//2)+8*(c % 2),4), '0' if c == 0 else vr(OA,16))
    for c in range(18):
        b = sb(c//2) + 8*(c % 2)
        for r in range(8): k(f"v_exp_f32 v{b+r}, v{b+r}")
        if c > 0: pv(c-1)
        if c % 2 == 0 and c//2+2 < 9: qk(c//2+2, c2(c//2+2))
        if c+2 < 18: vrd(c+2)
        pf(2 if c < 4 else 1)
        for r in range(4): k(f"v_cvt_pk_bf16_f32 v{b+r}, v{b+2*r}, v{b+2*r+1}")
    k("s_nop 1"); pv(17)
    k("s_branch p2_join\np2_slow:")
    assert not pre
    for c in range(8): wo(c)
    k(f"s_sub_u32 s30, 8, s24\ns_lshl_b32 s27, s30, 10\nv_add_u32 v13, s27, v13\nv_mov_b32 v7, v13\ns_lshl_b32 s27, s30, 1\nv_mad_u32_u24 v12, v10, s27, v12\nv_mov_b32 v8, s31\nv_mov_b32 v9, s31")
    for r in range(16): k(f"v_mov_b32 v{OA+r}, 0")
    for ps in range(2):
        k(f"s_mov_b32 s32, s30\np2_l{ps}:")
        k.dsr(vr(KR,4), 13 if ps == 0 else 7, 0)
        k(f"v_add_u32 v{13 if ps == 0 else 7}, 0x400, v{13 if ps == 0 else 7}")
        if ps: vrd(0); vrd(1)
        k.lg.all()
        k(f"s_cmp_eq_u32 s32, 8\ns_cbranch_scc1 p2_m{ps}")
        k.mfma32(vr(SB,16), vr(KR,4), vr(QR,4), vr(NM,16) if ps else '0')
        k(f"s_branch p2_n{ps}\np2_m{ps}:")
        k.mfma32(vr(SB,16), vr(KR,4), vr(QR,4), vr(M8,16))
        k(f"p2_n{ps}:\ns_nop 7\ns_nop 3")
        if ps == 0: mx(SB)
        else:
            for r in range(16): k(f"v_exp_f32 v{SB+r}, v{SB+r}")
            k("s_nop 0")
            for r in range(8): k(f"v_cvt_pk_bf16_f32 v{SB+16+r}, v{SB+2*r}, v{SB+2*r+1}")
            k("s_nop 1")
            for c in range(2): k.mfma32(vr(OA,16), vr(VR+4*c,4), vr(SB+16+4*c,4), vr(OA,16))
        k(f"s_add_u32 s32, s32, 1\ns_cmp_le_u32 s32, 8\ns_cbranch_scc1 p2_l{ps}")
        if ps == 0:
            fin_max(False)
            k('s_mov_b32 s49, s30')
            for c in range(8, 16): wo(c)
            k('s_mov_b32 s30, s49')
    for c in range(12): gu(c)
    k(f"""p2_join:
    s_lshl_b32 s28, s24, 15
    s_lshl_b32 s27, s9, 11
    s_add_u32 s28, s28, s27
    s_lshl_b32 s27, s37, 10
    s_add_u32 s28, s28, s27
    s_add_u32 s28, s28, {OF}
    s_nop 5
    v_rcp_f32 v8, v{OA+8}
    s_nop 0""")
    k.lg.q = []
    for r in range(8): k(f"v_mul_f32 v{OA+r}, v{OA+r}, v8")
    for r in range(4): k(f"v_cvt_pk_bf16_f32 v{OA+r}, v{OA+2*r}, v{OA+2*r+1}")
    k.bstore(vr(OA,4), 2, W, 's28', 0, fl=SC)
    k.stamp()
    arrive(1, 5); k.vm.q = []
```

```python
from lib import *
from k01 import ln_scalars, LOG2E
SC = ' sc1'
UVL = 144*KB
WSL = [5, 6, 7, 8, 0, 1]
PK = int(os.environ.get('PK', 0))
BUD = int(os.environ.get('BUD', 8))
def p45(k, W, run, sadd, arrive, poll, ldsr, loads, row16):
    TH = int(os.environ.get('TH', 60))
    def thr():
        if len(k.vm.q) > TH: k(f"s_waitcnt vmcnt({TH})"); k.vm.q = k.vm.q[-TH:]
    def unit_dma(u):
        for i in range(4):
            k(f"s_add_u32 m0, s29, {(u % 9)*16*KB + i*KB}"); sadd(27, 28, u*16*KB + i*KB); thr(); k.dma(2, W, 's27', f'u{u}')
    k(f"s_cmp_lt_u32 s4, 4\ns_cbranch_scc1 p4_a\ns_lshl_b32 s29, s7, 12\ns_add_u32 s28, s41, s29\ns_sub_u32 s32, s42, {4*28*KB}")
    for u in (6, 7, 8): unit_dma(u)
    qL = list(k.vm.q)
    k("p4_a:")
    poll(row16(2, 44) + f"""
    s_mul_i32 s27, s45, {7*256}
    s_add_u32 s27, s27, {CNT + 2*32768}
    v_and_b32 v6, 7, v1
    v_min_u32 v6, 6, v6
    v_lshlrev_b32 v6, 8, v6
    v_add_u32 v6, s27, v6
    v_cmp_gt_u32 vcc, 16, v3
    s_nop 1
    v_cndmask_b32 v5, v6, v5, vcc"""); k.stamp()
    k("s_cmp_ge_u32 s4, 4\ns_cbranch_scc1 p4_L")
    k.vm.q = []
    AC, WF, XB, TM, OU, ST = 16, 80, 112, 116, 124, 116
    NF, PF = 8, 6
    k(f"""s_lshl_b32 s28, s46, 15
    s_add_u32 s28, s28, {YF}
    s_lshl_b32 s29, s46, 11
    s_add_u32 s29, s29, {STB}
    v_lshlrev_b32 v5, 3, v3
    v_lshl_add_u32 v5, v4, 10, v5""")
    loads(128, 28, 4, None, fl=SC, tags=lambda i: f'y{i}')
    for e in range(4): k.bload(vr(ST+2*e,2), 5, W, 's29', e*256, 'st', w=2, fl=SC)
    def yld(i):
        if i % 4 == 0: sadd(29, 28, i*KB)
        k.bload(vr(128+4*i,4), 2, W, 's29', (i % 4)*KB, f'y{i}', fl=SC)
    YP = int(os.environ.get('YP', 16))
    for i in range(4, YP): yld(i)
    k(f"""s_mul_i32 s30, s46, {112*KB}
    s_mul_i32 s27, s45, {7*KB}
    s_add_u32 s30, s30, s27
    s_add_u32 s30, s30, {HF}
    s_add_u32 s31, s30, 4096
""")
    seq = [(p, kc) for kc in range(33) for p in (0, 1)] + [(p, kc) for p in range(2, 7) for kc in range(33)]
    def rd(i):
        p, kc = seq[i]
        ldsr(vr(WF+4*(i % NF),4), UVL + p*KB if kc == 32 else ((2*p + kc//16) % 9)*16*KB + (kc % 16)*KB, f'w{i}')
    def epi(p):
        ab = AC + (p % 4)*16; th = []
        R1, R2 = 5, 6
        for q in range(2):
            g = ab + 4*q; uu = ab + 8 + 4*q
            P = lambda x: f"v[{x}:{x+1}]"
            if PK:
                for r in (0, 2): th.append(f"v_pk_mul_f32 {P(TM+r)}, {P(g+r)}, {P(TM+4)} op_sel_hi:[1,0]")
            else:
                for r in range(4): th.append(f"v_mul_f32 v{TM+r}, v{g+r}, v{TM+4}")
            for r in range(4): th.append(f"v_exp_f32 v{TM+r}, v{TM+r}")
            if PK:
                for r in (0, 2): th.append(f"v_pk_fma_f32 {P(TM+r)}, {P(TM+r)}, {P(TM+6)}, {P(TM+6)} op_sel_hi:[1,0,0]")
            else:
                for r in range(4): th.append(f"v_fma_f32 v{TM+r}, v{TM+r}, v{TM+6}, v{TM+6}")
            for r in range(4): th.append(f"v_rcp_f32 v{TM+r}, v{TM+r}")
            if PK:
                for r in (0, 2): th.append(f"v_pk_mul_f32 {P(TM+r)}, {P(TM+r)}, {P(uu+r)}")
            else:
                for r in range(4): th.append(f"v_mul_f32 v{TM+r}, v{TM+r}, v{uu+r}")
            for r in range(2): th.append(f"v_cvt_pk_bf16_f32 v{OU+2*q+r}, v{TM+2*r}, v{TM+2*r+1}")
        th.append(lambda: k.bstore(vr(OU,4), 2, W, 's30' if p < 4 else 's31', (p % 4)*1024, fl=SC))
        return th
    def stats():
        k.vm.wait('st')
        k(f"""v_add_f32 v{ST}, v{ST}, v{ST+2}
        v_add_f32 v{ST+1}, v{ST+1}, v{ST+3}
        v_add_f32 v{ST+4}, v{ST+4}, v{ST+6}
        v_add_f32 v{ST+5}, v{ST+5}, v{ST+7}
        v_add_f32 v{ST}, v{ST}, v{ST+4}
        v_add_f32 v{ST+1}, v{ST+1}, v{ST+5}
        v_mov_b32 v{ST+2}, v{ST}
        v_mov_b32 v{ST+3}, v{ST+1}
        s_nop 1
        v_permlane32_swap_b32 v{ST+2}, v{ST}
        v_permlane32_swap_b32 v{ST+3}, v{ST+1}
        s_nop 1
        v_add_f32 v{ST}, v{ST}, v{ST+2}
        v_add_f32 v{ST+1}, v{ST+1}, v{ST+3}""")
        ln_scalars(k, ST, ST+1, ST+2, keep=ST+3)
        k(f"""v_sub_f32 v{ST}, 0, v{ST}
        v_mul_f32 v{TM+4}, 0x{LOG2E ^ 0x80000000:x}, v{ST+1}
        v_mov_b32 v{TM+6}, v{ST+3}
        v_mov_b32 v{XB}, 0
        v_mov_b32 v{XB+1}, 0
        v_mov_b32 v{XB+2}, 0
        v_mov_b32 v{XB+3}, 0
        s_mov_b32 exec_hi, 0
        v_cvt_pk_bf16_f32 v{XB}, v{ST}, v{ST}
        v_cvt_pk_bf16_f32 v{XB+1}, v{ST}, v{ST+3}
        v_cvt_pk_bf16_f32 v{XB+2}, v{ST+3}, v{ST+3}
        s_mov_b32 exec_hi, -1""")
    for q in range(PF): rd(q)
    fill = []; N = len(seq)
    bars = [64, 66+33, 66+66, 66+99, 66+132]
    for i, (p, kc) in enumerate(seq):
        if i == 68: fill = epi(0) + epi(1)
        if kc == 3 and p >= 3: fill += epi(p-1)
        if i+PF in bars: k("s_barrier")
        if i+PF < N: rd(i+PF)
        if p == 0 and kc < 32: k.vm.wait(f'y{kc}')
        if i % 3 == 0: k.lg.wait(f'w{min(i+2, N-1)}')
        d = vr(AC + (p % 4)*16, 16)
        k.mfma32(d, vr(WF+4*(i % NF),4), vr(128+4*kc,4) if kc < 32 else vr(XB,4), '0' if kc == 0 else d)
        if p == 0 and kc + YP < 32: yld(kc+YP)
        if i == 10: stats()
        if i == 65: k.stamp()
        bud = BUD
        while fill:
            cst = 8 if isinstance(fill[0], str) and fill[0][2:5] in ('exp', 'rcp') else 4
            if cst > bud: break
            bud -= cst; run(fill.pop(0))
        if kc == 32 and p >= 3: assert len(fill) <= 2*len(epi(0)), (p, len(fill))
    for x in fill: run(x)
    k.stamp()
    k("s_nop 7\ns_nop 3")
    for x in epi(6): run(x)
    k("s_branch p4_J\np4_L:")
    k.vm.q = qL; k.lg.q = []
    k(f"s_lshl_b32 s30, s7, 11\ns_mul_i32 s31, s45, {7*KB}\ns_add_u32 s31, s31, s30\ns_add_u32 s31, s31, {UVB}")
    for i in range(2):
        k(f"s_add_u32 m0, s30, {UVL + i*KB}"); sadd(27, 31, i*KB); k.dma(2, W, 's27', 'uv', fl=SC)
    def wdc(j):
        for i in range(4):
            k(f"s_add_u32 m0, s29, {WSL[j]*16*KB + i*KB}"); sadd(27, 32, (4*j+i)*KB); thr(); k.dma(2, W, 's27', 'wc')
    for b in range(5):
        k.vm.wait(*[['uv'], ['u6', 'u7'], ['u8', 'u9'], ['u10', 'u11'], ['u12', 'u13']][b])
        k("s_barrier")
        for u in {0: [9, 11], 1: [10, 12, 13]}.get(b, []): unit_dma(u)
        if b == 0: loads(144, 42, 8, 'wd')
        if b >= 2: wdc(2*b-4); wdc(2*b-3)
    k("p4_J:")
    arrive(3, 47); k.vm.q = []; k.stamp()
    k("s_cmp_ge_u32 s4, 4\ns_cbranch_scc1 p5_a"); sadd(28, 42, 24*KB); loads(240, 28, 4, 'wd')
    k("s_lshl_b32 s27, s4, 12\nv_add_u32 v16, s27, v2\nv_add_u32 v17, s27, v14\nv_add_u32 v18, s27, v15")
    for i in range(24):
        o = WSL[i//4]*16*KB + (i % 4)*KB; k.dsr(vr(144+4*i,4), 16 + (o >> 16), o & 0xffff)
    k.lg.all(); k("p5_a:"); k.vm.q = []
    k(f"""s_and_b32 s28, s25, -2
    s_mul_i32 s28, s28, {112*KB}
    s_mul_i32 s27, s4, {14*KB}
    s_add_u32 s28, s28, s27
    s_add_u32 s28, s28, {HF}
    s_add_u32 s29, s28, {112*KB}
    s_add_u32 s39, s39, {MOD+10240}""")
    poll(row16(3, 51)); k.stamp()
    AR, WR, AC = 80, 144, 16
    def act(s):
        if s % 4 == 0: sadd(30, 28, s*KB); sadd(31, 29, s*KB)
        for th in range(2): k.bload(vr(AR+8*(s % 8)+4*th,4), 2, W, f's{30+th}', (s % 4)*KB, f'a{s}', fl=SC)
    for s in range(8): act(s)
    for s in range(14):
        k.vm.wait(f'a{s}')
        for th in range(2):
            for nt in range(2):
                d = vr(AC+32*th+16*nt,16); k.mfma32(d, vr(WR+8*s+4*nt,4), vr(AR+8*(s % 8)+4*th,4), '0' if s == 0 else d)
        if s+8 < 14: act(s+8)
        if s == 6:
            for e in range(2): k.bload(vr(WR+4*e,4), 12, W, 's39', e*32, 'gb', fl=SC)
    k.stamp()
    k("""s_lshl_b32 s28, s4, 11
    v_add_u32 v13, s28, v2
    v_add_u32 v14, s28, v14
    s_lshl_b32 s28, s4, 14
    v_add_u32 v15, s28, v2
    s_nop 6""")
    for th in range(2):
        for q in range(4):
            for e in range(2):
                o = (2*q+th)*16384 + e*1024
                k.dsw(13 + (o >> 16), vr(AC+32*th+8*q+4*e,4), o & 0xffff)
    k.lg.all(); k("s_barrier")
    for w in range(8):
        for e in range(2): k.dsr(vr(AC+8*w+4*e,4), 15, w*2048 + e*1024, f'r{w}')
    for w in range(1, 8):
        k.lg.wait(f'r{w}')
        for r in range(0, 8, 2): k(f"v_pk_add_f32 v[{AC+r}:{AC+r+1}], v[{AC+r}:{AC+r+1}], v[{AC+8*w+r}:{AC+8*w+r+1}]")
    k.vm.wait('gb')
    for r in range(4):
        k(f"""v_lshlrev_b32 v32, 16, v{8+r}
        v_and_b32 v33, 0xffff0000, v{8+r}
        v_fma_f32 v32, v{AC+2*r}, v{WR+2*r}, v32
        v_fma_f32 v33, v{AC+2*r+1}, v{WR+2*r+1}, v33
        v_cvt_pk_bf16_f32 v{8+r}, v32, v33""")
    k("s_nop 1\nv_permlane32_swap_b32 v8, v10\nv_permlane32_swap_b32 v9, v11")
    k.bstore(vr(8,4), 7, 20, 's43', 0)
    k.stamp_end(1)
```

```python
NAME = "adaLN_cond__sliding_block__glu_gated_glu__prompt"
MB = 1 << 20
import os
STAMP = bool(os.environ.get('STAMP'))
KB = 1024
MOD, MODH, CNT = 0, 16*KB, 29*MB + 512*KB
UVB = 29*MB + 256*KB
WQ, WO, WGU, WD = 256*KB, 256*KB+1536*KB, 256*KB+2048*KB, 256*KB+2048*KB+3584*KB
H1 = 8*MB; QF, KF, VF, OF, X1, YF, HF = 10*MB, 12*MB, 14*MB, 16*MB, 18*MB, 20*MB, 22*MB
STB = 29*MB
WS_SIZE = 30*MB
ARG = dict(x=0, wqkv=8, wo=16, wg=32, wu=40, wd=48, c=56, wmod=64, out=72, dbg=80, ws=88)
SIZE = dict(x=2*MB, wqkv=512*1536*2, wo=512*512*2, wg=512*1792*2, wu=512*1792*2, wd=1792*512*2,
            c=1024, wmod=512*3072*2, out=2*MB, dbg=256, ws=WS_SIZE)

def vr(b, n=1, p='v'):
    return f"{p}{b}" if n == 1 else f"{p}[{b}:{b+n-1}]"
def ar(b, n=1): return vr(b, n, 'a')
def sr(b, n=1): return vr(b, n, 's')

class Cnt:
    def __init__(s, k, name, mx): s.k, s.name, s.mx, s.q = k, name, mx, []
    def issue(s, tag): s.q.append(tag)
    def wait(s, *tags):
        idx = max((i for i, t in enumerate(s.q) if t in tags), default=None)
        if idx is None: return
        n = len(s.q) - 1 - idx
        s.k(f"s_waitcnt {s.name}({min(n, s.mx)})")
        if n > s.mx: s.q = s.q[len(s.q)-s.mx:]
        else: s.q = s.q[idx+1:]
    def all(s):
        s.k(f"s_waitcnt {s.name}(0)"); s.q = []

class Kern:
    def __init__(s, name, grid, block, lds, nv, na=0, ns=102):
        s.name, s.grid, s.block, s.lds, s.nv, s.na, s.ns = name, grid, block, lds, nv, na, ns
        s.L = []; s.nst = 0
        s.vm = Cnt(s, 'vmcnt', 63); s.lg = Cnt(s, 'lgkmcnt', 15)
    def __call__(s, line):
        for l in line.split('\n'):
            l = l.strip()
            if l: s.L.append(('' if l.endswith(':') else '  ') + l)
    def srds(s, m):
        for a, b in m.items(): s(f"s_load_dwordx2 {sr(b,2)}, s[0:1], {ARG[a]}")
        for a, b in m.items():
            s(f"s_mov_b32 s{b+2}, {SIZE[a]}\ns_mov_b32 s{b+3}, 0x20000")
    def bload(s, dst, voff, srd, soff=0, off=0, tag=None, w=4, fl=''):
        sx = {1: '', 2: 'x2', 4: 'x4'}[w]
        o = f" offset:{off}" if off else ''
        s(f"buffer_load_dword{sx} {dst}, v{voff}, {sr(srd,4)}, {soff} offen{o}{fl}"); s.vm.issue(tag)
    def bstore(s, src, voff, srd, soff=0, off=0, tag='st', w=4, fl=''):
        sx = {1: '', 2: 'x2', 4: 'x4'}[w]
        o = f" offset:{off}" if off else ''
        s(f"buffer_store_dword{sx} {src}, v{voff}, {sr(srd,4)}, {soff} offen{o}{fl}"); s.vm.issue(tag)
    def dma(s, voff, srd, soff, tag=None, fl=None):
        if fl is None: fl = ' sc1' if voff == 2 else ''
        s(f"buffer_load_dwordx4 v{voff}, {sr(srd,4)}, {soff} offen{fl} lds"); s.vm.issue(tag)
    def trd(s, dst, va, off, tag=None):
        assert 0 <= off < 65536, off
        s(f"ds_read_b64_tr_b16 {dst}, v{va} offset:{off}"); s.lg.issue(tag)
    def dsr(s, dst, va, off, tag=None, w=128):
        assert 0 <= off < 65536, off
        s(f"ds_read_b{w} {dst}, v{va} offset:{off}"); s.lg.issue(tag)
    def dsw(s, va, src, off, tag=None, w=128):
        assert 0 <= off < 65536, off
        s(f"ds_write_b{w} v{va}, {src} offset:{off}"); s.lg.issue(tag)
    def mfma16(s, d, a, b, c): s(f"v_mfma_f32_16x16x32_bf16 {d}, {a}, {b}, {c}")
    def mfma32(s, d, a, b, c): s(f"v_mfma_f32_32x32x16_bf16 {d}, {a}, {b}, {c}")
    def bfround(s, v):
        s(f"v_cvt_pk_bf16_f32 v{v}, v{v}, v{v}\nv_and_b32 v{v}, 0xffff0000, v{v}")
    def xsum(s, v, t):
        s(f"v_mov_b32 v{t}, v{v}\ns_nop 1\nv_permlane16_swap_b32 v{t}, v{v}\ns_nop 1\nv_add_f32 v{v}, v{v}, v{t}")
        s(f"v_mov_b32 v{t}, v{v}\ns_nop 1\nv_permlane32_swap_b32 v{t}, v{v}\ns_nop 1\nv_add_f32 v{v}, v{v}, v{t}")
    def uid(s):
        s._u = getattr(s, '_u', 0) + 1; return s._u
    def stamp(s):
        if not STAMP: return
        i = s.nst; s.nst += 1
        if i >= 19: return
        s(f"s_{'memrealtime' if i == 0 else 'memtime'} s[{62+2*i}:{63+2*i}]\ns_waitcnt lgkmcnt(0)"); s.lg.q = []
        if i == 0: s.stamp()
    def stamp_end(s, kid, wv='s4'):
        if not STAMP: return
        s.stamp()
        s(f"s_memrealtime s[100:101]\ns_load_dwordx2 s[52:53], s[0:1], 88\ns_mov_b32 s54, 0x4000000\ns_mov_b32 s55, 0x20000\ns_mov_b64 exec, 1")
        s(f"s_lshl_b32 s58, s2, 11\ns_lshl_b32 s59, {wv}, 8\ns_add_u32 s58, s58, s59\ns_add_u32 s58, s58, {32*MB + kid*MB}\ns_waitcnt lgkmcnt(0)\nv_mov_b32 v0, 0")
        for i in range(20):
            if i < min(s.nst, 19) or i == 19: s(f"v_mov_b32 v2, s{62+2*i}\nv_mov_b32 v3, s{63+2*i}")
            else: s("v_mov_b32 v2, 0\nv_mov_b32 v3, 0")
            s(f"buffer_store_dwordx2 v[2:3], v0, s[52:55], s58 offen offset:{8*i}\ns_nop 1")
    def text(s):
        return (f".globl {s.name}\n.p2align 8\n.type {s.name},@function\n{s.name}:\n" + '\n'.join(s.L) + "\n")
    def desc(s):
        acc = (s.nv + 3)//4*4
        tot = acc + s.na if s.na else s.nv
        return f""".p2align 6
.amdhsa_kernel {s.name}
  .amdhsa_next_free_vgpr {tot}
  .amdhsa_next_free_sgpr {s.ns}
  .amdhsa_accum_offset {acc}
  .amdhsa_group_segment_fixed_size 0
  .amdhsa_kernarg_size 96
  .amdhsa_user_sgpr_count 2
  .amdhsa_user_sgpr_kernarg_segment_ptr 1
  .amdhsa_system_sgpr_workgroup_id_x 1
.end_amdhsa_kernel
"""

def interleave(main, fill, per):
    out = []; fi = 0; acc = 0.0
    for m in main:
        out.append(m); acc += per
        while acc >= 1 and fi < len(fill):
            out.append(fill[fi]); fi += 1; acc -= 1
    out += fill[fi:]
    return out

def emit(kerns, path, launches=None):
    hdr = open(f'cdna_kernels/{NAME}.s.ref').read().split('; Override launch')[0]
    s = hdr
    if len(kerns) == 1 and kerns[0].name == NAME + '_kernel' and not STAMP:
        k = kerns[0]; s += f"; @launch grid=({k.grid},1,1) block=({k.block},1,1) lds={k.lds}\n"
    else:
      for k in (launches or kerns):
        s += f"; @launch kernel={k.name} grid=({k.grid},1,1) block=({k.block},1,1) lds={k.lds}\n"
    s += '.amdgcn_target "amdgcn-amd-amdhsa--gfx950"\n.text\n'
    for k in kerns: s += k.text()
    s += '.section .rodata,"a"\n'
    for k in kerns: s += k.desc()
    open(path, 'w').write(s)
```

```python
from lib import *
from k01 import lane_setup, gemv_tile, ln_scalars, LOG2E
NG, NL, NU, NQ, NO, ND = 192, 64, 112, 48, 16, 56
AF = ' sc1'
RR = 96*KB; LC = RR + 32*KB; LCN = RR + 62*KB
F0C, F0L = CNT + 4*32768, CNT + 5*32768
NONCE = 32*KB
mix = 's_mul_i32 s60, s60, 0x9e3779b1\ns_add_u32 s60, s60, 0x7f4a7c15'
def spin(k, lab, vaddr, vtmp, srd, off=0):
    k(f"""s_mov_b32 s50, 0x40000
    {lab}:
    buffer_load_dword v{vtmp}, v{vaddr}, s[{srd}:{srd+3}], 0 offen offset:{off} sc1
    s_waitcnt vmcnt(0)
    v_cmp_ne_u32 vcc, s60, v{vtmp}
    s_cbranch_vccz {lab}e
    s_sleep 1
    s_sub_u32 s50, s50, 1
    s_cbranch_scc0 {lab}
    {lab}e:""")
def last_signal(k, cnt, flag, sidx, lab):
    k(f"""s_waitcnt vmcnt(0)
    s_mov_b64 exec, 1
    v_mov_b32 v8, {LCN + cnt*4}
    v_mov_b32 v9, 1
    ds_add_rtn_u32 v10, v8, v9
    v_mov_b32 v8, {flag}
    s_lshl_b32 s27, s{sidx}, 7
    s_waitcnt lgkmcnt(0)
    v_cmp_eq_u32 vcc, 3, v10
    s_cbranch_vccz {lab}
    v_mov_b32 v9, s60
    buffer_store_dword v9, v8, s[16:19], s27 offen sc1
    {lab}:
    s_mov_b64 exec, -1
    s_branch p0_done""")
def phase0(k):
    k.srds(dict(ws=16))
    lane_setup(k)
    k(f"s_waitcnt lgkmcnt(0)\ns_load_dword s60, s[16:17], {NONCE}")
    k("s_and_b32 s24, s2, 7\ns_lshl_b32 s24, s24, 3\ns_bfe_u32 s25, s2, 0x30003\ns_add_u32 s24, s24, s25\ns_and_b32 s25, s2, 0xc0\ns_add_u32 s24, s24, s25")
    k(f"s_cmp_ge_u32 s2, {NG}\ns_cselect_b32 s24, s2, s24\ns_cmp_ge_u32 s4, 4\ns_cbranch_scc1 pa_rl\ns_cmp_ge_u32 s2, {NG}\ns_cbranch_scc1 pa_ln")
    k.srds(dict(wmod=8, c=12))
    k("s_lshl_b32 s25, s24, 5")
    def pre():
        k("v_lshlrev_b32 v8, 4, v3\ns_lshl_b32 s26, s4, 8")
        for s in range(4): k.bload(vr(16+4*s,4), 8, 12, 's26', s*64, 'c')
    def bfrag():
        k.vm.wait('c')
        k(f"s_mov_b32 s27, 0x{LOG2E ^ 0x80000000:x}")
        for r in range(16):
            k(f"""v_lshlrev_b32 v32, 16, v{16+r}
            v_and_b32 v33, 0xffff0000, v{16+r}
            v_mul_f32 v34, s27, v32
            v_mul_f32 v35, s27, v33
            v_exp_f32 v34, v34
            v_exp_f32 v35, v35
            s_nop 0
            v_add_f32 v34, 1.0, v34
            v_add_f32 v35, 1.0, v35
            v_rcp_f32 v34, v34
            v_rcp_f32 v35, v35
            s_nop 0
            v_mul_f32 v34, v34, v32
            v_mul_f32 v35, v35, v33
            v_cvt_pk_bf16_f32 v{16+r}, v34, v35""")
    gemv_tile(k, 8, 6144, 25, bfrag, pre, LC, 'pa_gx')
    k.stamp()
    for r in range(4): k.bfround(40+r)
    k("s_lshr_b32 s26, s24, 5\ns_cmp_eq_u32 s26, 1\ns_cselect_b32 s27, 1.0, 0\ns_cmp_eq_u32 s26, 4\ns_cselect_b32 s27, 1.0, s27")
    for r in range(4):
        k(f"v_add_f32 v{40+r}, s27, v{40+r}"); k.bfround(40+r)
    k("v_lshlrev_b32 v8, 4, v3\ns_lshl_b32 s26, s24, 6\nv_cmp_eq_u32 vcc, 0, v2\ns_and_saveexec_b64 s[28:29], vcc")
    k.bstore(vr(40,4), 8, 16, 's26', MOD, fl=' sc1')
    k(f"v_cvt_pk_bf16_f32 v44, v40, v41\nv_cvt_pk_bf16_f32 v45, v42, v43\nv_lshlrev_b32 v8, 3, v3\ns_lshl_b32 s26, s24, 5\ns_add_u32 s26, s26, {MODH}")
    k.bstore(vr(44,2), 8, 16, 's26', 0, w=2, fl=AF)
    k(mix + f"\nv_mov_b32 v9, s60\nv_mov_b32 v8, {F0C}\ns_lshl_b32 s27, s24, 7\ns_mov_b64 exec, 1\ns_waitcnt vmcnt(0)\nbuffer_store_dword v9, v8, s[16:19], s27 offen sc1\ns_mov_b64 exec, -1\ns_branch p0_done")
    k("pa_gx:\n" + mix + "\ns_branch p0_done")
    k(f"pa_ln:\ns_sub_u32 s24, s2, {NG}")
    k.vm.q = []; k.lg.q = []
    k.srds(dict(x=20))
    k("""v_and_b32 v2, 31, v1
    v_lshrrev_b32 v3, 5, v1
    v_lshlrev_b32 v5, 10, v2
    v_lshl_add_u32 v5, v3, 4, v5
    s_lshl_b32 s25, s24, 15
    s_lshl_b32 s26, s4, 8
    s_add_u32 s25, s25, s26
    s_waitcnt lgkmcnt(0)""")
    X = 64
    for s in range(8): k.bload(vr(X+4*s,4), 5, 20, 's25', s*32, 'x')
    k("v_mov_b32 v56, 0\nv_mov_b32 v57, 0")
    k.vm.all()
    for r in range(32):
        k(f"v_lshlrev_b32 v8, 16, v{X+r}\nv_and_b32 v9, 0xffff0000, v{X+r}\nv_add_f32 v56, v56, v8\nv_fmac_f32 v57, v8, v8\nv_add_f32 v56, v56, v9\nv_fmac_f32 v57, v9, v9")
    k(f"v_lshlrev_b32 v6, 3, v2\nv_lshlrev_b32 v7, 3, v0\nv_add_u32 v6, {LC}, v6\nv_add_u32 v7, {LC}, v7")
    k.dsw(7, vr(56,2), 0, w=64); k.lg.all()
    k("s_barrier")
    for w in range(8): k.dsr(vr(8+2*w,2), 6, w*256, w=64)
    k.lg.all()
    for w in range(1, 8): k(f"v_add_f32 v8, v8, v{8+2*w}\nv_add_f32 v9, v9, v{9+2*w}")
    ln_scalars(k, 8, 9, 10)
    for r in range(32):
        k(f"""v_lshlrev_b32 v10, 16, v{X+r}
        v_and_b32 v11, 0xffff0000, v{X+r}
        v_sub_f32 v10, v10, v8
        v_sub_f32 v11, v11, v8
        v_cvt_pk_bf16_f32 v10, v10, v11
        v_and_b32 v11, 0xffff0000, v10
        v_lshlrev_b32 v10, 16, v10
        v_mul_f32 v10, v10, v9
        v_mul_f32 v11, v11, v9
        v_cvt_pk_bf16_f32 v{X+r}, v10, v11""")
    k(f"v_lshlrev_b32 v6, 4, v1\ns_lshl_b32 s25, s24, 15\ns_lshl_b32 s27, s4, 13\ns_add_u32 s25, s25, s27\ns_add_u32 s25, s25, {H1}\ns_add_u32 s27, s25, 4096")
    k.nst = 2; k.stamp()
    k(mix); k.stamp()
    k(f"v_and_b32 v60, 7, v1\nv_bfe_u32 v61, v1, 3, 1\nv_lshl_add_u32 v60, v61, 5, v60\ns_lshl_b32 s26, s4, 3\nv_add_u32 v60, s26, v60\nv_lshlrev_b32 v60, 7, v60\nv_add_u32 v60, {F0C}, v60")
    spin(k, "pa_w1", 60, 61, 16); k.stamp()
    k("v_lshlrev_b32 v5, 4, v2\nv_lshl_add_u32 v5, v3, 11, v5\ns_lshl_b32 s26, s4, 9")
    k.bload(vr(8,4), 5, 16, 's26', MOD, 'm', fl=' sc1')
    k(f"v_lshlrev_b32 v7, 4, v0\nv_add_u32 v7, {LC}, v7\ns_lshl_b32 s26, s4, 10\ns_add_u32 s26, s26, {LC}\nv_lshlrev_b32 v5, 5, v3\nv_add_u32 v5, s26, v5")
    k.vm.all(); k.dsw(7, vr(8,4), 4096); k.lg.all()
    def ldm(s):
        for j in range(4): k.dsr(vr(8+16*(s%3)+4*j,4), 5, 4096 + (j//2)*512 + s*64 + (j%2)*16, f'm{s}')
    ldm(0); ldm(1)
    for s in range(8):
        if s+2 < 8: ldm(s+2)
        k.lg.wait(f'm{s}'); M = 8+16*(s%3)
        for r in range(4):
            k(f"""v_lshlrev_b32 v56, 16, v{X+4*s+r}
            v_and_b32 v57, 0xffff0000, v{X+4*s+r}
            v_pk_fma_f32 v[56:57], v[56:57], v[{M+8+2*r}:{M+9+2*r}], v[{M+2*r}:{M+1+2*r}]
            v_cvt_pk_bf16_f32 v{X+4*s+r}, v56, v57""")
        k.bstore(vr(X+4*s,4), 6, 16, 's25' if s < 4 else 's27', (s%4)*1024, fl=AF)
    last_signal(k, 0, F0C, 2, "pa_s1")
    k.vm.q = []; k.lg.q = []
    k.nst = 2
    k(f"""pa_rl:
    v_mov_b32 v12, 0
    v_mov_b32 v13, 0
    v_mov_b32 v11, {LCN}
    ds_write_b64 v11, v[12:13]
    s_sub_u32 s20, s2, 64
    s_and_b32 s20, s20, 255
    s_lshl_b32 s20, s20, 2
    s_and_b32 s7, s4, 3
    s_add_u32 s20, s20, s7
    s_mov_b32 s30, 0
    s_mov_b32 s38, s20
    s_cmp_lt_u32 s20, {4*NQ}
    s_cbranch_scc1 pa_r0""")
    k("s_waitcnt lgkmcnt(0)\ns_barrier"); k.stamp(); k.stamp()
    k(f"s_cmp_ge_u32 s20, {4*(NQ+NU+NO+ND)}\ns_cbranch_scc1 pa_fin\ns_branch pa_r1\npa_r0:")
    k.srds(dict(wqkv=8)); k.srds(dict(wqkv=12))
    k(f"""s_and_b32 s21, s20, 31
    s_lshr_b32 s22, s20, 5
    s_lshl_b32 s24, s22, 9
    s_mov_b32 s26, 3072
    s_and_b32 s23, s22, 1
    s_mul_i32 s27, s23, {8*96*KB}
    s_lshr_b32 s23, s22, 1
    s_lshl_b32 s23, s23, 15
    s_add_u32 s27, s27, s23
    s_lshl_b32 s23, s21, 10
    s_add_u32 s27, s27, s23
    s_add_u32 s27, s27, {WQ}
    s_mov_b32 s28, {192*KB}
    s_mov_b32 s37, {96*KB}
    s_mov_b32 s29, 0
    s_add_u32 s25, s24, 256
    s_branch pa_go
    pa_r1:
    s_sub_u32 s20, s20, {4*NQ}
    s_cmp_ge_u32 s20, {4*NU}
    s_cbranch_scc1 pa_r2""")
    k.srds(dict(wg=8, wu=12))
    k(f"""s_and_b32 s21, s20, 31
    s_lshr_b32 s22, s20, 5
    s_lshl_b32 s24, s22, 8
    s_mov_b32 s25, s24
    s_mov_b32 s26, 3584
    s_mul_i32 s27, s22, {8*32*KB}
    s_lshl_b32 s23, s21, 10
    s_add_u32 s27, s27, s23
    s_add_u32 s27, s27, {WGU}
    s_mov_b32 s28, {64*KB}
    s_mov_b32 s37, {32*KB}
    s_mov_b32 s29, 0
    s_mov_b32 s30, 1
    s_branch pa_go
    pa_r2:
    s_sub_u32 s20, s20, {4*NU}
    s_mov_b32 s26, 1024
    s_mov_b32 s37, 1024
    s_mov_b32 s29, 1
    s_cmp_ge_u32 s20, {4*NO}
    s_cbranch_scc1 pa_r3""")
    k.srds(dict(wo=8)); k.srds(dict(wo=12))
    k(f"s_mov_b32 s28, {64*KB}\ns_mov_b32 s27, {WO}\ns_branch pa_r4\npa_r3:\ns_sub_u32 s20, s20, {4*NO}")
    k.srds(dict(wd=8)); k.srds(dict(wd=12))
    k(f"""s_mov_b32 s28, {224*KB}
    s_mov_b32 s27, {WD}
    pa_r4:
    s_lshr_b32 s21, s20, 1
    s_and_b32 s22, s20, 1
    s_lshl_b32 s24, s22, 9
    s_add_u32 s25, s24, 256
    s_lshl_b32 s23, s22, 2
    s_mul_i32 s23, s23, s28
    s_add_u32 s27, s27, s23
    s_lshl_b32 s23, s21, 11
    s_add_u32 s27, s27, s23
    pa_go:""")
    k("""s_lshl_b32 s31, s26, 4
    s_mul_i32 s31, s31, s21
    s_add_u32 s24, s24, s31
    s_add_u32 s25, s25, s31
    s_lshl_b32 s31, s26, 2
    v_mul_lo_u32 v5, v3, s26
    v_lshl_add_u32 v5, v2, 4, v5
    s_lshl_b32 s6, s7, 13
    s_add_u32 s6, s6, 0x18000
    s_waitcnt lgkmcnt(0)""")
    for p in range(4):
        for hf in range(2):
            k(f"s_add_u32 m0, s6, {hf*4096 + p*1024}\ns_nop 0")
            k.dma(5, 8+4*hf, f's{24+hf}', 'w')
        if p < 3: k("s_add_u32 s24, s24, s31\ns_add_u32 s25, s25, s31")
    k("""v_lshrrev_b32 v6, 1, v3
    s_sub_u32 s22, 3, s29
    v_lshlrev_b32 v6, s22, v6
    v_lshrrev_b32 v7, 2, v2
    v_add_u32 v6, v6, v7
    v_lshlrev_b32 v6, 8, v6
    v_and_b32 v7, 3, v2
    v_lshl_add_u32 v6, v7, 3, v6
    v_and_b32 v7, 1, v3
    s_cmp_eq_u32 s30, 1
    s_cselect_b32 s22, 12, 5
    v_lshl_add_u32 v6, v7, s22, v6
    v_add_u32 v6, s6, v6
    s_lshl_b32 s22, 0x400, s29
    v_add_u32 v7, s22, v6
    v_lshlrev_b32 v8, 4, v1
    s_cmp_eq_u32 s30, 1""")
    k.vm.all(); k.stamp()
    k("s_cbranch_scc1 pa_tg")
    for gu in range(2):
        for c in range(8):
            o = c*32 if gu else (c//4)*4096 + (c % 4)*64
            k.trd(vr(64+4*c,2), 6, o); k.trd(vr(66+4*c,2), 7, o)
        k("s_branch pa_tj\npa_tg:" if gu == 0 else "pa_tj:")
    k.lg.all()
    for c in range(8):
        if c % 2: k("s_add_u32 s22, s27, s37\ns_add_u32 s27, s27, s28")
        k.bstore(vr(64+4*c,4), 8, 16, 's22' if c % 2 else 's27', 0, fl=AF)
    k(f"s_cmp_ge_u32 s38, {4*NQ}\ns_cbranch_scc1 pa_fin\ns_barrier\npa_fin:\n" + mix)
    last_signal(k, 1, F0L, 2, "pa_s2")
    k.nst = 5
    k("p0_done:"); k.vm.q = []; k.lg.q = []
```

```python
from lib import *
from k01 import ln_scalars, LOG2E
import struct, math
def f2u(x): return struct.unpack('<I', struct.pack('<f', x))[0]
SC = ' sc1'
RR = 96*KB
def kb():
    k = Kern(NAME + "_kernel", 256, 512, 163840, 256)
    W = 12
    def run(x): k(x) if isinstance(x, str) else x()
    def sadd(d, b, imm): k(f"s_add_u32 s{d}, s{b}, {imm}")
    def arrive(ph, sidx):
        k.vm.all(); k("s_barrier")
        lab = f"arr{k.uid()}"
        k(f"s_cmp_lg_u32 s4, 0\ns_cbranch_scc1 {lab}\ns_mov_b64 exec, 1\nv_mov_b32 v5, {CNT + ph*32768}\nv_mov_b32 v6, s60")
        k(f"buffer_store_dword v6, v5, s[{W}:{W+3}], s{sidx} offen sc1\ns_mov_b64 exec, -1\n{lab}:")
    def poll(addr):
        lab = f"pol{k.uid()}"
        k(f"s_cmp_lg_u32 s4, 3\ns_cbranch_scc1 {lab}e\ns_mov_b32 s50, 0x40000")
        k(addr)
        k(f"""{lab}:
        buffer_load_dword v6, v5, s[{W}:{W+3}], 0 offen sc1
        s_waitcnt vmcnt(0)
        v_cmp_ne_u32 vcc, s60, v6
        s_cbranch_vccz {lab}e
        s_sub_u32 s50, s50, 1
        s_cbranch_scc0 {lab}
        {lab}e:
        s_barrier""")
    def row16(ph, srow):
        return f"s_lshl_b32 s27, s{srow}, 11\ns_add_u32 s27, s27, {CNT + ph*32768}\nv_and_b32 v5, 15, v1\nv_lshlrev_b32 v5, 7, v5\nv_add_u32 v5, s27, v5"
    k("s_cmp_ge_u32 s2, 256\ns_cbranch_scc1 pb_kernel_end")
    k.stamp()
    from ka import phase0, spin, F0C, F0L
    phase0(k); k.stamp()
    k.srds(dict(ws=W, x=16, out=20))
    k("""v_and_b32 v1, 63, v0
    v_lshrrev_b32 v4, 6, v0
    v_lshlrev_b32 v2, 4, v1
    v_readfirstlane_b32 s4, v4
    v_and_b32 v3, 31, v0
    v_bfe_u32 v4, v0, 5, 1
    s_and_b32 s7, s4, 3""")
    def tmap(nr, R, sr_, sc_):
        lr = R.bit_length()-1; ng = nr//R; lg_ = ng.bit_length()-1
        k(f"""s_and_b32 s27, s2, {ng-1}
        s_lshl_b32 s{sr_}, s27, {lr}
        s_bfe_u32 s27, s2, {(lr << 16) | 3}
        s_add_u32 s{sr_}, s{sr_}, s27
        s_bfe_u32 s27, s2, {((3-lg_) << 16) | lg_}
        s_lshl_b32 s{sc_}, s27, {5-lr}
        s_lshr_b32 s27, s2, {3+lr}
        s_add_u32 s{sc_}, s{sc_}, s27""")
    tmap(16, int(os.environ.get('R1', 8)), 8, 9); tmap(32, int(os.environ.get('R3', 8)), 10, 11); tmap(16, int(os.environ.get('R4', 8)), 44, 45)
    k("s_lshl_b32 s46, s44, 2\ns_add_u32 s46, s46, s7\ns_lshl_b32 s47, s44, 4\ns_add_u32 s47, s47, s45\ns_lshl_b32 s47, s47, 7")
    k(f"""s_lshl_b32 s24, s8, 2
    s_add_u32 s24, s24, s7
    s_lshl_b32 s25, s10, 1
    s_and_b32 s27, s4, 1
    s_add_u32 s25, s25, s27
    s_lshr_b32 s26, s4, 1
    s_lshl_b32 s5, s8, 4
    s_add_u32 s5, s5, s9
    s_lshl_b32 s5, s5, 7
    s_lshl_b32 s6, s10, 3
    s_add_u32 s6, s6, s11
    s_lshl_b32 s6, s6, 7
    s_lshr_b32 s51, s10, 1
    s_lshr_b32 s34, s5, 8
    s_bitcmp1_b32 s5, 7
    s_cselect_b32 s34, 127, s34
    s_lshl_b32 s40, s11, 16
    s_lshl_b32 s27, s26, 14
    s_add_u32 s40, s40, s27
    s_add_u32 s40, s40, {WO}
    s_mul_i32 s41, s45, {224*KB}
    s_add_u32 s41, s41, {WGU}
    s_mul_i32 s42, s11, {224*KB}
    s_mul_i32 s27, s4, {28*KB}
    s_add_u32 s42, s42, s27
    s_add_u32 s42, s42, {WD}
    v_add_u32 v14, 0x10000, v2
    v_add_u32 v15, 0x20000, v2
    s_waitcnt lgkmcnt(0)
""")
    poll(f"""v_min_u32 v5, 23, v1
    v_lshrrev_b32 v6, 3, v5
    v_and_b32 v5, 7, v5
    v_lshl_add_u32 v5, v6, 4, v5
    s_and_b32 s27, s9, 8
    s_add_u32 s27, s27, {64 + 256}
    v_add_u32 v5, s27, v5
    v_and_b32 v6, 3, v1
    s_lshl_b32 s27, s8, 2
    s_add_u32 s27, s27, 192
    v_add_u32 v6, s27, v6
    v_cmp_gt_u32 vcc, 32, v1
    s_nop 1
    v_cndmask_b32 v5, v6, v5, vcc
    v_lshlrev_b32 v5, 7, v5
    v_add_u32 v5, {F0C}, v5"""); k.stamp()
    k("s_cmp_ge_u32 s4, 4\ns_cbranch_scc1 p1_L")
    def ldsr(dst, off, tag):
        k.dsr(dst, [2, 14, 15][off >> 16], off & 0xffff, tag)
    def loads(dst, sbase, n, tag, fl=SC, step=1024, tags=None):
        for i in range(n):
            if (i*step) % 4096 == 0 or step > 1024: sadd(27, sbase, (i*step)//4096*4096 if step <= 1024 else i*step)
            k.bload(vr(dst+4*i,4), 2, W, 's27', (i*step) % 4096 if step <= 1024 else 0, tags(i) if tags else tag, fl=fl)
    def wo_loads(): loads(48, 40, 16, 'wo')
    from kb1 import p12
    p12(k, W, run, sadd, arrive, poll, ldsr, loads, wo_loads)
    XR, GA, A2, AC3, OFR = 8, 16, 24, 144, 112
    k(f"""v_lshlrev_b32 v7, 10, v3
    v_lshl_add_u32 v7, v4, 4, v7
    s_lshl_b32 s43, s25, 15
    s_lshl_b32 s27, s11, 7
    s_add_u32 s43, s43, s27
    s_lshl_b32 s27, s26, 5
    s_add_u32 s43, s43, s27
    v_lshlrev_b32 v12, 4, v4
    s_lshl_b32 s39, s11, 8
    s_lshl_b32 s27, s26, 6
    s_add_u32 s39, s39, s27
    s_add_u32 s28, s39, {MOD+4096}
    s_add_u32 s29, s39, {MOD+8192}""")
    k.bload(vr(XR,4), 7, 16, 's43', 0, 'e')
    for e in range(2):
        k.bload(vr(GA+4*e,4), 12, W, 's28', e*32, 'e', fl=SC); k.bload(vr(A2+4*e,4), 12, W, 's29', e*32, 'e', fl=SC)
    k("s_cmp_lt_u32 s4, 4\ns_cbranch_scc1 p3_a\ns_add_u32 s28, s42, 0x2000")
    loads(176, 28, 20, 'wd'); k("p3_a:"); k.vm.q = []
    k(f"s_lshl_b32 s28, s25, 15\ns_lshl_b32 s27, s26, 13\ns_add_u32 s28, s28, s27\ns_add_u32 s28, s28, {OF}")
    poll(row16(1, 51)); k.stamp()
    loads(OFR, 28, 8, None, fl=SC, tags=lambda i: f'o{i}')
    for s in range(8):
        k.vm.wait(f'o{s}')
        for nt in range(2):
            d = vr(AC3+16*nt,16); k.mfma32(d, vr(48+8*s+4*nt,4), vr(OFR+4*s,4), '0' if s == 0 else d)
    k(f"""s_and_b32 s27, s4, 1
    s_lshl_b32 s27, s27, 13
    s_lshl_b32 s28, s26, 11
    s_add_u32 s28, s28, s27
    s_add_u32 s28, s28, {RR}
    v_add_u32 v13, s28, v2
    s_lshl_b32 s28, s4, 13
    s_add_u32 s28, s28, {RR}
    v_permlane32_swap_b32 v{XR}, v{XR+2}
    v_permlane32_swap_b32 v{XR+1}, v{XR+3}
    s_nop 4""")
    for q in range(4):
        for e in range(2): k.dsw(13, vr(AC3+8*q+4*e,4), q*16384 + e*1024)
    k("v_add_u32 v13, s28, v2"); k.lg.all(); k("s_barrier")
    for q in range(4):
        for e in range(2): k.dsr(vr(AC3+8*q+4*e,4), 13, q*2048 + e*1024, f'r{q}')
    for q in range(1, 4):
        k.lg.wait(f'r{q}')
        for r in range(8): k(f"v_add_f32 v{AC3+r}, v{AC3+r}, v{AC3+8*q+r}")
    k("v_mov_b32 v36, 0\nv_mov_b32 v37, 0")
    for r in range(4):
        k(f"""v_lshlrev_b32 v32, 16, v{XR+r}
        v_and_b32 v33, 0xffff0000, v{XR+r}
        v_fma_f32 v32, v{AC3+2*r}, v{GA+2*r}, v32
        v_fma_f32 v33, v{AC3+2*r+1}, v{GA+2*r+1}, v33
        v_cvt_pk_bf16_f32 v{XR+r}, v32, v33
        v_lshlrev_b32 v32, 16, v{XR+r}
        v_and_b32 v33, 0xffff0000, v{XR+r}
        v_add_f32 v36, v36, v32
        v_fmac_f32 v37, v32, v32
        v_add_f32 v36, v36, v33
        v_fmac_f32 v37, v33, v33
        v_mul_f32 v32, v32, v{A2+2*r}
        v_mul_f32 v33, v33, v{A2+2*r+1}
        v_cvt_pk_bf16_f32 v{40+r}, v32, v33""")
    k(f"""s_lshl_b32 s28, s25, 15
    s_lshl_b32 s27, s11, 12
    s_add_u32 s28, s28, s27
    s_lshl_b32 s27, s26, 10
    s_add_u32 s28, s28, s27
    s_add_u32 s28, s28, {YF}
    v_permlane32_swap_b32 v40, v42
    v_permlane32_swap_b32 v41, v43""")
    k.bstore(vr(40,4), 2, W, 's28', 0, fl=SC)
    k.dsw(13, vr(36,2), 0, w=64); k.lg.all(); k("s_barrier")
    k(f"""s_cmp_ge_u32 s4, 2
    s_cbranch_scc1 p3_b""")
    for q in range(4): k.dsr(vr(32+2*q,2), 13, q*16384, w=64)
    k.lg.all()
    k(f"""v_add_f32 v32, v32, v34
    v_add_f32 v33, v33, v35
    v_add_f32 v36, v36, v38
    v_add_f32 v37, v37, v39
    v_add_f32 v32, v32, v36
    v_add_f32 v33, v33, v37
    v_mov_b32 v34, v32
    v_mov_b32 v35, v33
    s_lshl_b32 s28, s25, 11
    s_lshl_b32 s27, s11, 8
    v_permlane32_swap_b32 v34, v32
    v_permlane32_swap_b32 v35, v33
    s_add_u32 s28, s28, s27
    s_add_u32 s28, s28, {STB}
    v_add_f32 v32, v32, v34
    v_add_f32 v33, v33, v35
    v_lshlrev_b32 v34, 3, v3
    s_mov_b32 exec_hi, 0""")
    k.bstore(vr(32,2), 34, W, 's28', 0, w=2, fl=SC)
    k("s_mov_b32 exec_hi, -1")
    k("p3_b:")
    k.stamp()
    arrive(2, 6); k.vm.q = []
    from kb2 import p45
    p45(k, W, run, sadd, arrive, poll, ldsr, loads, row16)
    k("pb_kernel_end:\ns_endpgm")
    return k
```

```python
from lib import *
import struct, math
def f2u(x): return struct.unpack('<I', struct.pack('<f', x))[0]
SC = ' sc1'
RR = 96*KB
LK, LV, LQ, LU, LM, L1 = RR, RR+24*KB, RR+48*KB, RR+56*KB, RR+58*KB, RR+63*KB
def p12(k, W, run, sadd, arrive, poll, ldsr, loads, wo_loads):
    def ldsw(src, off, base):
        k.dsw(base + (off >> 16) - 1, src, off & 0xffff)
    k(f"s_lshl_b32 s28, s24, 15\ns_add_u32 s28, s28, {H1}")
    def hld(i):
        if i % 4 == 0: sadd(29, 28, i*KB)
        k.bload(vr(128+4*i,4), 2, W, 's29', (i % 4)*KB, f'h{i}', fl=SC)
    HP, NF, PF, MS = int(os.environ.get('HP', 20)), 8, 6, 96
    for i in range(HP): hld(i)
    seq = [(p, kc) for kc in range(32) for p in (1, 2)] + [(0, kc) for kc in range(32)]
    def rd(i): p, kc = seq[i]; ldsr(vr(64+4*(i % NF),4), p*32*KB + kc*KB, f'w{i}')
    k(f"""s_lshl_b32 s30, s9, 17
    s_lshl_b32 s27, s24, 10
    s_add_u32 s31, s30, s27
    s_add_u32 s30, s31, s27
    s_add_u32 s31, s31, {KF}
    s_add_u32 s30, s30, {VF}
    s_add_u32 s32, s31, 0x10000
    s_lshl_b32 s27, s7, 10
    v_add_u32 v8, s27, v14
    v_add_u32 v9, s27, v15
    v_add_u32 v10, s27, v8
    v_add_u32 v11, s27, v9
    s_mov_b32 s33, 0x{f2u(0.25*math.log2(math.e)):x}""")
    def kvepi():
        th = []
        for p in (1, 2):
            for r in range(8): th.append(f"v_cvt_pk_bf16_f32 v{MS+8*(p-1)+r}, v{16*p+2*r}, v{16*p+2*r+1}")
            for hh in range(2):
                src = vr(MS+8*(p-1)+4*hh,4)
                if p == 1:
                    th.append(lambda src=src, hh=hh: k.bstore(src, 2, W, f's{31+hh}', 0, fl=SC))
                    th.append(lambda src=src, hh=hh: ldsw(src, LK + (hh*12+8)*KB, 8))
                else:
                    th.append(lambda src=src, hh=hh: k.bstore(src, 2, W, 's30', hh*KB, fl=SC))
                    th.append(lambda src=src, hh=hh: ldsw(src, LV + (16+hh)*KB, 10))
        return th
    k("s_barrier")
    for q in range(PF): rd(q)
    fill = []
    for i, (p, kc) in enumerate(seq):
        if (i+PF) in (16, 32, 48, 64): k("s_barrier")
        if i+PF < 96: rd(i+PF)
        if p == 1: k.vm.wait(f'h{kc}')
        if i % 2 == 0: k.lg.wait(f'w{i+1}')
        d = vr([48,16,32][p],16); w = vr(64+4*(i % NF),4); h = vr(128+4*kc,4); c = '0' if kc == 0 else d
        if p < 2: k.mfma32(d, w, h, c)
        else: k.mfma32(d, h, w, c)
        if p == 2 and kc+HP < 32: hld(kc+HP)
        if i == 67: fill = kvepi()
        for x in fill[:2]: run(x)
        fill = fill[2:]
    k.stamp()
    k("s_nop 7\ns_nop 3")
    for r in range(16): k(f"v_mul_f32 v{48+r}, s33, v{48+r}")
    for r in range(8): k(f"v_cvt_pk_bf16_f32 v{64+r}, v{48+2*r}, v{49+2*r}")
    for hh in range(2): ldsw(vr(64+4*hh,4), LQ + hh*4*KB, 8)
    k.lg.all()
    k("s_branch p1_J\np1_L:")
    k.vm.q = []; k.lg.q = []
    k(f"s_mul_i32 s28, s9, {96*KB}\ns_lshl_b32 s29, s7, 11\ns_add_u32 s28, s28, s29\ns_add_u32 s28, s28, {WQ}")
    def wq(u):
        for o in ([p*32*KB + u*8*KB + i*KB for i in range(2) for p in (1, 2)] if u < 4 else [q*8*KB + i*KB for q in range(4) for i in range(2)]):
            k(f"s_add_u32 m0, s29, {o}"); sadd(27, 28, o); k.dma(2, W, 's27', f'u{u}')
    wq(0); wq(1)
    for u in range(5):
        if u+2 < 5: wq(u+2)
        k.vm.wait(f'u{u}')
        if u == 4:
            from ka import spin, F0C
            k(f"s_lshl_b32 s27, s7, 14\ns_add_u32 s27, s27, {F0C}\nv_lshlrev_b32 v5, 7, v1\nv_add_u32 v5, s27, v5\nv_add_u32 v7, 0x2000, v5")
            spin(k, "p1_f0", 5, 6, W); spin(k, "p1_f1", 7, 6, W)
        k("s_barrier")
    from ka import NONCE
    k(f"s_add_u32 s27, s2, s7\ns_cmp_lg_u32 s27, 0\ns_cbranch_scc1 p1_nn\nv_mov_b32 v5, {NONCE}\nv_mov_b32 v6, s60\ns_mov_b64 exec, 1\nbuffer_store_dword v6, v5, s[{W}:{W+3}], 0 offen sc1\ns_mov_b64 exec, -1\np1_nn:")
    k("v_mov_b32 v8, 0x3f803f80\nv_mov_b32 v9, v8\nv_mov_b32 v10, v8\nv_mov_b32 v11, v8")
    k.dsw(15, vr(8,4), L1 & 0xffff)
    k("s_cmp_ge_u32 s34, 112\ns_cbranch_scc1 uv_a")
    k(f"""s_lshl_b32 s28, s34, 15
    s_lshl_b32 s27, s7, 13
    s_add_u32 s28, s28, s27
    s_add_u32 s28, s28, {WGU}
    v_and_b32 v7, 1, v1
    v_lshlrev_b32 v7, 10, v7
    v_sub_u32 v7, {LM + 1024}, v7
    v_lshl_add_u32 v7, v4, 4, v7
    s_lshl_b32 s27, s7, 8
    v_add_u32 v7, s27, v7""")
    for i in range(2):
        k(f"s_mov_b32 m0, {LM + i*KB}\ns_mov_b32 s27, {MODH + 3072 + i*KB}"); k.dma(2, W, 's27', 'mh')
    loads(128, 28, 8, 'a'); k.vm.wait('mh')
    for c in range(8): k.dsr(vr(160+4*c,4), 7, c*32)
    k(f"v_lshlrev_b32 v7, 7, v3\nv_lshl_add_u32 v7, v4, 4, v7\ns_lshl_b32 s27, s7, 8\ns_add_u32 s27, s27, {LU}\nv_add_u32 v7, s27, v7")
    k.vm.all(); k.lg.all()
    for c in range(8): k.mfma32(vr(192,16), vr(128+4*c,4), vr(160+4*c,4), '0' if c == 0 else vr(192,16))
    k("s_nop 7\ns_nop 3\ns_mov_b32 exec_lo, 3\ns_mov_b32 exec_hi, 3")
    for q in range(4): k.dsw(7, vr(192+4*q,4), q*32)
    k("s_mov_b64 exec, -1\nuv_a:"); wo_loads(); k.lg.all()
    k("p1_J:")
    arrive(0, 5); k.vm.q = []
    SB = 160
    k(f"s_cmp_ge_u32 s34, 112\ns_cbranch_scc1 uv_b\ns_cmp_lg_u32 s4, 4\ns_cbranch_scc1 uv_b\nv_lshlrev_b32 v7, 2, v3\nv_add_u32 v7, {LU}, v7")
    for w in range(4):
        for n in range(2): k.dsr(vr(SB+2*w+n), 7, w*256 + n*128, w=32)
    k.lg.all()
    for w in range(1, 4): k(f"v_add_f32 v{SB}, v{SB}, v{SB+2*w}\nv_add_f32 v{SB+1}, v{SB+1}, v{SB+2*w+1}")
    for n in range(2):
        x = SB+n; t = SB+2+3*n
        k(f"v_and_b32 v{t}, 0xffff0000, v{x}\nv_sub_f32 v{x}, v{x}, v{t}\nv_and_b32 v{t+1}, 0xffff0000, v{x}\nv_sub_f32 v{t+2}, v{x}, v{t+1}")
    k(f"""v_cvt_pk_bf16_f32 v{SB+8}, v{SB+2}, v{SB+3}
    v_cvt_pk_bf16_f32 v{SB+9}, v{SB+4}, v{SB+5}
    v_cvt_pk_bf16_f32 v{SB+10}, v{SB+6}, v{SB+7}
    v_mov_b32 v{SB+11}, 0
    s_lshl_b32 s27, s34, 10
    s_add_u32 s27, s27, {UVB}
    buffer_store_dwordx4 v[{SB+8}:{SB+11}], v2, s[{W}:{W+3}], s27 offen sc1
    uv_b:""")
    OA, QR, VR, M0, M8, NM, SB, KR = 16, 32, 36, 112, 128, 144, 160, 208
    k(f"v_lshlrev_b32 v7, 2, v4\nv_sub_u32 v7, v3, v7\ns_mov_b32 s31, 0x{f2u(-1e30):x}\nv_mov_b32 v8, s31\nv_mov_b32 v9, 0")
    for r in range(16):
        k(f"v_cmp_gt_i32 s[{52+2*(r%4)}:{53+2*(r%4)}], {(r//4)*8 + r % 4}, v7")
        if r % 4 == 3:
            for q in range(r-3, r+1):
                m = f"s[{52+2*(q%4)}:{53+2*(q%4)}]"
                k(f"v_cndmask_b32 v{M0+q}, v8, v9, {m}\nv_cndmask_b32 v{M8+q}, v9, v8, {m}")
    k(f"""s_lshl_b32 s28, s8, 2
    s_add_u32 s28, s28, s4
    s_sub_u32 s28, s28, 8
    s_max_i32 s28, s28, 0
    s_lshl_b32 s27, s9, 17
    s_lshl_b32 s35, s28, 10
    s_add_u32 s36, s35, s27
    s_add_u32 s35, s36, s35
    s_add_u32 s36, s36, {KF}
    s_add_u32 s35, s35, {VF}
    s_lshl_b32 s38, s4, 10
    s_lshr_b32 s37, s4, 2
    s_mul_i32 s27, s37, {12*KB}
    s_lshl_b32 s28, s7, 10
    s_add_u32 s27, s27, s28
    s_add_u32 s27, s27, {LK}
    v_add_u32 v13, s27, v2
    s_lshl_b32 s27, s37, 8
    s_lshl_b32 s28, s7, 11
    s_add_u32 s27, s27, s28
    s_add_u32 s27, s27, {LV}
    v_add_u32 v12, s27, v2
    v_cmp_gt_u32 vcc, 16, v3
    v_mov_b32 v10, 0x400
    v_mov_b32 v11, {L1}
    v_cndmask_b32 v10, 0, v10, vcc
    v_cndmask_b32 v12, v11, v12, vcc
    v_add_u32 v11, s38, v15""")
    poll(f"""s_sub_u32 s27, s5, 2048
    s_cselect_b32 s27, s5, s27
    s_sub_u32 s28, s5, 4096
    s_cselect_b32 s28, s5, s28
    v_mov_b32 v5, s27
    v_mov_b32 v6, s28
    v_cndmask_b32 v5, v5, v6, vcc
    v_add_u32 v5, {CNT}, v5"""); k.stamp()
    for hh in range(2):
        k(f"s_add_u32 m0, s38, {LK + hh*12*KB}"); sadd(27, 36, hh*64*KB); k.dma(2, W, 's27', 'kv', fl=SC)
    k(f"s_lshl_b32 s38, s38, 1")
    for hh in range(2):
        k(f"s_add_u32 m0, s38, {LV + hh*KB}"); sadd(27, 35, hh*KB); k.dma(2, W, 's27', 'kv', fl=SC)
    k.dsr(vr(QR,4), 11, LQ & 0xffff)
    k.vm.all()
    k.vm.q = []; k.lg.all(); k("s_barrier")
    k(f"s_mul_i32 s29, s4, {12*KB}\ns_add_u32 s28, s41, s29\ns_mov_b32 vcc_hi, 0\ns_mov_b32 vcc_lo, s37")
    def gu(c): k(f"s_add_u32 m0, s29, {c*KB}"); sadd(27, 28, c*KB); k.dma(2, W, 's27', 'gu')
    def wo(i):
        if i % 4 == 0: sadd(30, 40, i*KB)
        lb = f"wo{k.uid()}"
        k(f"s_cbranch_vccnz {lb}"); k.bload(vr(48+4*i,4), 2, W, 's30', (i % 4)*KB, 'wo', fl=SC); k(f"{lb}:")
    pre = [x for i in range(16) for x in ([(wo, i), (gu, i)] if i < 12 else [(wo, i)])]
    def pf(n=1):
        for _ in range(n):
            if pre: f, i = pre.pop(0); f(i)
    def mx(b, first=False):
        for i in range(8):
            a = 8 + i % 2
            k(f"v_max_f32 v{a}, v{b+2*i}, v{b+2*i+1}" if first and i < 2 else f"v_max3_f32 v{a}, v{a}, v{b+2*i}, v{b+2*i+1}")
    def fin_max(m0):
        k("v_max_f32 v8, v8, v9\nv_mov_b32 v9, v8\ns_nop 1\nv_permlane32_swap_b32 v9, v8\ns_nop 1\nv_max_f32 v8, v8, v9")
        if m0:
            for r in range(16): k(f"v_sub_f32 v{M0+r}, v{M0+r}, v8")
        for r in range(16): k(f"v_sub_f32 v{NM+r}, 0, v8")
        for r in range(16): k(f"v_sub_f32 v{M8+r}, v{M8+r}, v8")
    def vrd(c): k.dsr(vr(VR+4*(c % 3),4), 12, 0, f'v{c}'); k("v_add_u32 v12, v12, v10")
    k("s_cmp_lt_u32 s8, 2\ns_cbranch_scc1 p2_slow")
    for j in range(9): k.dsr(vr(KR+4*j,4), 13, j*KB, f'k{j}')
    def sb(j): return SB + 16*(j % 3)
    def qk(j, c): k.mfma32(vr(sb(j),16), vr(KR+4*j,4), vr(QR,4), c)
    def c1(j): return vr(M0,16) if j == 0 else vr(M8,16) if j == 8 else '0'
    def c2(j): return vr(M0,16) if j == 0 else vr(M8,16) if j == 8 else vr(NM,16)
    for j in range(2): k.lg.wait(f'k{j}'); qk(j, c1(j))
    pf(2); k('s_nop 2')
    for j in range(9):
        if j+2 < 9: k.lg.wait(f'k{j+2}'); qk(j+2, c1(j+2))
        if j == 0: k("s_nop 3")
        if j == 8: vrd(0); vrd(1)
        mx(sb(j), j == 0); pf()
    fin_max(True)
    qk(0, c2(0)); qk(1, c2(1)); pf(); k("s_nop 7\ns_nop 1")
    def pv(c):
        k.lg.wait(f'v{c}')
        k.mfma32(vr(OA,16), vr(VR+4*(c % 3),4), vr(sb(c//2)+8*(c % 2),4), '0' if c == 0 else vr(OA,16))
    for c in range(18):
        b = sb(c//2) + 8*(c % 2)
        for r in range(8): k(f"v_exp_f32 v{b+r}, v{b+r}")
        if c > 0: pv(c-1)
        if c % 2 == 0 and c//2+2 < 9: qk(c//2+2, c2(c//2+2))
        if c+2 < 18: vrd(c+2)
        pf(2 if c < 4 else 1)
        for r in range(4): k(f"v_cvt_pk_bf16_f32 v{b+r}, v{b+2*r}, v{b+2*r+1}")
    k("s_nop 1"); pv(17)
    k("s_branch p2_join\np2_slow:")
    assert not pre
    for c in range(8): wo(c)
    k(f"s_sub_u32 s30, 8, s24\ns_lshl_b32 s27, s30, 10\nv_add_u32 v13, s27, v13\nv_mov_b32 v7, v13\ns_lshl_b32 s27, s30, 1\nv_mad_u32_u24 v12, v10, s27, v12\nv_mov_b32 v8, s31\nv_mov_b32 v9, s31")
    for r in range(16): k(f"v_mov_b32 v{OA+r}, 0")
    for ps in range(2):
        k(f"s_mov_b32 s32, s30\np2_l{ps}:")
        k.dsr(vr(KR,4), 13 if ps == 0 else 7, 0)
        k(f"v_add_u32 v{13 if ps == 0 else 7}, 0x400, v{13 if ps == 0 else 7}")
        if ps: vrd(0); vrd(1)
        k.lg.all()
        k(f"s_cmp_eq_u32 s32, 8\ns_cbranch_scc1 p2_m{ps}")
        k.mfma32(vr(SB,16), vr(KR,4), vr(QR,4), vr(NM,16) if ps else '0')
        k(f"s_branch p2_n{ps}\np2_m{ps}:")
        k.mfma32(vr(SB,16), vr(KR,4), vr(QR,4), vr(M8,16))
        k(f"p2_n{ps}:\ns_nop 7\ns_nop 3")
        if ps == 0: mx(SB)
        else:
            for r in range(16): k(f"v_exp_f32 v{SB+r}, v{SB+r}")
            k("s_nop 0")
            for r in range(8): k(f"v_cvt_pk_bf16_f32 v{SB+16+r}, v{SB+2*r}, v{SB+2*r+1}")
            k("s_nop 1")
            for c in range(2): k.mfma32(vr(OA,16), vr(VR+4*c,4), vr(SB+16+4*c,4), vr(OA,16))
        k(f"s_add_u32 s32, s32, 1\ns_cmp_le_u32 s32, 8\ns_cbranch_scc1 p2_l{ps}")
        if ps == 0:
            fin_max(False)
            k('s_mov_b32 s49, s30')
            for c in range(8, 16): wo(c)
            k('s_mov_b32 s30, s49')
    for c in range(12): gu(c)
    k(f"""p2_join:
    s_lshl_b32 s28, s24, 15
    s_lshl_b32 s27, s9, 11
    s_add_u32 s28, s28, s27
    s_lshl_b32 s27, s37, 10
    s_add_u32 s28, s28, s27
    s_add_u32 s28, s28, {OF}
    s_nop 5
    v_rcp_f32 v8, v{OA+8}
    s_nop 0""")
    k.lg.q = []
    for r in range(8): k(f"v_mul_f32 v{OA+r}, v{OA+r}, v8")
    for r in range(4): k(f"v_cvt_pk_bf16_f32 v{OA+r}, v{OA+2*r}, v{OA+2*r+1}")
    k.bstore(vr(OA,4), 2, W, 's28', 0, fl=SC)
    k.stamp()
    arrive(1, 5); k.vm.q = []
```

```python
from lib import *
from k01 import lane_setup, gemv_tile, ln_scalars, LOG2E
NG, NL, NU, NQ, NO, ND = 192, 64, 112, 48, 16, 56
AF = ' sc1'
RR = 96*KB; LC = RR + 32*KB; LCN = RR + 62*KB
F0C, F0L = CNT + 4*32768, CNT + 5*32768
NONCE = 32*KB
mix = 's_mul_i32 s60, s60, 0x9e3779b1\ns_add_u32 s60, s60, 0x7f4a7c15'
def spin(k, lab, vaddr, vtmp, srd, off=0):
    k(f"""s_mov_b32 s50, 0x40000
    {lab}:
    buffer_load_dword v{vtmp}, v{vaddr}, s[{srd}:{srd+3}], 0 offen offset:{off} sc1
    s_waitcnt vmcnt(0)
    v_cmp_ne_u32 vcc, s60, v{vtmp}
    s_cbranch_vccz {lab}e
    s_sleep 1
    s_sub_u32 s50, s50, 1
    s_cbranch_scc0 {lab}
    {lab}e:""")
def gemv(k, mid):
    k.srds(dict(wmod=8, c=12))
    k("s_and_b32 s24, s2, 7\ns_lshl_b32 s24, s24, 3\ns_bfe_u32 s25, s2, 0x30003\ns_add_u32 s24, s24, s25\ns_and_b32 s25, s2, 0xc0\ns_add_u32 s24, s24, s25\ns_lshl_b32 s25, s24, 5")
    def pre():
        k("v_lshlrev_b32 v8, 4, v3\ns_lshl_b32 s26, s4, 8")
        for s in range(4): k.bload(vr(16+4*s,4), 8, 12, 's26', s*64, 'c')
    def bfrag():
        mid(); k.vm.wait('c')
        k(f"s_mov_b32 s27, 0x{LOG2E ^ 0x80000000:x}")
        for r in range(16):
            k(f"""v_lshlrev_b32 v32, 16, v{16+r}
            v_and_b32 v33, 0xffff0000, v{16+r}
            v_mul_f32 v34, s27, v32
            v_mul_f32 v35, s27, v33
            v_exp_f32 v34, v34
            v_exp_f32 v35, v35
            s_nop 0
            v_add_f32 v34, 1.0, v34
            v_add_f32 v35, 1.0, v35
            v_rcp_f32 v34, v34
            v_rcp_f32 v35, v35
            s_nop 0
            v_mul_f32 v34, v34, v32
            v_mul_f32 v35, v35, v33
            v_cvt_pk_bf16_f32 v{16+r}, v34, v35""")
    gemv_tile(k, 8, 6144, 25, bfrag, pre, LC, 'pa_gx')
    k.stamp()
    for r in range(4): k.bfround(40+r)
    k("s_lshr_b32 s26, s24, 5\ns_cmp_eq_u32 s26, 1\ns_cselect_b32 s27, 1.0, 0\ns_cmp_eq_u32 s26, 4\ns_cselect_b32 s27, 1.0, s27")
    for r in range(4):
        k(f"v_add_f32 v{40+r}, s27, v{40+r}"); k.bfround(40+r)
    k("v_lshlrev_b32 v8, 4, v3\ns_lshl_b32 s26, s24, 6\nv_cmp_eq_u32 vcc, 0, v2\ns_and_saveexec_b64 s[28:29], vcc")
    k.bstore(vr(40,4), 8, 16, 's26', MOD, fl=' sc1')
    k(f"v_cvt_pk_bf16_f32 v44, v40, v41\nv_cvt_pk_bf16_f32 v45, v42, v43\nv_lshlrev_b32 v8, 3, v3\ns_lshl_b32 s26, s24, 5\ns_add_u32 s26, s26, {MODH}")
    k.bstore(vr(44,2), 8, 16, 's26', 0, w=2, fl=AF)
    k(f"v_mov_b32 v9, s60\nv_mov_b32 v8, {F0C}\ns_lshl_b32 s27, s24, 7\ns_mov_b64 exec, 1\ns_waitcnt vmcnt(0)\nbuffer_store_dword v9, v8, s[16:19], s27 offen sc1\ns_mov_b64 exec, -1\ns_branch p0_s2\npa_gx:")
def job_issue(k):
    k(f"s_mov_b32 s30, 0\ns_cmp_ge_u32 s20, {4*NU}\ns_cbranch_scc1 pa_r2")
    k.srds(dict(wg=8, wu=12))
    k(f"""s_and_b32 s21, s20, 31
    s_lshr_b32 s22, s20, 5
    s_lshl_b32 s24, s22, 8
    s_mov_b32 s25, s24
    s_mov_b32 s26, 3584
    s_mul_i32 s27, s22, {8*32*KB}
    s_lshl_b32 s23, s21, 10
    s_add_u32 s27, s27, s23
    s_add_u32 s27, s27, {WGU}
    s_mov_b32 s28, {64*KB}
    s_mov_b32 s37, {32*KB}
    s_mov_b32 s29, 0
    s_mov_b32 s30, 1
    s_branch pa_go
    pa_r2:
    s_sub_u32 s20, s20, {4*NU}
    s_mov_b32 s26, 1024
    s_mov_b32 s37, 1024
    s_mov_b32 s29, 1
    s_cmp_ge_u32 s20, {4*NO}
    s_cbranch_scc1 pa_r3""")
    k.srds(dict(wo=8)); k.srds(dict(wo=12))
    k(f"s_mov_b32 s28, {64*KB}\ns_mov_b32 s27, {WO}\ns_branch pa_r4\npa_r3:\ns_sub_u32 s20, s20, {4*NO}")
    k.srds(dict(wd=8)); k.srds(dict(wd=12))
    k(f"""s_mov_b32 s28, {224*KB}
    s_mov_b32 s27, {WD}
    pa_r4:
    s_lshr_b32 s21, s20, 1
    s_and_b32 s22, s20, 1
    s_lshl_b32 s24, s22, 9
    s_add_u32 s25, s24, 256
    s_lshl_b32 s23, s22, 2
    s_mul_i32 s23, s23, s28
    s_add_u32 s27, s27, s23
    s_lshl_b32 s23, s21, 11
    s_add_u32 s27, s27, s23
    pa_go:""")
    k("""s_lshl_b32 s31, s26, 4
    s_mul_i32 s31, s31, s21
    s_add_u32 s24, s24, s31
    s_add_u32 s25, s25, s31
    s_lshl_b32 s31, s26, 2
    v_mul_lo_u32 v5, v3, s26
    v_lshl_add_u32 v5, v2, 4, v5
    s_lshl_b32 s6, s7, 13
    s_add_u32 s6, s6, 0x18000
    s_waitcnt lgkmcnt(0)""")
    k("v_bfe_u32 v6, v1, 1, 4\nv_mul_lo_u32 v6, v6, s26\nv_and_b32 v7, 1, v1\nv_lshl_add_u32 v6, v7, 7, v6\nv_mov_b32 v13, v5\ns_mov_b32 s55, s30")
    for hf in range(2): k(f"buffer_load_dword v{62+hf}, v6, s[{8+4*hf}:{11+4*hf}], s{24+hf} offen")
def job_dma(k):
    for p in range(4):
        for hf in range(2):
            k(f"s_add_u32 m0, s6, {hf*4096 + p*1024}\ns_nop 0")
            k.dma(13, 8+4*hf, f's{24+hf}', 'w')
        if p < 3: k("s_add_u32 s24, s24, s31\ns_add_u32 s25, s25, s31")
    k("""v_lshrrev_b32 v6, 1, v3
    s_sub_u32 s22, 3, s29
    v_lshlrev_b32 v6, s22, v6
    v_lshrrev_b32 v7, 2, v2
    v_add_u32 v6, v6, v7
    v_lshlrev_b32 v6, 8, v6
    v_and_b32 v7, 3, v2
    v_lshl_add_u32 v6, v7, 3, v6
    v_and_b32 v7, 1, v3
    s_cmp_eq_u32 s30, 1
    s_cselect_b32 s22, 12, 5
    v_lshl_add_u32 v6, v7, s22, v6
    v_add_u32 v6, s6, v6
    s_lshl_b32 s22, 0x400, s29
    v_add_u32 v7, s22, v6
    v_mov_b32 v12, v6
    v_mov_b32 v13, v7
    s_mov_b32 s52, s27
    s_mov_b32 s53, s28
    s_mov_b32 s54, s37
    s_mov_b32 s55, s30""")
def job_finish(k, W, R):
    k("s_waitcnt vmcnt(0)\ns_cmp_eq_u32 s55, 1\ns_cbranch_scc1 pa_tg")
    for gu in range(2):
        for c in range(8):
            o = c*32 if gu else (c//4)*4096 + (c % 4)*64
            k.trd(vr(R+4*c,2), 12, o); k.trd(vr(R+2+4*c,2), 13, o)
        k("s_branch pa_tj\npa_tg:" if gu == 0 else "pa_tj:")
    k.lg.all()
    for c in range(8):
        if c % 2: k("s_add_u32 s27, s52, s54\ns_add_u32 s52, s52, s53")
        k.bstore(vr(R+4*c,4), 2, W, 's27' if c % 2 else 's52', 0, fl=AF)
```

```python
from lib import *
from k01 import ln_scalars, LOG2E
import struct, math
def f2u(x): return struct.unpack('<I', struct.pack('<f', x))[0]
SC = ' sc1'
RR = 96*KB
def kb():
    k = Kern(NAME + "_kernel", 256, 512, 163840, 256)
    W = 12
    def run(x): k(x) if isinstance(x, str) else x()
    def sadd(d, b, imm): k(f"s_add_u32 s{d}, s{b}, {imm}")
    def arrive(ph, sidx):
        k.vm.all(); k("s_barrier")
        lab = f"arr{k.uid()}"
        k(f"s_cmp_lg_u32 s4, 0\ns_cbranch_scc1 {lab}\ns_mov_b64 exec, 1\nv_mov_b32 v5, {CNT + ph*32768}\nv_mov_b32 v6, s60")
        k(f"buffer_store_dword v6, v5, s[{W}:{W+3}], s{sidx} offen sc1\ns_mov_b64 exec, -1\n{lab}:")
    def poll(addr):
        lab = f"pol{k.uid()}"
        k(f"s_cmp_lg_u32 s4, 3\ns_cbranch_scc1 {lab}e\ns_mov_b32 s50, 0x40000")
        k(addr)
        k(f"""{lab}:
        buffer_load_dword v6, v5, s[{W}:{W+3}], 0 offen sc1
        s_waitcnt vmcnt(0)
        v_cmp_ne_u32 vcc, s60, v6
        s_cbranch_vccz {lab}e
        s_sub_u32 s50, s50, 1
        s_cbranch_scc0 {lab}
        {lab}e:
        s_barrier""")
    def row16(ph, srow):
        return f"s_lshl_b32 s27, s{srow}, 11\ns_add_u32 s27, s27, {CNT + ph*32768}\nv_and_b32 v5, 15, v1\nv_lshlrev_b32 v5, 7, v5\nv_add_u32 v5, s27, v5"
    k("s_cmp_ge_u32 s2, 256\ns_cbranch_scc1 pb_kernel_end")
    k.stamp()
    def tmap(nr, R, sr_, sc_):
        lr = R.bit_length()-1; ng = nr//R; lg_ = ng.bit_length()-1
        k(f"""s_and_b32 s27, s2, {ng-1}
        s_lshl_b32 s{sr_}, s27, {lr}
        s_bfe_u32 s27, s2, {(lr << 16) | 3}
        s_add_u32 s{sr_}, s{sr_}, s27
        s_bfe_u32 s27, s2, {((3-lg_) << 16) | lg_}
        s_lshl_b32 s{sc_}, s27, {5-lr}
        s_lshr_b32 s27, s2, {3+lr}
        s_add_u32 s{sc_}, s{sc_}, s27""")
    from ka import F0C
    from kb0 import phase0
    phase0(k, tmap, int(os.environ.get('R1', 8))); k.stamp()
    k.srds(dict(ws=W, x=16, out=20))
    k("""v_and_b32 v1, 63, v0
    v_lshrrev_b32 v4, 6, v0
    v_lshlrev_b32 v2, 4, v1
    v_readfirstlane_b32 s4, v4
    v_and_b32 v3, 31, v0
    v_bfe_u32 v4, v0, 5, 1
    s_and_b32 s7, s4, 3""")
    tmap(16, int(os.environ.get('R1', 8)), 8, 9); tmap(32, int(os.environ.get('R3', 8)), 10, 11); tmap(16, int(os.environ.get('R4', 8)), 44, 45)
    k("s_lshl_b32 s46, s44, 2\ns_add_u32 s46, s46, s7\ns_lshl_b32 s47, s44, 4\ns_add_u32 s47, s47, s45\ns_lshl_b32 s47, s47, 7")
    k(f"""s_lshl_b32 s24, s8, 2
    s_add_u32 s24, s24, s7
    s_lshl_b32 s25, s10, 1
    s_and_b32 s27, s4, 1
    s_add_u32 s25, s25, s27
    s_lshr_b32 s26, s4, 1
    s_lshl_b32 s5, s8, 4
    s_add_u32 s5, s5, s9
    s_lshl_b32 s5, s5, 7
    s_lshl_b32 s6, s10, 3
    s_add_u32 s6, s6, s11
    s_lshl_b32 s6, s6, 7
    s_lshr_b32 s51, s10, 1
    s_lshr_b32 s34, s6, 8
    s_bitcmp1_b32 s6, 7
    s_cselect_b32 s34, 127, s34
    s_lshl_b32 s40, s11, 16
    s_lshl_b32 s27, s26, 14
    s_add_u32 s40, s40, s27
    s_add_u32 s40, s40, {WO}
    s_mul_i32 s41, s45, {224*KB}
    s_add_u32 s41, s41, {WGU}
    s_mul_i32 s42, s11, {224*KB}
    s_mul_i32 s27, s4, {28*KB}
    s_add_u32 s42, s42, s27
    s_add_u32 s42, s42, {WD}
    v_add_u32 v14, 0x10000, v2
    v_add_u32 v15, 0x20000, v2
    s_waitcnt lgkmcnt(0)
""")
    poll(f"v_lshlrev_b32 v5, 7, v1\nv_add_u32 v5, {F0C}, v5"); k.stamp()
    def ldsr(dst, off, tag):
        k.dsr(dst, [2, 14, 15][off >> 16], off & 0xffff, tag)
    def loads(dst, sbase, n, tag, fl=SC, step=1024, tags=None):
        for i in range(n):
            if (i*step) % 4096 == 0 or step > 1024: sadd(27, sbase, (i*step)//4096*4096 if step <= 1024 else i*step)
            k.bload(vr(dst+4*i,4), 2, W, 's27', (i*step) % 4096 if step <= 1024 else 0, tags(i) if tags else tag, fl=fl)
    def wo_loads(): loads(48, 40, 16, 'wo')
    from kb1 import p12
    p12(k, W, run, sadd, arrive, poll, ldsr, loads, wo_loads)
    XR, GA, A2, AC3, OFR = 8, 16, 24, 144, 112
    k(f"""v_lshlrev_b32 v7, 10, v3
    v_lshl_add_u32 v7, v4, 4, v7
    s_lshl_b32 s43, s25, 15
    s_lshl_b32 s27, s11, 7
    s_add_u32 s43, s43, s27
    s_lshl_b32 s27, s26, 5
    s_add_u32 s43, s43, s27
    v_lshlrev_b32 v12, 4, v4
    s_lshl_b32 s39, s11, 8
    s_lshl_b32 s27, s26, 6
    s_add_u32 s39, s39, s27
    s_add_u32 s28, s39, {MOD+4096}
    s_add_u32 s29, s39, {MOD+8192}""")
    k.bload(vr(XR,4), 7, 16, 's43', 0, 'e')
    for e in range(2):
        k.bload(vr(GA+4*e,4), 12, W, 's28', e*32, 'e', fl=SC); k.bload(vr(A2+4*e,4), 12, W, 's29', e*32, 'e', fl=SC)
    from kb1 import uvjob
    uvjob(k, W, loads)
    k(f"s_lshl_b32 s28, s25, 15\ns_lshl_b32 s27, s26, 13\ns_add_u32 s28, s28, s27\ns_add_u32 s28, s28, {OF}")
    poll(row16(1, 51)); k.stamp()
    loads(OFR, 28, 8, None, fl=SC, tags=lambda i: f'o{i}')
    for s in range(8):
        k.vm.wait(f'o{s}')
        for nt in range(2):
            d = vr(AC3+16*nt,16); k.mfma32(d, vr(48+8*s+4*nt,4), vr(OFR+4*s,4), '0' if s == 0 else d)
    k("s_cmp_lt_u32 s4, 4\ns_cbranch_scc1 p3_a\ns_add_u32 s28, s42, 0x2000")
    loads(176, 28, 20, 'wd'); k("p3_a:"); k.vm.q = []
    k(f"""s_and_b32 s27, s4, 1
    s_lshl_b32 s27, s27, 13
    s_lshl_b32 s28, s26, 11
    s_add_u32 s28, s28, s27
    s_add_u32 s28, s28, {RR}
    v_add_u32 v13, s28, v2
    s_lshl_b32 s28, s4, 13
    s_add_u32 s28, s28, {RR}
    v_permlane32_swap_b32 v{XR}, v{XR+2}
    v_permlane32_swap_b32 v{XR+1}, v{XR+3}
    s_nop 4""")
    for q in range(4):
        for e in range(2): k.dsw(13, vr(AC3+8*q+4*e,4), q*16384 + e*1024)
    k("v_add_u32 v13, s28, v2"); k.lg.all(); k("s_barrier")
    for q in range(4):
        for e in range(2): k.dsr(vr(AC3+8*q+4*e,4), 13, q*2048 + e*1024, f'r{q}')
    for q in range(1, 4):
        k.lg.wait(f'r{q}')
        for r in range(0, 8, 2): k(f"v_pk_add_f32 v[{AC3+r}:{AC3+r+1}], v[{AC3+r}:{AC3+r+1}], v[{AC3+8*q+r}:{AC3+8*q+r+1}]")
    k("v_mov_b32 v36, 0\nv_mov_b32 v37, 0")
    for r in range(4):
        k(f"""v_lshlrev_b32 v32, 16, v{XR+r}
        v_and_b32 v33, 0xffff0000, v{XR+r}
        v_fma_f32 v32, v{AC3+2*r}, v{GA+2*r}, v32
        v_fma_f32 v33, v{AC3+2*r+1}, v{GA+2*r+1}, v33
        v_cvt_pk_bf16_f32 v{XR+r}, v32, v33
        v_lshlrev_b32 v32, 16, v{XR+r}
        v_and_b32 v33, 0xffff0000, v{XR+r}
        v_add_f32 v36, v36, v32
        v_fmac_f32 v37, v32, v32
        v_add_f32 v36, v36, v33
        v_fmac_f32 v37, v33, v33
        v_mul_f32 v32, v32, v{A2+2*r}
        v_mul_f32 v33, v33, v{A2+2*r+1}
        v_cvt_pk_bf16_f32 v{40+r}, v32, v33""")
    k(f"""s_lshl_b32 s28, s25, 15
    s_lshl_b32 s27, s11, 12
    s_add_u32 s28, s28, s27
    s_lshl_b32 s27, s26, 10
    s_add_u32 s28, s28, s27
    s_add_u32 s28, s28, {YF}
    v_permlane32_swap_b32 v40, v42
    v_permlane32_swap_b32 v41, v43""")
    k.bstore(vr(40,4), 2, W, 's28', 0, fl=SC)
    k.dsw(13, vr(36,2), 0, w=64); k.lg.all(); k("s_barrier")
    k(f"""s_cmp_ge_u32 s4, 2
    s_cbranch_scc1 p3_b""")
    for q in range(4): k.dsr(vr(32+2*q,2), 13, q*16384, w=64)
    k.lg.all()
    k(f"""v_add_f32 v32, v32, v34
    v_add_f32 v33, v33, v35
    v_add_f32 v36, v36, v38
    v_add_f32 v37, v37, v39
    v_add_f32 v32, v32, v36
    v_add_f32 v33, v33, v37
    v_mov_b32 v34, v32
    v_mov_b32 v35, v33
    s_lshl_b32 s28, s25, 11
    s_lshl_b32 s27, s11, 8
    v_permlane32_swap_b32 v34, v32
    v_permlane32_swap_b32 v35, v33
    s_add_u32 s28, s28, s27
    s_add_u32 s28, s28, {STB}
    v_add_f32 v32, v32, v34
    v_add_f32 v33, v33, v35
    v_lshlrev_b32 v34, 3, v3
    s_mov_b32 exec_hi, 0""")
    k.bstore(vr(32,2), 34, W, 's28', 0, w=2, fl=SC)
    k("s_mov_b32 exec_hi, -1")
    k("p3_b:")
    k.stamp()
    arrive(2, 6); k.vm.q = []
    from kb2 import p45
    p45(k, W, run, sadd, arrive, poll, ldsr, loads, row16)
    k("pb_kernel_end:\ns_endpgm")
    return k
```

```python
from lib import *
from k01 import lane_setup, ln_scalars
from ka import gemv, job_issue, job_dma, job_finish, NONCE, mix, RR
LS = RR + 54*KB
def phase0(k, tmap, R1):
    k.srds(dict(ws=16, x=20, wqkv=40))
    lane_setup(k)
    tmap(16, R1, 44, 45)
    k(f"""s_and_b32 s46, s4, 3
    s_lshr_b32 s47, s4, 2
    s_lshl_b32 s48, s44, 2
    s_add_u32 s48, s48, s46
    s_lshl_b32 s48, s48, 15
    s_lshl_b32 s27, s47, 9
    s_add_u32 s48, s48, s27
    v_and_b32 v10, 31, v1
    v_lshrrev_b32 v12, 5, v1
    v_xor_b32 v11, v10, v12
    v_lshlrev_b32 v11, 4, v11
    v_lshl_add_u32 v11, v12, 10, v11
    s_lshl_b32 s49, s4, 14
    s_mov_b32 s55, -1
    s_waitcnt lgkmcnt(0)
    s_load_dword s60, s[16:17], {NONCE}""")
    def xl():
        for i in range(16):
            k(f"s_add_u32 m0, s49, {i*KB}\ns_add_u32 s39, s48, {i*2048}\nv_xor_b32 v14, {(2*i & 15)*16}, v11"); k.dma(14, 20, 's39', 'x')
    k("s_cmp_ge_u32 s4, 4\ns_cbranch_scc1 p0_ng\ns_cmp_ge_u32 s2, 192\ns_cbranch_scc1 p0_ng")
    def mid(): xl(); k(mix)
    gemv(k, mid)
    def stage(u):
        k.nst = 3; k.stamp()
        k("""v_and_b32 v14, 15, v10
        v_xor_b32 v14, v14, v12
        v_lshlrev_b32 v14, 4, v14
        v_lshl_add_u32 v14, v10, 9, v14
        v_add_u32 v14, s49, v14""")
        for c in range(16): k(f"v_xor_b32 v15, {c*32}, v14\nds_read_b128 v[{64+4*c}:{67+4*c}], v15")
        k(f"""v_lshrrev_b32 v5, 2, v1
        v_mul_u32_u24 v5, 3072, v5
        v_and_b32 v6, 3, v1
        v_lshl_add_u32 v5, v6, 4, v5
        s_and_b32 s38, s4, 1
        s_mul_i32 s38, s38, {256*3072}
        s_lshr_b32 s39, s4, 1
        s_lshl_b32 s39, s39, 10
        s_add_u32 s38, s38, s39
        s_lshl_b32 s39, s45, 6
        s_add_u32 s38, s38, s39
        s_waitcnt lgkmcnt(0)
        s_cmp_ge_u32 s4, 6
        s_cselect_b32 vcc_lo, 1, 0
        s_mov_b32 vcc_hi, 0""")
        k("v_mov_b32 v16, 0\nv_mov_b32 v17, 0\nv_mov_b32 v18, 0\nv_mov_b32 v19, 0")
        for r in range(64):
            x = 128+2*r
            if r % 4 == 0:
                k(f"s_add_u32 m0, s49, {r//4*KB}\ns_add_u32 s39, s38, {r//4*16*3072}\ns_cbranch_vccnz p0_w{u}{r}"); k.dma(5, 40, 's39'); k(f"p0_w{u}{r}:")
            k(f"v_lshlrev_b32 v{x}, 16, v{64+r}\nv_and_b32 v{x+1}, 0xffff0000, v{64+r}\nv_pk_add_f32 v[16:17], v[16:17], v[{x}:{x+1}]\nv_pk_fma_f32 v[18:19], v[{x}:{x+1}], v[{x}:{x+1}], v[18:19]")
        k(f"""v_add_f32 v16, v16, v17
        v_add_f32 v17, v18, v19
        v_lshlrev_b32 v8, 3, v0
        v_add_u32 v8, {LS}, v8
        v_lshlrev_b32 v9, 3, v10
        s_lshl_b32 s39, s46, 9
        s_add_u32 s39, s39, {LS}
        v_add_u32 v9, s39, v9
        ds_write_b64 v8, v[16:17]
        s_waitcnt lgkmcnt(0)
    """)
    k("s_waitcnt vmcnt(0)\np0_s2:"); stage(0)
    k("s_branch p0_b2\np0_ng:"); xl()
    k(f"s_and_b32 s38, s44, 7\ns_mul_i32 s38, s38, {64*3072}\ns_lshl_b32 s39, s45, 6\ns_add_u32 s38, s38, s39\nv_mul_u32_u24 v5, 3072, v1\ns_cmp_lg_u32 s4, 7\ns_cbranch_scc1 p0_nt")
    for p in range(3): k(f"buffer_load_dword v{59+p}, v5, s[40:43], s38 offen offset:{p*1024}")
    k(f"p0_nt:\ns_waitcnt lgkmcnt(0)\n{mix}\ns_cmp_lt_u32 s4, 4\ns_cbranch_scc1 p0_nj\ns_sub_u32 s20, s2, 64\ns_and_b32 s20, s20, 255\ns_lshl_b32 s20, s20, 2\ns_add_u32 s20, s20, s46\ns_mov_b32 s7, s46\ns_cmp_ge_u32 s20, 736\ns_cbranch_scc1 p0_nj")
    job_issue(k); k("s_waitcnt vmcnt(2)\ns_branch p0_j2\np0_nj:\ns_waitcnt vmcnt(0)\np0_j2:"); stage(1)
    k("s_barrier\np0_b2:\ns_barrier\ns_cmp_eq_u32 s55, -1\ns_cbranch_scc1 p0_n2"); job_dma(k); k("p0_n2:")
    for q in range(4): k(f"ds_read_b64 v[{16+2*q}:{17+2*q}], v9 offset:{(q//2)*2048 + (q % 2)*256}")
    k("s_waitcnt lgkmcnt(0)\nv_pk_add_f32 v[16:17], v[16:17], v[18:19]\nv_pk_add_f32 v[20:21], v[20:21], v[22:23]\nv_pk_add_f32 v[16:17], v[16:17], v[20:21]")
    ln_scalars(k, 16, 17, 18)
    k("v_mul_f32 v16, v16, v17\nv_sub_f32 v16, 0, v16")
    for r in range(64):
        x = 128+2*r
        k(f"v_pk_fma_f32 v[{x}:{x+1}], v[{x}:{x+1}], v[16:17], v[16:17] op_sel:[0,1,0] op_sel_hi:[1,1,0]")
    k("s_cmp_eq_u32 s55, -1\ns_cbranch_scc1 p0_nf\nv_lshlrev_b32 v2, 4, v1"); job_finish(k, 16, 64); k("p0_nf:")
    k.vm.q = []; k.lg.q = []; k.nst = 4
```

```python
from lib import *
import struct, math
def f2u(x): return struct.unpack('<I', struct.pack('<f', x))[0]
SC = ' sc1'
RR = 96*KB
LK, LV, LQ, LU, LM, L1 = RR, RR+24*KB, RR+48*KB, RR+56*KB, RR+58*KB, RR+63*KB
def uvjob(k, W, loads):
    k("s_cmp_ge_u32 s34, 112\ns_cbranch_scc1 uv_a\ns_cmp_lt_u32 s4, 4\ns_cbranch_scc1 uv_a")
    k(f"""s_lshl_b32 s28, s34, 15
    s_lshl_b32 s27, s7, 13
    s_add_u32 s28, s28, s27
    s_add_u32 s28, s28, {WGU}
    v_and_b32 v13, 1, v1
    v_lshlrev_b32 v13, 10, v13
    v_sub_u32 v13, {LM + 1024}, v13
    v_lshl_add_u32 v13, v4, 4, v13
    s_lshl_b32 s27, s7, 8
    v_add_u32 v13, s27, v13""")
    for i in range(2):
        k(f"s_mov_b32 m0, {LM + i*KB}\ns_mov_b32 s27, {MODH + 3072 + i*KB}"); k.dma(2, W, 's27', 'mh')
    loads(128, 28, 8, 'a'); k.vm.wait('mh')
    for c in range(8): k.dsr(vr(160+4*c,4), 13, c*32)
    k(f"v_lshlrev_b32 v13, 7, v3\nv_lshl_add_u32 v13, v4, 4, v13\ns_lshl_b32 s27, s7, 8\ns_add_u32 s27, s27, {LU}\nv_add_u32 v13, s27, v13")
    k.vm.all(); k.lg.all()
    for c in range(8): k.mfma32(vr(192,16), vr(128+4*c,4), vr(160+4*c,4), '0' if c == 0 else vr(192,16))
    k("s_nop 7\ns_nop 3\ns_mov_b32 exec_lo, 3\ns_mov_b32 exec_hi, 3")
    for q in range(4): k.dsw(13, vr(192+4*q,4), q*32)
    k("s_mov_b64 exec, -1\nuv_a:"); k.lg.all(); k("s_barrier"); k.vm.q = []
    SB = 160
    k(f"s_cmp_ge_u32 s34, 112\ns_cbranch_scc1 uv_b\ns_cmp_lg_u32 s4, 4\ns_cbranch_scc1 uv_b\nv_lshlrev_b32 v13, 2, v3\nv_add_u32 v13, {LU}, v13")
    for w in range(4):
        for n in range(2): k.dsr(vr(SB+2*w+n), 13, w*256 + n*128, w=32)
    k.lg.all()
    for w in range(1, 4): k(f"v_add_f32 v{SB}, v{SB}, v{SB+2*w}\nv_add_f32 v{SB+1}, v{SB+1}, v{SB+2*w+1}")
    for n in range(2):
        x = SB+n; t = SB+2+3*n
        k(f"v_and_b32 v{t}, 0xffff0000, v{x}\nv_sub_f32 v{x}, v{x}, v{t}\nv_and_b32 v{t+1}, 0xffff0000, v{x}\nv_sub_f32 v{t+2}, v{x}, v{t+1}")
    k(f"""v_cvt_pk_bf16_f32 v{SB+8}, v{SB+2}, v{SB+3}
    v_cvt_pk_bf16_f32 v{SB+9}, v{SB+4}, v{SB+5}
    v_cvt_pk_bf16_f32 v{SB+10}, v{SB+6}, v{SB+7}
    v_mov_b32 v{SB+11}, 0
    s_lshl_b32 s27, s34, 10
    s_add_u32 s27, s27, {UVB}
    buffer_store_dwordx4 v[{SB+8}:{SB+11}], v2, s[{W}:{W+3}], s27 offen sc1
    uv_b:""")
def p12(k, W, run, sadd, arrive, poll, ldsr, loads, wo_loads):
    def ldsw(src, off, base):
        k.dsw(base + (off >> 16) - 1, src, off & 0xffff)
    from ka import spin, NONCE, F0L
    k(f"""s_and_b32 s27, s4, 3
    s_lshl_b32 s27, s27, 10
    s_add_u32 m0, s27, {LM}
    s_lshr_b32 s37, s4, 2
    s_cbranch_scc1 p1_nm""")
    k.dma(2, W, 's27', 'md'); k("p1_nm:")
    k(f"""v_bfe_u32 v8, v1, 2, 2
    v_lshl_add_u32 v8, v4, 3, v8
    v_lshlrev_b32 v8, 6, v8
    v_bfe_u32 v9, v1, 4, 1
    v_lshl_add_u32 v8, v9, 5, v8
    v_and_b32 v9, 3, v1
    v_lshl_add_u32 v8, v9, 3, v8
    s_lshl_b32 s27, s37, 14
    v_add_u32 v8, s27, v8
    v_add_u32 v9, 0x10000, v8
    v_lshlrev_b32 v7, 5, v4
    s_lshl_b32 s27, s37, 10
    s_add_u32 s27, s27, {LM}
    v_add_u32 v7, s27, v7""")
    NF, MS, HB = 6, 88, 120
    seq = [(p, kc) for kc in range(16) for p in (1, 2, 0)]
    def rd(i):
        p, kc = seq[i]
        for e in range(2): k.trd(vr(64+4*(i % NF)+2*e,2), 8 + p//2, (p % 2)*32*KB + kc*KB + e*256, f'w{i}')
    def rdm(kc):
        for j in range(4): k.dsr(vr(MS+16*(kc % 2)+4*j,4), 7, kc*64 + (j//2)*2048 + (j % 2)*16, f'm{kc}')
    def modu(kc):
        M = MS+16*(kc % 2); x = 128+8*kc
        k.lg.wait(f'm{kc}')
        for r in range(0, 8, 2): k(f"v_pk_fma_f32 v[{x+r}:{x+r+1}], v[{x+r}:{x+r+1}], v[{M+8+r}:{M+9+r}], v[{M+r}:{M+r+1}]")
        if kc+2 < 16: rdm(kc+2)
        for r in range(4): k(f"v_cvt_pk_bf16_f32 v{HB+4*(kc % 2)+r}, v{x+2*r}, v{x+2*r+1}")
    k("s_cmp_lg_u32 s55, -1\ns_cbranch_scc1 p1_w8\ns_waitcnt vmcnt(0)\np1_w8:\ns_waitcnt vmcnt(8)\ns_barrier"); k.vm.q = []
    rdm(0); rdm(1)
    for q in range(3): rd(q)
    modu(0)
    for i, (p, kc) in enumerate(seq):
        if i+3 < 48: rd(i+3)
        k.lg.wait(f'w{i}')
        d = vr([48,16,32][p],16); w = vr(64+4*(i % NF),4); h = vr(HB+4*(kc % 2),4); c = '0' if kc == 0 else d
        if p < 2: k.mfma32(d, w, h, c)
        else: k.mfma32(d, h, w, c)
        if p == 1 and kc < 15: modu(kc+1)
    k.stamp()
    k(f"""s_lshl_b32 s30, s9, 17
    s_lshl_b32 s27, s24, 10
    s_add_u32 s31, s30, s27
    s_add_u32 s30, s31, s27
    s_add_u32 s31, s31, {KF}
    s_add_u32 s30, s30, {VF}
    s_add_u32 s32, s31, 0x10000
    s_lshl_b32 s27, s7, 10
    v_add_u32 v8, s27, v14
    v_add_u32 v9, s27, v15
    v_add_u32 v10, s27, v8
    v_add_u32 v11, s27, v9
    s_mul_i32 s27, s7, {12*KB}
    v_add_u32 v7, s27, v2
    s_cmp_ge_u32 s4, 4
    s_cbranch_scc1 p1_L
    s_barrier""")
    for q in range(4): k.dsw(7, vr(48+4*q,4), (8+q)*KB)
    k.lg.all(); k("s_barrier")
    for q in range(8): k.dsr(vr(64+4*q,4), 7, q*KB, f'r{q//4}')
    for p in (1, 2):
        k.lg.wait(f'r{p-1}')
        for r in range(0, 16, 2): k(f"v_pk_add_f32 v[{16*p+r}:{16*p+r+1}], v[{16*p+r}:{16*p+r+1}], v[{48+16*p+r}:{48+16*p+r+1}]")
        for r in range(8): k(f"v_cvt_pk_bf16_f32 v{96+8*p+r}, v{16*p+2*r}, v{16*p+2*r+1}")
        for hh in range(2):
            src = vr(96+8*p+4*hh,4)
            if p == 1: k.bstore(src, 2, W, f's{31+hh}', 0, fl=SC); ldsw(src, LK + (hh*12+8)*KB, 8)
            else: k.bstore(src, 2, W, 's30', hh*KB, fl=SC); ldsw(src, LV + (16+hh)*KB, 10)
    k(f"s_branch p1_J\np1_L:\ns_waitcnt vmcnt(0)\ns_barrier\ns_cmp_lg_u32 s4, 4\ns_cbranch_scc1 p1_nf\ns_lshl_b32 s27, s2, 7\nv_mov_b32 v5, {F0L}\nv_mov_b32 v6, s60\ns_mov_b64 exec, 1\nbuffer_store_dword v6, v5, s[{W}:{W+3}], s27 offen sc1\ns_mov_b64 exec, -1\np1_nf:")
    for q in range(8): k.dsw(7, vr(16+4*q,4), q*KB)
    k.lg.all(); k("s_barrier")
    for q in range(4): k.dsr(vr(64+4*q,4), 7, (8+q)*KB)
    k(f"s_mov_b32 s33, 0x{f2u(0.25*math.log2(math.e)):x}\nv_mov_b32 v16, 0x3f803f80\nv_mov_b32 v17, v16\nv_mov_b32 v18, v16\nv_mov_b32 v19, v16")
    k.dsw(15, vr(16,4), L1 & 0xffff); k.lg.all()
    for r in range(16): k(f"v_add_f32 v{48+r}, v{48+r}, v{64+r}\nv_mul_f32 v{48+r}, s33, v{48+r}")
    for r in range(8): k(f"v_cvt_pk_bf16_f32 v{64+r}, v{48+2*r}, v{49+2*r}")
    for hh in range(2): ldsw(vr(64+4*hh,4), LQ + hh*4*KB, 8)
    k("p1_J:"); k.lg.all()
    arrive(0, 5); k.vm.q = []
    OA, QR, VR, M0, M8, NM, SB, KR = 16, 32, 36, 112, 128, 144, 160, 208
    k(f"v_lshlrev_b32 v7, 2, v4\nv_sub_u32 v7, v3, v7\ns_mov_b32 s31, 0x{f2u(-1e30):x}\nv_mov_b32 v8, s31\nv_mov_b32 v9, 0")
    for r in range(16):
        k(f"v_cmp_gt_i32 s[{52+2*(r%4)}:{53+2*(r%4)}], {(r//4)*8 + r % 4}, v7")
        if r % 4 == 3:
            for q in range(r-3, r+1):
                m = f"s[{52+2*(q%4)}:{53+2*(q%4)}]"
                k(f"v_cndmask_b32 v{M0+q}, v8, v9, {m}\nv_cndmask_b32 v{M8+q}, v9, v8, {m}")
    k(f"""s_lshl_b32 s28, s8, 2
    s_add_u32 s28, s28, s4
    s_sub_u32 s28, s28, 8
    s_max_i32 s28, s28, 0
    s_lshl_b32 s27, s9, 17
    s_lshl_b32 s35, s28, 10
    s_add_u32 s36, s35, s27
    s_add_u32 s35, s36, s35
    s_add_u32 s36, s36, {KF}
    s_add_u32 s35, s35, {VF}
    s_lshl_b32 s38, s4, 10
    s_lshr_b32 s37, s4, 2
    s_mul_i32 s27, s37, {12*KB}
    s_lshl_b32 s28, s7, 10
    s_add_u32 s27, s27, s28
    s_add_u32 s27, s27, {LK}
    v_add_u32 v13, s27, v2
    s_lshl_b32 s27, s37, 8
    s_lshl_b32 s28, s7, 11
    s_add_u32 s27, s27, s28
    s_add_u32 s27, s27, {LV}
    v_add_u32 v12, s27, v2
    v_cmp_gt_u32 vcc, 16, v3
    v_mov_b32 v10, 0x400
    v_mov_b32 v11, {L1}
    v_cndmask_b32 v10, 0, v10, vcc
    v_cndmask_b32 v12, v11, v12, vcc
    v_add_u32 v11, s38, v15""")
    k(f"s_cmp_lt_u32 s4, 4\ns_cbranch_scc1 p2_fe\ns_lshl_b32 s27, s7, 13\ns_add_u32 s27, s27, {F0L}\nv_lshlrev_b32 v5, 7, v1\nv_add_u32 v5, s27, v5")
    spin(k, "p2_f", 5, 6, W)
    poll(f"""s_sub_u32 s27, s5, 2048
    s_cselect_b32 s27, s5, s27
    s_sub_u32 s28, s5, 4096
    s_cselect_b32 s28, s5, s28
    v_mov_b32 v5, s27
    v_mov_b32 v6, s28
    v_cndmask_b32 v5, v5, v6, vcc
    v_add_u32 v5, {CNT}, v5"""); k.stamp()
    for hh in range(2):
        k(f"s_add_u32 m0, s38, {LK + hh*12*KB}"); sadd(27, 36, hh*64*KB); k.dma(2, W, 's27', 'kv', fl=SC)
    k(f"s_lshl_b32 s38, s38, 1")
    for hh in range(2):
        k(f"s_add_u32 m0, s38, {LV + hh*KB}"); sadd(27, 35, hh*KB); k.dma(2, W, 's27', 'kv', fl=SC)
    k.dsr(vr(QR,4), 11, LQ & 0xffff)
    k(f"s_add_u32 s27, s2, s4\ns_cmp_lg_u32 s27, 0\ns_cbranch_scc1 p1_nn\nv_mov_b32 v5, {NONCE}\nv_mov_b32 v6, s60\ns_mov_b64 exec, 1\nbuffer_store_dword v6, v5, s[{W}:{W+3}], 0 offen sc1\ns_mov_b64 exec, -1\np1_nn:")
    k("s_cmp_ge_u32 s4, 4\ns_cbranch_scc1 p2_wl\ns_waitcnt vmcnt(0)\ns_branch p2_wj\np2_wl:"); wo_loads(); k("s_waitcnt vmcnt(16)\np2_wj:")
    k.vm.q = []; k.lg.all(); k("s_barrier")
    k(f"s_mul_i32 s29, s4, {12*KB}\ns_add_u32 s28, s41, s29\ns_mov_b32 vcc_hi, 0\ns_mov_b32 vcc_lo, s37")
    def gu(c): k(f"s_add_u32 m0, s29, {c*KB}"); sadd(27, 28, c*KB); k.dma(2, W, 's27', 'gu')
    def wo(i):
        if i % 4 == 0: sadd(30, 40, i*KB)
        lb = f"wo{k.uid()}"
        k(f"s_cbranch_vccnz {lb}"); k.bload(vr(48+4*i,4), 2, W, 's30', (i % 4)*KB, 'wo', fl=SC); k(f"{lb}:")
    pre = [x for i in range(16) for x in ([(wo, i), (gu, i)] if i < 12 else [(wo, i)])]
    def pf(n=1):
        for _ in range(n):
            if pre: f, i = pre.pop(0); f(i)
    def mx(b, first=False):
        for i in range(8):
            a = 8 + i % 2
            k(f"v_max_f32 v{a}, v{b+2*i}, v{b+2*i+1}" if first and i < 2 else f"v_max3_f32 v{a}, v{a}, v{b+2*i}, v{b+2*i+1}")
    def fin_max(m0):
        k("v_max_f32 v8, v8, v9\nv_mov_b32 v9, v8\ns_nop 1\nv_permlane32_swap_b32 v9, v8\ns_nop 1\nv_max_f32 v8, v8, v9")
        if m0:
            for r in range(16): k(f"v_sub_f32 v{M0+r}, v{M0+r}, v8")
        for r in range(16): k(f"v_sub_f32 v{NM+r}, 0, v8")
        for r in range(16): k(f"v_sub_f32 v{M8+r}, v{M8+r}, v8")
    def vrd(c): k.dsr(vr(VR+4*(c % 3),4), 12, 0, f'v{c}'); k("v_add_u32 v12, v12, v10")
    k("s_cmp_lt_u32 s8, 2\ns_cbranch_scc1 p2_slow")
    for j in range(9): k.dsr(vr(KR+4*j,4), 13, j*KB, f'k{j}')
    def sb(j): return SB + 16*(j % 3)
    def qk(j, c): k.mfma32(vr(sb(j),16), vr(KR+4*j,4), vr(QR,4), c)
    def c1(j): return vr(M0,16) if j == 0 else vr(M8,16) if j == 8 else '0'
    def c2(j): return vr(M0,16) if j == 0 else vr(M8,16) if j == 8 else vr(NM,16)
    for j in range(2): k.lg.wait(f'k{j}'); qk(j, c1(j))
    pf(2); k('s_nop 2')
    for j in range(9):
        if j+2 < 9: k.lg.wait(f'k{j+2}'); qk(j+2, c1(j+2))
        if j == 0: k("s_nop 3")
        if j == 8: vrd(0); vrd(1)
        mx(sb(j), j == 0); pf()
    fin_max(True)
    qk(0, c2(0)); qk(1, c2(1)); pf(); k("s_nop 7\ns_nop 1")
    def pv(c):
        k.lg.wait(f'v{c}')
        k.mfma32(vr(OA,16), vr(VR+4*(c % 3),4), vr(sb(c//2)+8*(c % 2),4), '0' if c == 0 else vr(OA,16))
    for c in range(18):
        b = sb(c//2) + 8*(c % 2)
        for r in range(8): k(f"v_exp_f32 v{b+r}, v{b+r}")
        if c > 0: pv(c-1)
        if c % 2 == 0 and c//2+2 < 9: qk(c//2+2, c2(c//2+2))
        if c+2 < 18: vrd(c+2)
        pf(2 if c < 4 else 1)
        for r in range(4): k(f"v_cvt_pk_bf16_f32 v{b+r}, v{b+2*r}, v{b+2*r+1}")
    k("s_nop 1"); pv(17)
    k("s_branch p2_join\np2_slow:")
    assert not pre
    for c in range(8): wo(c)
    k(f"s_sub_u32 s30, 8, s24\ns_lshl_b32 s27, s30, 10\nv_add_u32 v13, s27, v13\nv_mov_b32 v7, v13\ns_lshl_b32 s27, s30, 1\nv_mad_u32_u24 v12, v10, s27, v12\nv_mov_b32 v8, s31\nv_mov_b32 v9, s31")
    for r in range(16): k(f"v_mov_b32 v{OA+r}, 0")
    for ps in range(2):
        k(f"s_mov_b32 s32, s30\np2_l{ps}:")
        k.dsr(vr(KR,4), 13 if ps == 0 else 7, 0)
        k(f"v_add_u32 v{13 if ps == 0 else 7}, 0x400, v{13 if ps == 0 else 7}")
        if ps: vrd(0); vrd(1)
        k.lg.all()
        k(f"s_cmp_eq_u32 s32, 8\ns_cbranch_scc1 p2_m{ps}")
        k.mfma32(vr(SB,16), vr(KR,4), vr(QR,4), vr(NM,16) if ps else '0')
        k(f"s_branch p2_n{ps}\np2_m{ps}:")
        k.mfma32(vr(SB,16), vr(KR,4), vr(QR,4), vr(M8,16))
        k(f"p2_n{ps}:\ns_nop 7\ns_nop 3")
        if ps == 0: mx(SB)
        else:
            for r in range(16): k(f"v_exp_f32 v{SB+r}, v{SB+r}")
            k("s_nop 0")
            for r in range(8): k(f"v_cvt_pk_bf16_f32 v{SB+16+r}, v{SB+2*r}, v{SB+2*r+1}")
            k("s_nop 1")
            for c in range(2): k.mfma32(vr(OA,16), vr(VR+4*c,4), vr(SB+16+4*c,4), vr(OA,16))
        k(f"s_add_u32 s32, s32, 1\ns_cmp_le_u32 s32, 8\ns_cbranch_scc1 p2_l{ps}")
        if ps == 0:
            fin_max(False)
            k('s_mov_b32 s49, s30')
            for c in range(8, 16): wo(c)
            k('s_mov_b32 s30, s49')
    for c in range(12): gu(c)
    k(f"""p2_join:
    s_lshl_b32 s28, s24, 15
    s_lshl_b32 s27, s9, 11
    s_add_u32 s28, s28, s27
    s_lshl_b32 s27, s37, 10
    s_add_u32 s28, s28, s27
    s_add_u32 s28, s28, {OF}
    s_nop 5
    v_rcp_f32 v8, v{OA+8}
    s_nop 0""")
    k.lg.q = []
    for r in range(8): k(f"v_mul_f32 v{OA+r}, v{OA+r}, v8")
    for r in range(4): k(f"v_cvt_pk_bf16_f32 v{OA+r}, v{OA+2*r}, v{OA+2*r+1}")
    k.bstore(vr(OA,4), 2, W, 's28', 0, fl=SC)
    k.stamp()
    arrive(1, 5); k.vm.q = []
```

```python
from lib import *
from k01 import lane_setup, gemv_tile, ln_scalars, LOG2E
NG, NL, NU, NQ, NO, ND = 192, 64, 112, 48, 16, 56
AF = ' sc1'
RR = 96*KB; LC = RR + 32*KB; LCN = RR + 62*KB
F0C, F0L = CNT + 4*32768, CNT + 5*32768
NONCE = 32*KB
mix = 's_mul_i32 s60, s60, 0x9e3779b1\ns_add_u32 s60, s60, 0x7f4a7c15'
def spin(k, lab, vaddr, vtmp, srd, off=0):
    k(f"""s_mov_b32 s50, 0x40000
    {lab}:
    buffer_load_dword v{vtmp}, v{vaddr}, s[{srd}:{srd+3}], 0 offen offset:{off} sc1
    s_waitcnt vmcnt(0)
    v_cmp_ne_u32 vcc, s60, v{vtmp}
    s_cbranch_vccz {lab}e
    s_sleep 1
    s_sub_u32 s50, s50, 1
    s_cbranch_scc0 {lab}
    {lab}e:""")
def gemv(k, mid):
    k.srds(dict(wmod=8, c=12))
    k("s_and_b32 s24, s2, 7\ns_lshl_b32 s24, s24, 3\ns_bfe_u32 s25, s2, 0x30003\ns_add_u32 s24, s24, s25\ns_and_b32 s25, s2, 0xc0\ns_add_u32 s24, s24, s25\ns_lshl_b32 s25, s24, 5")
    k("v_lshrrev_b32 v5, 1, v1\nv_mul_u32_u24 v5, 6144, v5\nv_and_b32 v6, 1, v1\nv_lshl_add_u32 v5, v6, 4, v5\nv_lshlrev_b32 v8, 4, v1\ns_waitcnt lgkmcnt(0)")
    k.bload(vr(16,4), 8, 12, 0, 0, 'c')
    for p in range(16):
        k(f"s_mov_b32 m0, {LC + p*KB}\ns_add_u32 s7, s25, {p*32*6144}"); k.dma(5, 8, 's7', 'w')
    mid(); k.vm.wait('c')
    k(f"s_mov_b32 s27, 0x{LOG2E ^ 0x80000000:x}")
    for r in range(4):
        k(f"""v_lshlrev_b32 v32, 16, v{16+r}
        v_and_b32 v33, 0xffff0000, v{16+r}
        v_mul_f32 v34, s27, v32
        v_mul_f32 v35, s27, v33
        v_exp_f32 v34, v34
        v_exp_f32 v35, v35
        s_nop 0
        v_add_f32 v34, 1.0, v34
        v_add_f32 v35, 1.0, v35
        v_rcp_f32 v34, v34
        v_rcp_f32 v35, v35
        s_nop 0
        v_mul_f32 v34, v34, v32
        v_mul_f32 v35, v35, v33
        v_cvt_pk_bf16_f32 v{16+r}, v34, v35""")
    k(f"""v_add_u32 v8, {LC}, v8
    v_lshlrev_b32 v9, 4, v3
    v_add_u32 v9, {LC}, v9
    v_lshrrev_b32 v6, 2, v2
    v_lshl_add_u32 v6, v3, 3, v6
    v_lshlrev_b32 v6, 5, v6
    v_and_b32 v7, 3, v2
    v_lshl_add_u32 v6, v7, 3, v6
    v_add_u32 v6, {LC}, v6""")
    k.dsw(8, vr(16,4), 16*KB); k.lg.all()
    for s in range(16): k.dsr(vr(128+4*s,4), 9, 16*KB + s*64)
    k.vm.wait('w')
    for s in range(16):
        for h in range(2): k.trd(vr(192+4*s+2*h, 2), 6, s*KB + h*128, f't{s}')
    for s in range(16):
        k.lg.wait(f't{s}'); k.mfma16(vr(40,4), vr(192+4*s,4), vr(128+4*s,4), '0' if s == 0 else vr(40,4))
    k("s_nop 7")
    k.stamp()
    for r in range(4): k.bfround(40+r)
    k("s_lshr_b32 s26, s24, 5\ns_cmp_eq_u32 s26, 1\ns_cselect_b32 s27, 1.0, 0\ns_cmp_eq_u32 s26, 4\ns_cselect_b32 s27, 1.0, s27")
    for r in range(4):
        k(f"v_add_f32 v{40+r}, s27, v{40+r}"); k.bfround(40+r)
    k("v_lshlrev_b32 v8, 4, v3\ns_lshl_b32 s26, s24, 6\nv_cmp_eq_u32 vcc, 0, v2\ns_and_saveexec_b64 s[28:29], vcc")
    k.bstore(vr(40,4), 8, 16, 's26', MOD, fl=' sc1')
    k(f"v_cvt_pk_bf16_f32 v44, v40, v41\nv_cvt_pk_bf16_f32 v45, v42, v43\nv_lshlrev_b32 v8, 3, v3\ns_lshl_b32 s26, s24, 5\ns_add_u32 s26, s26, {MODH}")
    k.bstore(vr(44,2), 8, 16, 's26', 0, w=2, fl=AF)
    k(f"s_mov_b64 exec, -1\ns_cmp_ge_u32 s24, 64\ns_cbranch_scc1 p0_gx\nv_mov_b32 v9, s60\nv_mov_b32 v8, {F0C}\ns_lshl_b32 s27, s24, 7\ns_mov_b64 exec, 1\ns_waitcnt vmcnt(0)\nbuffer_store_dword v9, v8, s[16:19], s27 offen sc1\ns_mov_b64 exec, -1")
def job_issue(k):
    k(f"s_mov_b32 s30, 0\ns_cmp_ge_u32 s20, {4*NU}\ns_cbranch_scc1 pa_r2")
    k.srds(dict(wg=8, wu=12))
    k(f"""s_and_b32 s21, s20, 31
    s_lshr_b32 s22, s20, 5
    s_lshl_b32 s24, s22, 8
    s_mov_b32 s25, s24
    s_mov_b32 s26, 3584
    s_mul_i32 s27, s22, {8*32*KB}
    s_lshl_b32 s23, s21, 10
    s_add_u32 s27, s27, s23
    s_add_u32 s27, s27, {WGU}
    s_mov_b32 s28, {64*KB}
    s_mov_b32 s37, {32*KB}
    s_mov_b32 s29, 0
    s_mov_b32 s30, 1
    s_branch pa_go
    pa_r2:
    s_sub_u32 s20, s20, {4*NU}
    s_mov_b32 s26, 1024
    s_mov_b32 s37, 1024
    s_mov_b32 s29, 1
    s_cmp_ge_u32 s20, {4*NO}
    s_cbranch_scc1 pa_r3""")
    k.srds(dict(wo=8)); k.srds(dict(wo=12))
    k(f"s_mov_b32 s28, {64*KB}\ns_mov_b32 s27, {WO}\ns_branch pa_r4\npa_r3:\ns_sub_u32 s20, s20, {4*NO}")
    k.srds(dict(wd=8)); k.srds(dict(wd=12))
    k(f"""s_mov_b32 s28, {224*KB}
    s_mov_b32 s27, {WD}
    pa_r4:
    s_lshr_b32 s21, s20, 1
    s_and_b32 s22, s20, 1
    s_lshl_b32 s24, s22, 9
    s_add_u32 s25, s24, 256
    s_lshl_b32 s23, s22, 2
    s_mul_i32 s23, s23, s28
    s_add_u32 s27, s27, s23
    s_lshl_b32 s23, s21, 11
    s_add_u32 s27, s27, s23
    pa_go:""")
    k("""s_lshl_b32 s31, s26, 4
    s_mul_i32 s31, s31, s21
    s_add_u32 s24, s24, s31
    s_add_u32 s25, s25, s31
    s_lshl_b32 s31, s26, 2
    v_mul_lo_u32 v5, v3, s26
    v_lshl_add_u32 v5, v2, 4, v5
    s_lshl_b32 s6, s7, 13
    s_add_u32 s6, s6, 0x18000
    s_waitcnt lgkmcnt(0)""")
    k("v_bfe_u32 v6, v1, 1, 4\nv_mul_lo_u32 v6, v6, s26\nv_and_b32 v7, 1, v1\nv_lshl_add_u32 v6, v7, 7, v6\nv_mov_b32 v13, v5\ns_mov_b32 s55, s30")
    for hf in range(int(os.environ.get('JT', 0))): k(f"buffer_load_dword v{62+hf}, v6, s[{8+4*hf}:{11+4*hf}], s{24+hf} offen")
def job_dma(k):
    for p in range(4):
        for hf in range(2):
            k(f"s_add_u32 m0, s6, {hf*4096 + p*1024}\ns_nop 0")
            k.dma(13, 8+4*hf, f's{24+hf}', 'w')
        if p < 3: k("s_add_u32 s24, s24, s31\ns_add_u32 s25, s25, s31")
    k("""v_lshrrev_b32 v6, 1, v3
    s_sub_u32 s22, 3, s29
    v_lshlrev_b32 v6, s22, v6
    v_lshrrev_b32 v7, 2, v2
    v_add_u32 v6, v6, v7
    v_lshlrev_b32 v6, 8, v6
    v_and_b32 v7, 3, v2
    v_lshl_add_u32 v6, v7, 3, v6
    v_and_b32 v7, 1, v3
    s_cmp_eq_u32 s30, 1
    s_cselect_b32 s22, 12, 5
    v_lshl_add_u32 v6, v7, s22, v6
    v_add_u32 v6, s6, v6
    s_lshl_b32 s22, 0x400, s29
    v_add_u32 v7, s22, v6
    v_mov_b32 v12, v6
    v_mov_b32 v13, v7
    s_mov_b32 s52, s27
    s_mov_b32 s53, s28
    s_mov_b32 s54, s37
    s_mov_b32 s55, s30""")
def job_finish(k, W, R):
    k("s_waitcnt vmcnt(0)\ns_cmp_eq_u32 s55, 1\ns_cbranch_scc1 pa_tg")
    for gu in range(2):
        for c in range(8):
            o = c*32 if gu else (c//4)*4096 + (c % 4)*64
            k.trd(vr(R+4*c,2), 12, o); k.trd(vr(R+2+4*c,2), 13, o)
        k("s_branch pa_tj\npa_tg:" if gu == 0 else "pa_tj:")
    k.lg.all()
    for c in range(8):
        if c % 2: k("s_add_u32 s27, s52, s54\ns_add_u32 s52, s52, s53")
        k.bstore(vr(R+4*c,4), 2, W, 's27' if c % 2 else 's52', 0, fl=AF)
```

```python
from lib import *
from k01 import lane_setup, ln_scalars
from ka import gemv, job_issue, job_dma, job_finish, NONCE, mix, RR
LS = RR + 54*KB
def phase0(k, tmap, R1):
    k.srds(dict(ws=16, x=20, wqkv=40))
    lane_setup(k)
    tmap(16, R1, 44, 45)
    k(f"""s_and_b32 s46, s4, 3
    s_lshr_b32 s47, s4, 2
    s_lshl_b32 s48, s44, 2
    s_add_u32 s48, s48, s46
    s_lshl_b32 s48, s48, 15
    s_lshl_b32 s27, s47, 9
    s_add_u32 s48, s48, s27
    v_and_b32 v10, 31, v1
    v_lshrrev_b32 v12, 5, v1
    v_xor_b32 v11, v10, v12
    v_lshlrev_b32 v11, 4, v11
    v_lshl_add_u32 v11, v12, 10, v11
    s_lshl_b32 s49, s4, 14
    s_mov_b32 s55, -1
    s_waitcnt lgkmcnt(0)
    s_load_dword s60, s[16:17], {NONCE}""")
    def xl():
        for i in range(16):
            k(f"s_add_u32 m0, s49, {i*KB}\ns_add_u32 s39, s48, {i*2048}\nv_xor_b32 v14, {(2*i & 15)*16}, v11"); k.dma(14, 20, 's39', 'x')
    k(f"s_cmp_lg_u32 s4, {os.environ.get('GW', 6)}\ns_cbranch_scc1 p0_ng\ns_cmp_ge_u32 s2, 192\ns_cbranch_scc1 p0_ng\ns_setprio 3")
    def mid(): k('s_barrier'); xl(); k(mix)
    gemv(k, mid)
    def stage(u):
        k.nst = 3; k.stamp()
        k("""v_and_b32 v14, 15, v10
        v_xor_b32 v14, v14, v12
        v_lshlrev_b32 v14, 4, v14
        v_lshl_add_u32 v14, v10, 9, v14
        v_add_u32 v14, s49, v14""")
        for c in range(16): k(f"v_xor_b32 v15, {c*32}, v14\nds_read_b128 v[{64+4*c}:{67+4*c}], v15")
        k(f"s_cmp_lt_u32 s4, 4\ns_cbranch_scc1 p0_nj\ns_cmp_eq_u32 s4, 6\ns_cbranch_scc1 p0_nj\ns_sub_u32 s20, 255, s2\ns_mul_i32 s20, s20, 3\ns_min_u32 s7, s46, 2\ns_add_u32 s20, s20, s7\ns_mov_b32 s7, s46\ns_cmp_ge_u32 s20, 736\ns_cbranch_scc1 p0_nj")
        job_issue(k); k("p0_nj:")
        k(f"""v_lshrrev_b32 v5, 2, v1
        v_mul_u32_u24 v5, 3072, v5
        v_and_b32 v6, 3, v1
        v_lshl_add_u32 v5, v6, 4, v5
        s_and_b32 s38, s4, 1
        s_mul_i32 s38, s38, {256*3072}
        s_lshr_b32 s39, s4, 1
        s_lshl_b32 s39, s39, 10
        s_add_u32 s38, s38, s39
        s_lshl_b32 s39, s45, 6
        s_add_u32 s38, s38, s39
        s_waitcnt lgkmcnt(0)
        s_cmp_ge_u32 s4, 6
        s_cselect_b32 vcc_lo, 1, 0
        s_mov_b32 vcc_hi, 0""")
        k("v_mov_b32 v16, 0\nv_mov_b32 v17, 0\nv_mov_b32 v18, 0\nv_mov_b32 v19, 0")
        for r in range(64):
            x = 128+2*r
            if r % 4 == 0:
                k(f"s_add_u32 m0, s49, {r//4*KB}\ns_add_u32 s39, s38, {r//4*16*3072}\ns_cbranch_vccnz p0_w{u}{r}"); k.dma(5, 40, 's39'); k(f"p0_w{u}{r}:")
            k(f"v_lshlrev_b32 v{x}, 16, v{64+r}\nv_and_b32 v{x+1}, 0xffff0000, v{64+r}\nv_pk_add_f32 v[16:17], v[16:17], v[{x}:{x+1}]\nv_pk_fma_f32 v[18:19], v[{x}:{x+1}], v[{x}:{x+1}], v[18:19]")
        k(f"""v_add_f32 v16, v16, v17
        v_add_f32 v17, v18, v19
        v_lshlrev_b32 v8, 3, v0
        v_add_u32 v8, {LS}, v8
        v_lshlrev_b32 v9, 3, v10
        s_lshl_b32 s39, s46, 9
        s_add_u32 s39, s39, {LS}
        v_add_u32 v9, s39, v9
        ds_write_b64 v8, v[16:17]
        s_waitcnt lgkmcnt(0)
    """)
    k("s_branch p0_s2\np0_ng:")
    k(f"s_and_b32 s38, s44, 7\ns_mul_i32 s38, s38, {64*3072}\ns_lshl_b32 s39, s45, 6\ns_add_u32 s38, s38, s39\nv_mul_u32_u24 v5, 3072, v1\ns_cmp_lg_u32 s4, 7\ns_cbranch_scc1 p0_nt")
    for p in range(3): k(f"buffer_load_dword v{59+p}, v5, s[40:43], s38 offen offset:{p*1024}")
    k("p0_nt:\ns_barrier"); xl()
    k(f"s_waitcnt vmcnt(0)\ns_waitcnt lgkmcnt(0)\n{mix}\np0_s2:"); stage(0)
    k("s_setprio 0\ns_barrier\ns_cmp_eq_u32 s55, -1\ns_cbranch_scc1 p0_n2"); job_dma(k); k("p0_n2:")
    for q in range(4): k(f"ds_read_b64 v[{16+2*q}:{17+2*q}], v9 offset:{(q//2)*2048 + (q % 2)*256}")
    k("s_waitcnt lgkmcnt(0)\nv_pk_add_f32 v[16:17], v[16:17], v[18:19]\nv_pk_add_f32 v[20:21], v[20:21], v[22:23]\nv_pk_add_f32 v[16:17], v[16:17], v[20:21]")
    ln_scalars(k, 16, 17, 18)
    k("v_mul_f32 v16, v16, v17\nv_sub_f32 v16, 0, v16")
    for r in range(64):
        x = 128+2*r
        k(f"v_pk_fma_f32 v[{x}:{x+1}], v[{x}:{x+1}], v[16:17], v[16:17] op_sel:[0,1,0] op_sel_hi:[1,1,0]")
    k.vm.q = []; k.lg.q = []; k.nst = 4
```

```python
from lib import *
import struct, math
def f2u(x): return struct.unpack('<I', struct.pack('<f', x))[0]
SC = ' sc1'
RR = 96*KB
LK, LV, LQ, LU, LM, L1 = RR, RR+24*KB, RR+48*KB, RR+56*KB, RR+58*KB, RR+63*KB
def uvjob(k, W, loads):
    k("s_cmp_ge_u32 s34, 112\ns_cbranch_scc1 uv_a\ns_cmp_lt_u32 s4, 4\ns_cbranch_scc1 uv_a")
    k(f"""s_lshl_b32 s28, s34, 15
    s_lshl_b32 s27, s7, 13
    s_add_u32 s28, s28, s27
    s_add_u32 s28, s28, {WGU}
    v_and_b32 v13, 1, v1
    v_lshlrev_b32 v13, 10, v13
    v_sub_u32 v13, {LM + 1024}, v13
    v_lshl_add_u32 v13, v4, 4, v13
    s_lshl_b32 s27, s7, 8
    v_add_u32 v13, s27, v13""")
    for i in range(2):
        k(f"s_mov_b32 m0, {LM + i*KB}\ns_mov_b32 s27, {MODH + 3072 + i*KB}"); k.dma(2, W, 's27', 'mh')
    loads(128, 28, 8, 'a'); k.vm.wait('mh')
    for c in range(8): k.dsr(vr(160+4*c,4), 13, c*32)
    k(f"v_lshlrev_b32 v13, 7, v3\nv_lshl_add_u32 v13, v4, 4, v13\ns_lshl_b32 s27, s7, 8\ns_add_u32 s27, s27, {LU}\nv_add_u32 v13, s27, v13")
    k.vm.all(); k.lg.all()
    for c in range(8): k.mfma32(vr(192,16), vr(128+4*c,4), vr(160+4*c,4), '0' if c == 0 else vr(192,16))
    k("s_nop 7\ns_nop 3\ns_mov_b32 exec_lo, 3\ns_mov_b32 exec_hi, 3")
    for q in range(4): k.dsw(13, vr(192+4*q,4), q*32)
    k("s_mov_b64 exec, -1\nuv_a:"); k.lg.all(); k("s_barrier"); k.vm.q = []
    SB = 160
    k(f"s_cmp_ge_u32 s34, 112\ns_cbranch_scc1 uv_b\ns_cmp_lg_u32 s4, 4\ns_cbranch_scc1 uv_b\nv_lshlrev_b32 v13, 2, v3\nv_add_u32 v13, {LU}, v13")
    for w in range(4):
        for n in range(2): k.dsr(vr(SB+2*w+n), 13, w*256 + n*128, w=32)
    k.lg.all()
    for w in range(1, 4): k(f"v_add_f32 v{SB}, v{SB}, v{SB+2*w}\nv_add_f32 v{SB+1}, v{SB+1}, v{SB+2*w+1}")
    for n in range(2):
        x = SB+n; t = SB+2+3*n
        k(f"v_and_b32 v{t}, 0xffff0000, v{x}\nv_sub_f32 v{x}, v{x}, v{t}\nv_and_b32 v{t+1}, 0xffff0000, v{x}\nv_sub_f32 v{t+2}, v{x}, v{t+1}")
    k(f"""v_cvt_pk_bf16_f32 v{SB+8}, v{SB+2}, v{SB+3}
    v_cvt_pk_bf16_f32 v{SB+9}, v{SB+4}, v{SB+5}
    v_cvt_pk_bf16_f32 v{SB+10}, v{SB+6}, v{SB+7}
    v_mov_b32 v{SB+11}, 0
    s_lshl_b32 s27, s34, 10
    s_add_u32 s27, s27, {UVB}
    buffer_store_dwordx4 v[{SB+8}:{SB+11}], v2, s[{W}:{W+3}], s27 offen sc1
    uv_b:""")
NGU = int(os.environ.get('NGU', 6))
def p12(k, W, run, sadd, arrive, poll, ldsr, loads, wo_loads):
    def ldsw(src, off, base):
        k.dsw(base + (off >> 16) - 1, src, off & 0xffff)
    from ka import spin, NONCE, F0L
    k(f"""s_and_b32 s27, s4, 3
    s_lshl_b32 s27, s27, 10
    s_add_u32 m0, s27, {LM}
    s_lshr_b32 s37, s4, 2
    s_cbranch_scc1 p1_nm""")
    k.dma(2, W, 's27', 'md'); k("p1_nm:")
    k(f"""v_bfe_u32 v8, v1, 2, 2
    v_lshl_add_u32 v8, v4, 3, v8
    v_lshlrev_b32 v8, 6, v8
    v_bfe_u32 v9, v1, 4, 1
    v_lshl_add_u32 v8, v9, 5, v8
    v_and_b32 v9, 3, v1
    v_lshl_add_u32 v8, v9, 3, v8
    s_lshl_b32 s27, s37, 14
    v_add_u32 v8, s27, v8
    v_add_u32 v9, 0x10000, v8
    v_lshlrev_b32 v7, 5, v4
    s_lshl_b32 s27, s37, 10
    s_add_u32 s27, s27, {LM}
    v_add_u32 v7, s27, v7""")
    NF, MS, HB = 6, 88, 120
    seq = [(p, kc) for kc in range(16) for p in (1, 2, 0)]
    def rd(i):
        p, kc = seq[i]
        for e in range(2): k.trd(vr(64+4*(i % NF)+2*e,2), 8 + p//2, (p % 2)*32*KB + kc*KB + e*256, f'w{i}')
    def rdm(kc):
        for j in range(4): k.dsr(vr(MS+16*(kc % 2)+4*j,4), 7, kc*64 + (j//2)*2048 + (j % 2)*16, f'm{kc}')
    def modu(kc):
        M = MS+16*(kc % 2); x = 128+8*kc
        k.lg.wait(f'm{kc}')
        for r in range(0, 8, 2): k(f"v_pk_fma_f32 v[{x+r}:{x+r+1}], v[{x+r}:{x+r+1}], v[{M+8+r}:{M+9+r}], v[{M+r}:{M+r+1}]")
        if kc+2 < 16: rdm(kc+2)
        for r in range(4): k(f"v_cvt_pk_bf16_f32 v{HB+4*(kc % 2)+r}, v{x+2*r}, v{x+2*r+1}")
    k("s_cmp_lg_u32 s55, -1\ns_cbranch_scc1 p1_w8\ns_waitcnt vmcnt(0)\np1_w8:\ns_waitcnt vmcnt(8)\ns_barrier"); k.vm.q = []
    rdm(0); rdm(1)
    for q in range(3): rd(q)
    modu(0)
    for i, (p, kc) in enumerate(seq):
        if i+3 < 48: rd(i+3)
        k.lg.wait(f'w{i}')
        d = vr([48,16,32][p],16); w = vr(64+4*(i % NF),4); h = vr(HB+4*(kc % 2),4); c = '0' if kc == 0 else d
        if p < 2: k.mfma32(d, w, h, c)
        else: k.mfma32(d, h, w, c)
        if p == 1 and kc < 15: modu(kc+1)
        if p == 0 and kc == int(os.environ.get('JK', 5)):
            from ka import job_finish
            q0 = list(k.lg.q)
            k("s_cmp_eq_u32 s55, -1\ns_cbranch_scc1 p1_nj"); job_finish(k, W, 128); k("p1_nj:"); k.lg.q = q0
    k.stamp()
    k(f"""s_lshl_b32 s30, s9, 17
    s_lshl_b32 s27, s24, 10
    s_add_u32 s31, s30, s27
    s_add_u32 s30, s31, s27
    s_add_u32 s31, s31, {KF}
    s_add_u32 s30, s30, {VF}
    s_add_u32 s32, s31, 0x10000
    s_lshl_b32 s27, s7, 10
    v_add_u32 v8, s27, v14
    v_add_u32 v9, s27, v15
    v_add_u32 v10, s27, v8
    v_add_u32 v11, s27, v9
    s_mul_i32 s27, s7, {12*KB}
    v_add_u32 v7, s27, v2
    s_cmp_ge_u32 s4, 4
    s_cbranch_scc1 p1_L
    s_barrier""")
    for q in range(4): k.dsw(7, vr(48+4*q,4), (8+q)*KB)
    k.lg.all(); k("s_barrier")
    for q in range(8): k.dsr(vr(64+4*q,4), 7, q*KB, f'r{q//4}')
    for p in (1, 2):
        k.lg.wait(f'r{p-1}')
        for r in range(0, 16, 2): k(f"v_pk_add_f32 v[{16*p+r}:{16*p+r+1}], v[{16*p+r}:{16*p+r+1}], v[{48+16*p+r}:{48+16*p+r+1}]")
        for r in range(8): k(f"v_cvt_pk_bf16_f32 v{96+8*p+r}, v{16*p+2*r}, v{16*p+2*r+1}")
        for hh in range(2):
            src = vr(96+8*p+4*hh,4)
            if p == 1: k.bstore(src, 2, W, f's{31+hh}', 0, fl=SC); ldsw(src, LK + (hh*12+8)*KB, 8)
            else: k.bstore(src, 2, W, 's30', hh*KB, fl=SC); ldsw(src, LV + (16+hh)*KB, 10)
    k(f"s_branch p1_J\np1_L:\ns_waitcnt vmcnt(0)\ns_barrier\ns_cmp_lg_u32 s4, 4\ns_cbranch_scc1 p1_nf\ns_lshl_b32 s27, s2, 7\nv_mov_b32 v5, {F0L}\nv_mov_b32 v6, s60\ns_mov_b64 exec, 1\nbuffer_store_dword v6, v5, s[{W}:{W+3}], s27 offen sc1\ns_mov_b64 exec, -1\np1_nf:")
    for q in range(8): k.dsw(7, vr(16+4*q,4), q*KB)
    k.lg.all(); k("s_barrier")
    for q in range(4): k.dsr(vr(64+4*q,4), 7, (8+q)*KB)
    k(f"s_mov_b32 s33, 0x{f2u(0.25*math.log2(math.e)):x}\nv_mov_b32 v16, 0x3f803f80\nv_mov_b32 v17, v16\nv_mov_b32 v18, v16\nv_mov_b32 v19, v16")
    k.dsw(15, vr(16,4), L1 & 0xffff); k.lg.all()
    for r in range(16): k(f"v_add_f32 v{48+r}, v{48+r}, v{64+r}\nv_mul_f32 v{48+r}, s33, v{48+r}")
    for r in range(8): k(f"v_cvt_pk_bf16_f32 v{64+r}, v{48+2*r}, v{49+2*r}")
    for hh in range(2): ldsw(vr(64+4*hh,4), LQ + hh*4*KB, 8)
    k("p1_J:"); k.lg.all()
    arrive(0, 5); k.vm.q = []
    OA, QR, VR, M0, M8, NM, SB, KR = 16, 32, 36, 112, 128, 144, 160, 208
    k(f"v_lshlrev_b32 v7, 2, v4\nv_sub_u32 v7, v3, v7\ns_mov_b32 s31, 0x{f2u(-1e30):x}\nv_mov_b32 v8, s31\nv_mov_b32 v9, 0")
    for r in range(16):
        k(f"v_cmp_gt_i32 s[{52+2*(r%4)}:{53+2*(r%4)}], {(r//4)*8 + r % 4}, v7")
        if r % 4 == 3:
            for q in range(r-3, r+1):
                m = f"s[{52+2*(q%4)}:{53+2*(q%4)}]"
                k(f"v_cndmask_b32 v{M0+q}, v8, v9, {m}\nv_cndmask_b32 v{M8+q}, v9, v8, {m}")
    k(f"""s_lshl_b32 s28, s8, 2
    s_add_u32 s28, s28, s4
    s_sub_u32 s28, s28, 8
    s_max_i32 s28, s28, 0
    s_lshl_b32 s27, s9, 17
    s_lshl_b32 s35, s28, 10
    s_add_u32 s36, s35, s27
    s_add_u32 s35, s36, s35
    s_add_u32 s36, s36, {KF}
    s_add_u32 s35, s35, {VF}
    s_lshl_b32 s38, s4, 10
    s_lshr_b32 s37, s4, 2
    s_mul_i32 s27, s37, {12*KB}
    s_lshl_b32 s28, s7, 10
    s_add_u32 s27, s27, s28
    s_add_u32 s27, s27, {LK}
    v_add_u32 v13, s27, v2
    s_lshl_b32 s27, s37, 8
    s_lshl_b32 s28, s7, 11
    s_add_u32 s27, s27, s28
    s_add_u32 s27, s27, {LV}
    v_add_u32 v12, s27, v2
    v_cmp_gt_u32 vcc, 16, v3
    v_mov_b32 v10, 0x400
    v_mov_b32 v11, {L1}
    v_cndmask_b32 v10, 0, v10, vcc
    v_cndmask_b32 v12, v11, v12, vcc
    v_add_u32 v11, s38, v15""")
    poll(f"""s_sub_u32 s27, s5, 2048
    s_cselect_b32 s27, s5, s27
    s_sub_u32 s28, s5, 4096
    s_cselect_b32 s28, s5, s28
    v_mov_b32 v5, s27
    v_mov_b32 v6, s28
    v_cndmask_b32 v5, v5, v6, vcc
    v_add_u32 v5, {CNT}, v5"""); k.stamp()
    for hh in range(2):
        k(f"s_add_u32 m0, s38, {LK + hh*12*KB}"); sadd(27, 36, hh*64*KB); k.dma(2, W, 's27', 'kv', fl=SC)
    k(f"s_lshl_b32 s38, s38, 1")
    for hh in range(2):
        k(f"s_add_u32 m0, s38, {LV + hh*KB}"); sadd(27, 35, hh*KB); k.dma(2, W, 's27', 'kv', fl=SC)
    k.dsr(vr(QR,4), 11, LQ & 0xffff)
    k.vm.all()
    k.vm.q = []; k.lg.all(); k("s_barrier")
    k(f"s_mul_i32 s29, s4, {12*KB}\ns_add_u32 s28, s41, s29\ns_mov_b32 vcc_hi, 0\ns_mov_b32 vcc_lo, s37")
    def gu(c): k(f"s_add_u32 m0, s29, {c*KB}"); sadd(27, 28, c*KB); k.dma(2, W, 's27', 'gu')
    def wo(i):
        if i % 4 == 0: sadd(30, 40, i*KB)
        k.bload(vr(48+4*i,4), 2, W, 's30', (i % 4)*KB, 'wo', fl=SC)
    pre = [x for i in range(16) for x in ([(wo, i), (gu, i)] if i < NGU else [(wo, i)])]
    def pf(n=1):
        for _ in range(n):
            if pre: f, i = pre.pop(0); f(i)
    def gcheck(u):
        k(f"s_cmp_lt_u32 s4, 4\ns_cbranch_scc1 p2_f{u}e\ns_lshl_b32 s27, s7, 13\ns_add_u32 s27, s27, {F0L}\nv_lshlrev_b32 v5, 7, v1\nv_add_u32 v5, s27, v5")
        spin(k, f"p2_f{u}", 5, 6, W); k("s_barrier")
    def mx(b, first=False):
        for i in range(8):
            a = 8 + i % 2
            k(f"v_max_f32 v{a}, v{b+2*i}, v{b+2*i+1}" if first and i < 2 else f"v_max3_f32 v{a}, v{a}, v{b+2*i}, v{b+2*i+1}")
    def fin_max(m0):
        k("v_max_f32 v8, v8, v9\nv_mov_b32 v9, v8\ns_nop 1\nv_permlane32_swap_b32 v9, v8\ns_nop 1\nv_max_f32 v8, v8, v9")
        if m0:
            for r in range(16): k(f"v_sub_f32 v{M0+r}, v{M0+r}, v8")
        for r in range(16): k(f"v_sub_f32 v{NM+r}, 0, v8")
        for r in range(16): k(f"v_sub_f32 v{M8+r}, v{M8+r}, v8")
    def vrd(c): k.dsr(vr(VR+4*(c % 3),4), 12, 0, f'v{c}'); k("v_add_u32 v12, v12, v10")
    k("s_cmp_lt_u32 s8, 2\ns_cbranch_scc1 p2_slow")
    for j in range(9): k.dsr(vr(KR+4*j,4), 13, j*KB, f'k{j}')
    def sb(j): return SB + 16*(j % 3)
    def qk(j, c): k.mfma32(vr(sb(j),16), vr(KR+4*j,4), vr(QR,4), c)
    def c1(j): return vr(M0,16) if j == 0 else vr(M8,16) if j == 8 else '0'
    def c2(j): return vr(M0,16) if j == 0 else vr(M8,16) if j == 8 else vr(NM,16)
    for j in range(2): k.lg.wait(f'k{j}'); qk(j, c1(j))
    k('s_nop 5')
    for j in range(9):
        if j+2 < 9: k.lg.wait(f'k{j+2}'); qk(j+2, c1(j+2))
        if j == 0: k("s_nop 3")
        if j == 8: vrd(0); vrd(1)
        mx(sb(j), j == 0)
    fin_max(True)
    qk(0, c2(0)); qk(1, c2(1)); gcheck(0); pf(2); k("s_nop 7")
    def pv(c):
        k.lg.wait(f'v{c}')
        k.mfma32(vr(OA,16), vr(VR+4*(c % 3),4), vr(sb(c//2)+8*(c % 2),4), '0' if c == 0 else vr(OA,16))
    for c in range(18):
        b = sb(c//2) + 8*(c % 2)
        for r in range(8): k(f"v_exp_f32 v{b+r}, v{b+r}")
        if c > 0: pv(c-1)
        if c % 2 == 0 and c//2+2 < 9: qk(c//2+2, c2(c//2+2))
        if c+2 < 18: vrd(c+2)
        pf(2 if c < 6 else 1)
        for r in range(4): k(f"v_cvt_pk_bf16_f32 v{b+r}, v{b+2*r}, v{b+2*r+1}")
    k("s_nop 1"); pv(17)
    k("s_branch p2_join\np2_slow:")
    assert not pre
    k(f"s_sub_u32 s30, 8, s24\ns_lshl_b32 s27, s30, 10\nv_add_u32 v13, s27, v13\nv_mov_b32 v7, v13\ns_lshl_b32 s27, s30, 1\nv_mad_u32_u24 v12, v10, s27, v12\nv_mov_b32 v8, s31\nv_mov_b32 v9, s31")
    for r in range(16): k(f"v_mov_b32 v{OA+r}, 0")
    for ps in range(2):
        k(f"s_mov_b32 s32, s30\np2_l{ps}:")
        k.dsr(vr(KR,4), 13 if ps == 0 else 7, 0)
        k(f"v_add_u32 v{13 if ps == 0 else 7}, 0x400, v{13 if ps == 0 else 7}")
        if ps: vrd(0); vrd(1)
        k.lg.all()
        k(f"s_cmp_eq_u32 s32, 8\ns_cbranch_scc1 p2_m{ps}")
        k.mfma32(vr(SB,16), vr(KR,4), vr(QR,4), vr(NM,16) if ps else '0')
        k(f"s_branch p2_n{ps}\np2_m{ps}:")
        k.mfma32(vr(SB,16), vr(KR,4), vr(QR,4), vr(M8,16))
        k(f"p2_n{ps}:\ns_nop 7\ns_nop 3")
        if ps == 0: mx(SB)
        else:
            for r in range(16): k(f"v_exp_f32 v{SB+r}, v{SB+r}")
            k("s_nop 0")
            for r in range(8): k(f"v_cvt_pk_bf16_f32 v{SB+16+r}, v{SB+2*r}, v{SB+2*r+1}")
            k("s_nop 1")
            for c in range(2): k.mfma32(vr(OA,16), vr(VR+4*c,4), vr(SB+16+4*c,4), vr(OA,16))
        k(f"s_add_u32 s32, s32, 1\ns_cmp_le_u32 s32, 8\ns_cbranch_scc1 p2_l{ps}")
        if ps == 0:
            fin_max(False)
            gcheck(1); k('s_mov_b32 s49, s30')
            for c in range(16): wo(c)
            k('s_mov_b32 s30, s49')
    for c in range(NGU): gu(c)
    k(f"""p2_join:
    s_lshl_b32 s30, s24, 15
    s_lshl_b32 s27, s9, 11
    s_add_u32 s30, s30, s27
    s_lshl_b32 s27, s37, 10
    s_add_u32 s30, s30, s27
    s_add_u32 s30, s30, {OF}
    s_nop 5
    v_rcp_f32 v8, v{OA+8}
    s_nop 0""")
    k.lg.q = []
    for r in range(8): k(f"v_mul_f32 v{OA+r}, v{OA+r}, v8")
    for r in range(4): k(f"v_cvt_pk_bf16_f32 v{OA+r}, v{OA+2*r}, v{OA+2*r+1}")
    k.bstore(vr(OA,4), 2, W, 's30', 0, fl=SC)
    k.stamp()
    arrive(1, 5)
    k(f"s_add_u32 s27, s2, s4\ns_cmp_lg_u32 s27, 0\ns_cbranch_scc1 p1_nn\nv_mov_b32 v5, {NONCE}\nv_mov_b32 v6, s60\ns_mov_b64 exec, 1\nbuffer_store_dword v6, v5, s[{W}:{W+3}], 0 offen sc1\ns_mov_b64 exec, -1\np1_nn:")
    for c in range(NGU, 12): gu(c)
    k.vm.q = []
```

```python
NAME = "adaLN_cond__sliding_block__glu_gated_glu__prompt"
MB = 1 << 20
import os
STAMP = bool(os.environ.get('STAMP'))
KB = 1024
MOD, MODH, CNT = 0, 16*KB, 29*MB + 512*KB
UVB = 29*MB + 256*KB
WQ, WO, WGU, WD = 256*KB, 256*KB+1536*KB, 256*KB+2048*KB, 256*KB+2048*KB+3584*KB
H1 = 8*MB; QF, KF, VF, OF, X1, YF, HF = 10*MB, 12*MB, 14*MB, 16*MB, 18*MB, 20*MB, 22*MB
STB = 29*MB
WS_SIZE = 30*MB
ARG = dict(x=0, wqkv=8, wo=16, wg=32, wu=40, wd=48, c=56, wmod=64, out=72, dbg=80, ws=88)
SIZE = dict(x=2*MB, wqkv=512*1536*2, wo=512*512*2, wg=512*1792*2, wu=512*1792*2, wd=1792*512*2,
            c=1024, wmod=512*3072*2, out=2*MB, dbg=256, ws=WS_SIZE)

def vr(b, n=1, p='v'):
    return f"{p}{b}" if n == 1 else f"{p}[{b}:{b+n-1}]"
def ar(b, n=1): return vr(b, n, 'a')
def sr(b, n=1): return vr(b, n, 's')

class Cnt:
    def __init__(s, k, name, mx): s.k, s.name, s.mx, s.q = k, name, mx, []
    def issue(s, tag): s.q.append(tag)
    def wait(s, *tags):
        idx = max((i for i, t in enumerate(s.q) if t in tags), default=None)
        if idx is None: return
        n = len(s.q) - 1 - idx
        s.k(f"s_waitcnt {s.name}({min(n, s.mx)})")
        if n > s.mx: s.q = s.q[len(s.q)-s.mx:]
        else: s.q = s.q[idx+1:]
    def all(s):
        s.k(f"s_waitcnt {s.name}(0)"); s.q = []

class Kern:
    def __init__(s, name, grid, block, lds, nv, na=0, ns=102):
        s.name, s.grid, s.block, s.lds, s.nv, s.na, s.ns = name, grid, block, lds, nv, na, ns
        s.L = []; s.nst = 0
        s.vm = Cnt(s, 'vmcnt', 63); s.lg = Cnt(s, 'lgkmcnt', 15)
    def __call__(s, line):
        for l in line.split('\n'):
            l = l.strip()
            if l: s.L.append(('' if l.endswith(':') else '  ') + l)
    def srds(s, m):
        for a, b in m.items(): s(f"s_load_dwordx2 {sr(b,2)}, s[0:1], {ARG[a]}")
        for a, b in m.items():
            s(f"s_mov_b32 s{b+2}, {SIZE[a]}\ns_mov_b32 s{b+3}, 0x20000")
    def bload(s, dst, voff, srd, soff=0, off=0, tag=None, w=4, fl=''):
        sx = {1: '', 2: 'x2', 4: 'x4'}[w]
        o = f" offset:{off}" if off else ''
        s(f"buffer_load_dword{sx} {dst}, v{voff}, {sr(srd,4)}, {soff} offen{o}{fl}"); s.vm.issue(tag)
    def bstore(s, src, voff, srd, soff=0, off=0, tag='st', w=4, fl=''):
        sx = {1: '', 2: 'x2', 4: 'x4'}[w]
        o = f" offset:{off}" if off else ''
        s(f"buffer_store_dword{sx} {src}, v{voff}, {sr(srd,4)}, {soff} offen{o}{fl}"); s.vm.issue(tag)
    def dma(s, voff, srd, soff, tag=None, fl=None):
        if fl is None: fl = ' sc1' if voff == 2 else ''
        s(f"buffer_load_dwordx4 v{voff}, {sr(srd,4)}, {soff} offen{fl} lds"); s.vm.issue(tag)
    def trd(s, dst, va, off, tag=None):
        assert 0 <= off < 65536, off
        s(f"ds_read_b64_tr_b16 {dst}, v{va} offset:{off}"); s.lg.issue(tag)
    def dsr(s, dst, va, off, tag=None, w=128):
        assert 0 <= off < 65536, off
        s(f"ds_read_b{w} {dst}, v{va} offset:{off}"); s.lg.issue(tag)
    def dsw(s, va, src, off, tag=None, w=128):
        assert 0 <= off < 65536, off
        s(f"ds_write_b{w} v{va}, {src} offset:{off}"); s.lg.issue(tag)
    def mfma16(s, d, a, b, c): s(f"v_mfma_f32_16x16x32_bf16 {d}, {a}, {b}, {c}")
    def mfma32(s, d, a, b, c): s(f"v_mfma_f32_32x32x16_bf16 {d}, {a}, {b}, {c}")
    def bfround(s, v):
        s(f"v_cvt_pk_bf16_f32 v{v}, v{v}, v{v}\nv_and_b32 v{v}, 0xffff0000, v{v}")
    def xsum(s, v, t):
        s(f"v_mov_b32 v{t}, v{v}\ns_nop 1\nv_permlane16_swap_b32 v{t}, v{v}\ns_nop 1\nv_add_f32 v{v}, v{v}, v{t}")
        s(f"v_mov_b32 v{t}, v{v}\ns_nop 1\nv_permlane32_swap_b32 v{t}, v{v}\ns_nop 1\nv_add_f32 v{v}, v{v}, v{t}")
    def uid(s):
        s._u = getattr(s, '_u', 0) + 1; return s._u
    def stamp(s):
        if not STAMP: return
        i = s.nst; s.nst += 1
        if i >= 19: return
        s(f"s_{'memrealtime' if i == 0 else 'memtime'} s[{62+2*i}:{63+2*i}]\ns_waitcnt lgkmcnt(0)"); s.lg.q = []
        if i == 0: s.stamp()
    def stamp_end(s, kid, wv='s4'):
        if not STAMP: return
        s.stamp()
        if os.environ.get('DBG'):
            s(f"s_memrealtime s[100:101]\ns_load_dwordx2 s[52:53], s[0:1], 80\ns_mov_b32 s54, 256\ns_mov_b32 s55, 0x20000\ns_mov_b64 exec, 1\ns_waitcnt lgkmcnt(0)\nv_mov_b32 v0, 0")
            s(f"s_cmp_lg_u32 s4, 0\ns_cbranch_scc1 dbg_e")
            for j, i in enumerate(list(range(3, 18)) + [19]):
                b = 64 if i < 19 else 62
                s(f"s_sub_u32 s58, s{62+2*i}, s{b}\nv_mov_b32 v2, s58\nbuffer_atomic_umax v2, v0, s[52:55], 0 offen offset:{4*j} sc1\ns_nop 1")
            s("dbg_e:")
            return
        s(f"s_memrealtime s[100:101]\ns_load_dwordx2 s[52:53], s[0:1], 88\ns_mov_b32 s54, 0x4000000\ns_mov_b32 s55, 0x20000\ns_mov_b64 exec, 1")
        s(f"s_lshl_b32 s58, s2, 11\ns_lshl_b32 s59, {wv}, 8\ns_add_u32 s58, s58, s59\ns_add_u32 s58, s58, {32*MB + kid*MB}\ns_waitcnt lgkmcnt(0)\nv_mov_b32 v0, 0")
        for i in range(20):
            if i < min(s.nst, 19) or i == 19: s(f"v_mov_b32 v2, s{62+2*i}\nv_mov_b32 v3, s{63+2*i}")
            else: s("v_mov_b32 v2, 0\nv_mov_b32 v3, 0")
            s(f"buffer_store_dwordx2 v[2:3], v0, s[52:55], s58 offen offset:{8*i}\ns_nop 1")
    def text(s):
        return (f".globl {s.name}\n.p2align 8\n.type {s.name},@function\n{s.name}:\n" + '\n'.join(s.L) + "\n")
    def desc(s):
        acc = (s.nv + 3)//4*4
        tot = acc + s.na if s.na else s.nv
        return f""".p2align 6
.amdhsa_kernel {s.name}
  .amdhsa_next_free_vgpr {tot}
  .amdhsa_next_free_sgpr {s.ns}
  .amdhsa_accum_offset {acc}
  .amdhsa_group_segment_fixed_size 0
  .amdhsa_kernarg_size 96
  .amdhsa_user_sgpr_count 2
  .amdhsa_user_sgpr_kernarg_segment_ptr 1
  .amdhsa_system_sgpr_workgroup_id_x 1
.end_amdhsa_kernel
"""

def interleave(main, fill, per):
    out = []; fi = 0; acc = 0.0
    for m in main:
        out.append(m); acc += per
        while acc >= 1 and fi < len(fill):
            out.append(fill[fi]); fi += 1; acc -= 1
    out += fill[fi:]
    return out

def emit(kerns, path, launches=None):
    hdr = open(f'cdna_kernels/{NAME}.s.ref').read().split('; Override launch')[0]
    s = hdr
    if len(kerns) == 1 and kerns[0].name == NAME + '_kernel' and not STAMP:
        k = kerns[0]; s += f"; @launch grid=({k.grid},1,1) block=({k.block},1,1) lds={k.lds}\n"
    else:
      for k in (launches or kerns):
        s += f"; @launch kernel={k.name} grid=({k.grid},1,1) block=({k.block},1,1) lds={k.lds}\n"
    s += '.amdgcn_target "amdgcn-amd-amdhsa--gfx950"\n.text\n'
    for k in kerns: s += k.text()
    s += '.section .rodata,"a"\n'
    for k in kerns: s += k.desc()
    open(path, 'w').write(s)
```

```python
from lib import *
from k01 import ln_scalars, LOG2E
import struct, math
def f2u(x): return struct.unpack('<I', struct.pack('<f', x))[0]
SC = ' sc1'
RR = 96*KB
def kb():
    k = Kern(NAME + "_kernel", 256, 512, 163840, 256)
    W = 12
    def run(x): k(x) if isinstance(x, str) else x()
    def sadd(d, b, imm): k(f"s_add_u32 s{d}, s{b}, {imm}")
    def arrive(ph, sidx):
        k.vm.all(); k("s_barrier")
        lab = f"arr{k.uid()}"
        k(f"s_cmp_lg_u32 s4, 0\ns_cbranch_scc1 {lab}\ns_mov_b64 exec, 1\nv_mov_b32 v5, {CNT + ph*32768}\nv_mov_b32 v6, s60")
        k(f"buffer_store_dword v6, v5, s[{W}:{W+3}], s{sidx} offen sc1\ns_mov_b64 exec, -1\n{lab}:")
    def poll(addr):
        lab = f"pol{k.uid()}"
        k(f"s_cmp_lg_u32 s4, 3\ns_cbranch_scc1 {lab}e\ns_mov_b32 s50, 0x40000")
        k(addr)
        k(f"""{lab}:
        buffer_load_dword v6, v5, s[{W}:{W+3}], 0 offen sc1
        s_waitcnt vmcnt(0)
        v_cmp_ne_u32 vcc, s60, v6
        s_cbranch_vccz {lab}e
        s_sub_u32 s50, s50, 1
        s_cbranch_scc0 {lab}
        {lab}e:
        s_barrier""")
    def row16(ph, srow):
        return f"s_lshl_b32 s27, s{srow}, 11\ns_add_u32 s27, s27, {CNT + ph*32768}\nv_and_b32 v5, 15, v1\nv_lshlrev_b32 v5, 7, v5\nv_add_u32 v5, s27, v5"
    k("s_cmp_ge_u32 s2, 256\ns_cbranch_scc1 pb_kernel_end")
    k.stamp()
    def tmap(nr, R, sr_, sc_):
        lr = R.bit_length()-1; ng = nr//R; lg_ = ng.bit_length()-1
        k(f"""s_and_b32 s27, s2, {ng-1}
        s_lshl_b32 s{sr_}, s27, {lr}
        s_bfe_u32 s27, s2, {(lr << 16) | 3}
        s_add_u32 s{sr_}, s{sr_}, s27
        s_bfe_u32 s27, s2, {((3-lg_) << 16) | lg_}
        s_lshl_b32 s{sc_}, s27, {5-lr}
        s_lshr_b32 s27, s2, {3+lr}
        s_add_u32 s{sc_}, s{sc_}, s27""")
    from ka import F0C
    from kb0 import phase0
    phase0(k, tmap, int(os.environ.get('R1', 8))); k.stamp()
    k.srds(dict(ws=W, x=16, out=20))
    k("""v_and_b32 v1, 63, v0
    v_lshrrev_b32 v4, 6, v0
    v_lshlrev_b32 v2, 4, v1
    v_readfirstlane_b32 s4, v4
    v_and_b32 v3, 31, v0
    v_bfe_u32 v4, v0, 5, 1
    s_and_b32 s7, s4, 3""")
    tmap(16, int(os.environ.get('R1', 8)), 8, 9); tmap(32, int(os.environ.get('R3', 4)), 10, 11); tmap(16, int(os.environ.get('R4', 8)), 44, 45)
    k("s_lshl_b32 s46, s44, 2\ns_add_u32 s46, s46, s7\ns_lshl_b32 s47, s44, 4\ns_add_u32 s47, s47, s45\ns_lshl_b32 s47, s47, 7")
    k(f"""s_lshl_b32 s24, s8, 2
    s_add_u32 s24, s24, s7
    s_lshl_b32 s25, s10, 1
    s_and_b32 s27, s4, 1
    s_add_u32 s25, s25, s27
    s_lshr_b32 s26, s4, 1
    s_lshl_b32 s5, s8, 4
    s_add_u32 s5, s5, s9
    s_lshl_b32 s5, s5, 7
    s_lshl_b32 s6, s10, 3
    s_add_u32 s6, s6, s11
    s_lshl_b32 s6, s6, 7
    s_lshr_b32 s51, s10, 1
    s_lshr_b32 s34, s6, 8
    s_bitcmp1_b32 s6, 7
    s_cselect_b32 s34, 127, s34
    s_lshl_b32 s40, s11, 16
    s_lshl_b32 s27, s26, 14
    s_add_u32 s40, s40, s27
    s_add_u32 s40, s40, {WO}
    s_mul_i32 s41, s45, {224*KB}
    s_add_u32 s41, s41, {WGU}
    s_mul_i32 s42, s11, {224*KB}
    s_mul_i32 s27, s4, {28*KB}
    s_add_u32 s42, s42, s27
    s_add_u32 s42, s42, {WD}
    v_add_u32 v14, 0x10000, v2
    v_add_u32 v15, 0x20000, v2
    s_waitcnt lgkmcnt(0)
""")
    poll(f"v_lshlrev_b32 v5, 7, v1\nv_add_u32 v5, {F0C}, v5"); k.stamp()
    def ldsr(dst, off, tag):
        k.dsr(dst, [2, 14, 15][off >> 16], off & 0xffff, tag)
    def loads(dst, sbase, n, tag, fl=SC, step=1024, tags=None):
        for i in range(n):
            if (i*step) % 4096 == 0 or step > 1024: sadd(27, sbase, (i*step)//4096*4096 if step <= 1024 else i*step)
            k.bload(vr(dst+4*i,4), 2, W, 's27', (i*step) % 4096 if step <= 1024 else 0, tags(i) if tags else tag, fl=fl)
    def wo_loads(): loads(48, 40, 16, 'wo')
    from kb1 import p12
    p12(k, W, run, sadd, arrive, poll, ldsr, loads, wo_loads)
    XR, GA, A2, AC3, OFR = 8, 16, 24, 144, 112
    k(f"""v_lshlrev_b32 v7, 10, v3
    v_lshl_add_u32 v7, v4, 4, v7
    s_lshl_b32 s43, s25, 15
    s_lshl_b32 s27, s11, 7
    s_add_u32 s43, s43, s27
    s_lshl_b32 s27, s26, 5
    s_add_u32 s43, s43, s27
    v_lshlrev_b32 v12, 4, v4
    s_lshl_b32 s39, s11, 8
    s_lshl_b32 s27, s26, 6
    s_add_u32 s39, s39, s27
    s_add_u32 s28, s39, {MOD+4096}
    s_add_u32 s29, s39, {MOD+8192}""")
    k.bload(vr(XR,4), 7, 16, 's43', 0, 'e')
    for e in range(2):
        k.bload(vr(GA+4*e,4), 12, W, 's28', e*32, 'e', fl=SC); k.bload(vr(A2+4*e,4), 12, W, 's29', e*32, 'e', fl=SC)
    from kb1 import uvjob
    uvfin = uvjob(k, W, loads)
    k(f"s_lshl_b32 s28, s25, 15\ns_lshl_b32 s27, s26, 13\ns_add_u32 s28, s28, s27\ns_add_u32 s28, s28, {OF}")
    poll(row16(1, 51)); k.stamp()
    loads(OFR, 28, 8, None, fl=SC, tags=lambda i: f'o{i}')
    uvfin()
    for s in range(8):
        k.vm.wait(f'o{s}')
        for nt in range(2):
            d = vr(AC3+16*nt,16); k.mfma32(d, vr(48+8*s+4*nt,4), vr(OFR+4*s,4), '0' if s == 0 else d)
    from kb1 import NGU
    k(f"s_mul_i32 s29, s4, {12*KB}\ns_add_u32 s28, s41, s29")
    for c in range(NGU, 12): k(f"s_add_u32 m0, s29, {c*KB}"); sadd(27, 28, c*KB); k.dma(2, W, 's27', 'gu')
    k(f"""s_and_b32 s27, s4, 1
    s_lshl_b32 s27, s27, 13
    s_lshl_b32 s28, s26, 11
    s_add_u32 s28, s28, s27
    s_add_u32 s28, s28, {RR}
    v_add_u32 v13, s28, v2
    s_lshl_b32 s28, s4, 13
    s_add_u32 s28, s28, {RR}
    v_permlane32_swap_b32 v{XR}, v{XR+2}
    v_permlane32_swap_b32 v{XR+1}, v{XR+3}
    s_nop 4""")
    for q in range(4):
        for e in range(2): k.dsw(13, vr(AC3+8*q+4*e,4), q*16384 + e*1024)
    k("v_add_u32 v13, s28, v2"); k.lg.all(); k("s_barrier")
    for q in range(4):
        for e in range(2): k.dsr(vr(AC3+8*q+4*e,4), 13, q*2048 + e*1024, f'r{q}')
    for q in range(1, 4):
        k.lg.wait(f'r{q}')
        for r in range(0, 8, 2): k(f"v_pk_add_f32 v[{AC3+r}:{AC3+r+1}], v[{AC3+r}:{AC3+r+1}], v[{AC3+8*q+r}:{AC3+8*q+r+1}]")
    k("v_mov_b32 v36, 0\nv_mov_b32 v37, 0")
    for r in range(4):
        k(f"""v_lshlrev_b32 v32, 16, v{XR+r}
        v_and_b32 v33, 0xffff0000, v{XR+r}
        v_fma_f32 v32, v{AC3+2*r}, v{GA+2*r}, v32
        v_fma_f32 v33, v{AC3+2*r+1}, v{GA+2*r+1}, v33
        v_cvt_pk_bf16_f32 v{XR+r}, v32, v33
        v_lshlrev_b32 v32, 16, v{XR+r}
        v_and_b32 v33, 0xffff0000, v{XR+r}
        v_add_f32 v36, v36, v32
        v_fmac_f32 v37, v32, v32
        v_add_f32 v36, v36, v33
        v_fmac_f32 v37, v33, v33
        v_mul_f32 v32, v32, v{A2+2*r}
        v_mul_f32 v33, v33, v{A2+2*r+1}
        v_cvt_pk_bf16_f32 v{40+r}, v32, v33""")
    k(f"""s_lshl_b32 s28, s25, 15
    s_lshl_b32 s27, s11, 12
    s_add_u32 s28, s28, s27
    s_lshl_b32 s27, s26, 10
    s_add_u32 s28, s28, s27
    s_add_u32 s28, s28, {YF}
    v_permlane32_swap_b32 v40, v42
    v_permlane32_swap_b32 v41, v43""")
    k.bstore(vr(40,4), 2, W, 's28', 0, fl=SC)
    k.dsw(13, vr(36,2), 0, w=64); k.lg.all(); k("s_barrier")
    k(f"""s_cmp_ge_u32 s4, 2
    s_cbranch_scc1 p3_b""")
    for q in range(4): k.dsr(vr(32+2*q,2), 13, q*16384, w=64)
    k.lg.all()
    k(f"""v_add_f32 v32, v32, v34
    v_add_f32 v33, v33, v35
    v_add_f32 v36, v36, v38
    v_add_f32 v37, v37, v39
    v_add_f32 v32, v32, v36
    v_add_f32 v33, v33, v37
    v_mov_b32 v34, v32
    v_mov_b32 v35, v33
    s_lshl_b32 s28, s25, 11
    s_lshl_b32 s27, s11, 8
    v_permlane32_swap_b32 v34, v32
    v_permlane32_swap_b32 v35, v33
    s_add_u32 s28, s28, s27
    s_add_u32 s28, s28, {STB}
    v_add_f32 v32, v32, v34
    v_add_f32 v33, v33, v35
    v_lshlrev_b32 v34, 3, v3
    s_mov_b32 exec_hi, 0""")
    k.bstore(vr(32,2), 34, W, 's28', 0, w=2, fl=SC)
    k("s_mov_b32 exec_hi, -1")
    k("p3_b:")
    k.stamp()
    arrive(2, 6); k.vm.q = []
    from kb2 import p45
    p45(k, W, run, sadd, arrive, poll, ldsr, loads, row16)
    k("pb_kernel_end:\ns_endpgm")
    return k
```

```python
from lib import *
import struct, math
def f2u(x): return struct.unpack('<I', struct.pack('<f', x))[0]
SC = ' sc1'
RR = 96*KB
LK, LV, LQ, LU, LM, L1 = RR, RR+24*KB, RR+48*KB, RR+56*KB, RR+58*KB, RR+63*KB
def uvjob(k, W, loads):
    k("s_cmp_ge_u32 s34, 112\ns_cbranch_scc1 uv_a\ns_cmp_lt_u32 s4, 4\ns_cbranch_scc1 uv_a")
    k(f"""s_lshl_b32 s28, s34, 15
    s_lshl_b32 s27, s7, 13
    s_add_u32 s28, s28, s27
    s_add_u32 s28, s28, {WGU}
    v_and_b32 v13, 1, v1
    v_lshlrev_b32 v13, 10, v13
    v_sub_u32 v13, {LM + 1024}, v13
    v_lshl_add_u32 v13, v4, 4, v13
    s_lshl_b32 s27, s7, 8
    v_add_u32 v13, s27, v13""")
    for i in range(2):
        k(f"s_mov_b32 m0, {LM + i*KB}\ns_mov_b32 s27, {MODH + 3072 + i*KB}"); k.dma(2, W, 's27', 'mh')
    loads(128, 28, 8, 'a'); k.vm.wait('mh')
    for c in range(8): k.dsr(vr(160+4*c,4), 13, c*32)
    k(f"v_lshlrev_b32 v13, 7, v3\nv_lshl_add_u32 v13, v4, 4, v13\ns_lshl_b32 s27, s7, 8\ns_add_u32 s27, s27, {LU}\nv_add_u32 v13, s27, v13")
    k.vm.all(); k.lg.all()
    for c in range(8): k.mfma32(vr(192,16), vr(128+4*c,4), vr(160+4*c,4), '0' if c == 0 else vr(192,16))
    k("s_nop 7\ns_nop 3\ns_mov_b32 exec_lo, 3\ns_mov_b32 exec_hi, 3")
    for q in range(4): k.dsw(13, vr(192+4*q,4), q*32)
    k("s_mov_b64 exec, -1\nuv_a:"); k.lg.all(); k.vm.q = []
    def fin():
        SB = 176
        k(f"s_cmp_ge_u32 s34, 112\ns_cbranch_scc1 uv_b\ns_cmp_lg_u32 s4, 4\ns_cbranch_scc1 uv_b\nv_lshlrev_b32 v13, 2, v3\nv_add_u32 v13, {LU}, v13")
        for w in range(4):
            for n in range(2): k.dsr(vr(SB+2*w+n), 13, w*256 + n*128, w=32)
        k.lg.all(); k("s_barrier")
        for w in range(1, 4): k(f"v_add_f32 v{SB}, v{SB}, v{SB+2*w}\nv_add_f32 v{SB+1}, v{SB+1}, v{SB+2*w+1}")
        for n in range(2):
            x = SB+n; t = SB+2+3*n
            k(f"v_and_b32 v{t}, 0xffff0000, v{x}\nv_sub_f32 v{x}, v{x}, v{t}\nv_and_b32 v{t+1}, 0xffff0000, v{x}\nv_sub_f32 v{t+2}, v{x}, v{t+1}")
        k(f"""v_cvt_pk_bf16_f32 v{SB+8}, v{SB+2}, v{SB+3}
        v_cvt_pk_bf16_f32 v{SB+9}, v{SB+4}, v{SB+5}
        v_cvt_pk_bf16_f32 v{SB+10}, v{SB+6}, v{SB+7}
        v_mov_b32 v{SB+11}, 0
        s_lshl_b32 s27, s34, 10
        s_add_u32 s27, s27, {UVB}
        buffer_store_dwordx4 v[{SB+8}:{SB+11}], v2, s[{W}:{W+3}], s27 offen sc1
        s_waitcnt vmcnt(1)
        s_branch uv_c
        uv_b:
        s_barrier
        uv_c:""")
    return fin
NGU = int(os.environ.get('NGU', 6))
def p12(k, W, run, sadd, arrive, poll, ldsr, loads, wo_loads):
    def ldsw(src, off, base):
        k.dsw(base + (off >> 16) - 1, src, off & 0xffff)
    from ka import spin, NONCE, F0L
    k(f"""s_and_b32 s27, s4, 3
    s_lshl_b32 s27, s27, 10
    s_add_u32 m0, s27, {LM}
    s_lshr_b32 s37, s4, 2
    s_cbranch_scc1 p1_nm""")
    k.dma(2, W, 's27', 'md'); k("p1_nm:")
    k(f"""v_bfe_u32 v8, v1, 2, 2
    v_lshl_add_u32 v8, v4, 3, v8
    v_lshlrev_b32 v8, 6, v8
    v_bfe_u32 v9, v1, 4, 1
    v_lshl_add_u32 v8, v9, 5, v8
    v_and_b32 v9, 3, v1
    v_lshl_add_u32 v8, v9, 3, v8
    s_lshl_b32 s27, s37, 14
    v_add_u32 v8, s27, v8
    v_add_u32 v9, 0x10000, v8
    v_lshlrev_b32 v7, 5, v4
    s_lshl_b32 s27, s37, 10
    s_add_u32 s27, s27, {LM}
    v_add_u32 v7, s27, v7""")
    NF, MS, HB = 6, 88, 120
    seq = [(p, kc) for kc in range(16) for p in (1, 2, 0)]
    def rd(i):
        p, kc = seq[i]
        for e in range(2): k.trd(vr(64+4*(i % NF)+2*e,2), 8 + p//2, (p % 2)*32*KB + kc*KB + e*256, f'w{i}')
    def rdm(kc):
        for j in range(4): k.dsr(vr(MS+16*(kc % 2)+4*j,4), 7, kc*64 + (j//2)*2048 + (j % 2)*16, f'm{kc}')
    def modu(kc):
        M = MS+16*(kc % 2); x = 128+8*kc
        k.lg.wait(f'm{kc}')
        for r in range(0, 8, 2): k(f"v_pk_fma_f32 v[{x+r}:{x+r+1}], v[{x+r}:{x+r+1}], v[{M+8+r}:{M+9+r}], v[{M+r}:{M+r+1}]")
        if kc+2 < 16: rdm(kc+2)
        for r in range(4): k(f"v_cvt_pk_bf16_f32 v{HB+4*(kc % 2)+r}, v{x+2*r}, v{x+2*r+1}")
    k("s_cmp_lg_u32 s55, -1\ns_cbranch_scc1 p1_w8\ns_waitcnt vmcnt(0)\np1_w8:\ns_waitcnt vmcnt(8)\ns_barrier"); k.vm.q = []
    rdm(0); rdm(1)
    for q in range(3): rd(q)
    modu(0)
    for i, (p, kc) in enumerate(seq):
        if i+3 < 48: rd(i+3)
        k.lg.wait(f'w{i}')
        d = vr([48,16,32][p],16); w = vr(64+4*(i % NF),4); h = vr(HB+4*(kc % 2),4); c = '0' if kc == 0 else d
        if p < 2: k.mfma32(d, w, h, c)
        else: k.mfma32(d, h, w, c)
        if p == 1 and kc < 15: modu(kc+1)
        if p == 0 and kc == int(os.environ.get('JK', 5)):
            from ka import job_finish
            q0 = list(k.lg.q)
            k("s_cmp_eq_u32 s55, -1\ns_cbranch_scc1 p1_nj"); job_finish(k, W, 128); k("p1_nj:"); k.lg.q = q0
    k.stamp()
    k(f"""s_lshl_b32 s30, s9, 17
    s_lshl_b32 s27, s24, 10
    s_add_u32 s31, s30, s27
    s_add_u32 s30, s31, s27
    s_add_u32 s31, s31, {KF}
    s_add_u32 s30, s30, {VF}
    s_add_u32 s32, s31, 0x10000
    s_lshl_b32 s27, s7, 10
    v_add_u32 v8, s27, v14
    v_add_u32 v9, s27, v15
    v_add_u32 v10, s27, v8
    v_add_u32 v11, s27, v9
    s_mul_i32 s27, s7, {12*KB}
    v_add_u32 v7, s27, v2
    s_cmp_ge_u32 s4, 4
    s_cbranch_scc1 p1_L
    s_barrier""")
    for q in range(4): k.dsw(7, vr(48+4*q,4), (8+q)*KB)
    k.lg.all(); k("s_barrier")
    for q in range(8): k.dsr(vr(64+4*q,4), 7, q*KB, f'r{q//4}')
    for p in (1, 2):
        k.lg.wait(f'r{p-1}')
        for r in range(0, 16, 2): k(f"v_pk_add_f32 v[{16*p+r}:{16*p+r+1}], v[{16*p+r}:{16*p+r+1}], v[{48+16*p+r}:{48+16*p+r+1}]")
        for r in range(8): k(f"v_cvt_pk_bf16_f32 v{96+8*p+r}, v{16*p+2*r}, v{16*p+2*r+1}")
        for hh in range(2):
            src = vr(96+8*p+4*hh,4)
            if p == 1: k.bstore(src, 2, W, f's{31+hh}', 0, fl=SC); ldsw(src, LK + (hh*12+8)*KB, 8)
            else: k.bstore(src, 2, W, 's30', hh*KB, fl=SC); ldsw(src, LV + (16+hh)*KB, 10)
    k(f"s_branch p1_J\np1_L:\ns_waitcnt vmcnt(0)\ns_barrier\ns_cmp_lg_u32 s4, 4\ns_cbranch_scc1 p1_nf\ns_lshl_b32 s27, s2, 7\nv_mov_b32 v5, {F0L}\nv_mov_b32 v6, s60\ns_mov_b64 exec, 1\nbuffer_store_dword v6, v5, s[{W}:{W+3}], s27 offen sc1\ns_mov_b64 exec, -1\np1_nf:")
    for q in range(8): k.dsw(7, vr(16+4*q,4), q*KB)
    k.lg.all(); k("s_barrier")
    for q in range(4): k.dsr(vr(64+4*q,4), 7, (8+q)*KB)
    k(f"s_mov_b32 s33, 0x{f2u(0.25*math.log2(math.e)):x}\nv_mov_b32 v16, 0x3f803f80\nv_mov_b32 v17, v16\nv_mov_b32 v18, v16\nv_mov_b32 v19, v16")
    k.dsw(15, vr(16,4), L1 & 0xffff); k.lg.all()
    for r in range(16): k(f"v_add_f32 v{48+r}, v{48+r}, v{64+r}\nv_mul_f32 v{48+r}, s33, v{48+r}")
    for r in range(8): k(f"v_cvt_pk_bf16_f32 v{64+r}, v{48+2*r}, v{49+2*r}")
    for hh in range(2): ldsw(vr(64+4*hh,4), LQ + hh*4*KB, 8)
    k("p1_J:"); k.lg.all()
    arrive(0, 5); k.vm.q = []
    OA, QR, VR, M0, M8, NM, SB, KR = 16, 32, 36, 112, 128, 144, 160, 208
    k(f"v_lshlrev_b32 v7, 2, v4\nv_sub_u32 v7, v3, v7\ns_mov_b32 s31, 0x{f2u(-1e30):x}\nv_mov_b32 v8, s31\nv_mov_b32 v9, 0")
    for r in range(16):
        k(f"v_cmp_gt_i32 s[{52+2*(r%4)}:{53+2*(r%4)}], {(r//4)*8 + r % 4}, v7")
        if r % 4 == 3:
            for q in range(r-3, r+1):
                m = f"s[{52+2*(q%4)}:{53+2*(q%4)}]"
                k(f"v_cndmask_b32 v{M0+q}, v8, v9, {m}\nv_cndmask_b32 v{M8+q}, v9, v8, {m}")
    k(f"""s_lshl_b32 s28, s8, 2
    s_add_u32 s28, s28, s4
    s_sub_u32 s28, s28, 8
    s_max_i32 s28, s28, 0
    s_lshl_b32 s27, s9, 17
    s_lshl_b32 s35, s28, 10
    s_add_u32 s36, s35, s27
    s_add_u32 s35, s36, s35
    s_add_u32 s36, s36, {KF}
    s_add_u32 s35, s35, {VF}
    s_lshl_b32 s38, s4, 10
    s_lshr_b32 s37, s4, 2
    s_mul_i32 s27, s37, {12*KB}
    s_lshl_b32 s28, s7, 10
    s_add_u32 s27, s27, s28
    s_add_u32 s27, s27, {LK}
    v_add_u32 v13, s27, v2
    s_lshl_b32 s27, s37, 8
    s_lshl_b32 s28, s7, 11
    s_add_u32 s27, s27, s28
    s_add_u32 s27, s27, {LV}
    v_add_u32 v12, s27, v2
    v_cmp_gt_u32 vcc, 16, v3
    v_mov_b32 v10, 0x400
    v_mov_b32 v11, {L1}
    v_cndmask_b32 v10, 0, v10, vcc
    v_cndmask_b32 v12, v11, v12, vcc
    v_add_u32 v11, s38, v15""")
    poll(f"""s_sub_u32 s27, s5, 2048
    s_cselect_b32 s27, s5, s27
    s_sub_u32 s28, s5, 4096
    s_cselect_b32 s28, s5, s28
    v_mov_b32 v5, s27
    v_mov_b32 v6, s28
    v_cndmask_b32 v5, v5, v6, vcc
    v_add_u32 v5, {CNT}, v5"""); k.stamp()
    for hh in range(2):
        k(f"s_add_u32 m0, s38, {LK + hh*12*KB}"); sadd(27, 36, hh*64*KB); k.dma(2, W, 's27', 'kv', fl=SC)
    k(f"s_lshl_b32 s38, s38, 1")
    for hh in range(2):
        k(f"s_add_u32 m0, s38, {LV + hh*KB}"); sadd(27, 35, hh*KB); k.dma(2, W, 's27', 'kv', fl=SC)
    k.dsr(vr(QR,4), 11, LQ & 0xffff)
    k.vm.all()
    k.vm.q = []; k.lg.all(); k("s_barrier")
    k(f"s_mul_i32 s29, s4, {12*KB}\ns_add_u32 s28, s41, s29\ns_mov_b32 vcc_hi, 0\ns_mov_b32 vcc_lo, s37")
    def gu(c): k(f"s_add_u32 m0, s29, {c*KB}"); sadd(27, 28, c*KB); k.dma(2, W, 's27', 'gu')
    def wo(i):
        if i % 4 == 0: sadd(30, 40, i*KB)
        k.bload(vr(48+4*i,4), 2, W, 's30', (i % 4)*KB, 'wo', fl=SC)
    pre = [x for i in range(16) for x in ([(wo, i), (gu, i)] if i < NGU else [(wo, i)])]
    def pf(n=1):
        for _ in range(n):
            if pre: f, i = pre.pop(0); f(i)
    def gcheck(u):
        k(f"s_cmp_lt_u32 s4, 4\ns_cbranch_scc1 p2_f{u}e\ns_lshl_b32 s27, s7, 13\ns_add_u32 s27, s27, {F0L}\nv_lshlrev_b32 v5, 7, v1\nv_add_u32 v5, s27, v5")
        spin(k, f"p2_f{u}", 5, 6, W); k("s_barrier")
    def mx(b, first=False):
        for i in range(8):
            a = 8 + i % 2
            k(f"v_max_f32 v{a}, v{b+2*i}, v{b+2*i+1}" if first and i < 2 else f"v_max3_f32 v{a}, v{a}, v{b+2*i}, v{b+2*i+1}")
    def fin_max(m0):
        k("v_max_f32 v8, v8, v9\nv_mov_b32 v9, v8\ns_nop 1\nv_permlane32_swap_b32 v9, v8\ns_nop 1\nv_max_f32 v8, v8, v9")
        if m0:
            for r in range(16): k(f"v_sub_f32 v{M0+r}, v{M0+r}, v8")
        for r in range(16): k(f"v_sub_f32 v{NM+r}, 0, v8")
        for r in range(16): k(f"v_sub_f32 v{M8+r}, v{M8+r}, v8")
    def vrd(c): k.dsr(vr(VR+4*(c % 3),4), 12, 0, f'v{c}'); k("v_add_u32 v12, v12, v10")
    k("s_cmp_lt_u32 s8, 2\ns_cbranch_scc1 p2_slow")
    for j in range(9): k.dsr(vr(KR+4*j,4), 13, j*KB, f'k{j}')
    def sb(j): return SB + 16*(j % 3)
    def qk(j, c): k.mfma32(vr(sb(j),16), vr(KR+4*j,4), vr(QR,4), c)
    def c1(j): return vr(M0,16) if j == 0 else vr(M8,16) if j == 8 else '0'
    def c2(j): return vr(M0,16) if j == 0 else vr(M8,16) if j == 8 else vr(NM,16)
    for j in range(2): k.lg.wait(f'k{j}'); qk(j, c1(j))
    k('s_nop 5')
    for j in range(9):
        if j+2 < 9: k.lg.wait(f'k{j+2}'); qk(j+2, c1(j+2))
        if j == 0: k("s_nop 3")
        if j == 8: vrd(0); vrd(1)
        mx(sb(j), j == 0)
    fin_max(True)
    qk(0, c2(0)); qk(1, c2(1)); gcheck(0); pf(2); k("s_nop 7")
    def pv(c):
        k.lg.wait(f'v{c}')
        k.mfma32(vr(OA,16), vr(VR+4*(c % 3),4), vr(sb(c//2)+8*(c % 2),4), '0' if c == 0 else vr(OA,16))
    for c in range(18):
        b = sb(c//2) + 8*(c % 2)
        for r in range(8): k(f"v_exp_f32 v{b+r}, v{b+r}")
        if c > 0: pv(c-1)
        if c % 2 == 0 and c//2+2 < 9: qk(c//2+2, c2(c//2+2))
        if c+2 < 18: vrd(c+2)
        pf(2 if c < 6 else 1)
        for r in range(4): k(f"v_cvt_pk_bf16_f32 v{b+r}, v{b+2*r}, v{b+2*r+1}")
    k("s_nop 1"); pv(17)
    k("s_branch p2_join\np2_slow:")
    assert not pre
    k(f"s_sub_u32 s30, 8, s24\ns_lshl_b32 s27, s30, 10\nv_add_u32 v13, s27, v13\nv_mov_b32 v7, v13\ns_lshl_b32 s27, s30, 1\nv_mad_u32_u24 v12, v10, s27, v12\nv_mov_b32 v8, s31\nv_mov_b32 v9, s31")
    for r in range(16): k(f"v_mov_b32 v{OA+r}, 0")
    for ps in range(2):
        k(f"s_mov_b32 s32, s30\np2_l{ps}:")
        k.dsr(vr(KR,4), 13 if ps == 0 else 7, 0)
        k(f"v_add_u32 v{13 if ps == 0 else 7}, 0x400, v{13 if ps == 0 else 7}")
        if ps: vrd(0); vrd(1)
        k.lg.all()
        k(f"s_cmp_eq_u32 s32, 8\ns_cbranch_scc1 p2_m{ps}")
        k.mfma32(vr(SB,16), vr(KR,4), vr(QR,4), vr(NM,16) if ps else '0')
        k(f"s_branch p2_n{ps}\np2_m{ps}:")
        k.mfma32(vr(SB,16), vr(KR,4), vr(QR,4), vr(M8,16))
        k(f"p2_n{ps}:\ns_nop 7\ns_nop 3")
        if ps == 0: mx(SB)
        else:
            for r in range(16): k(f"v_exp_f32 v{SB+r}, v{SB+r}")
            k("s_nop 0")
            for r in range(8): k(f"v_cvt_pk_bf16_f32 v{SB+16+r}, v{SB+2*r}, v{SB+2*r+1}")
            k("s_nop 1")
            for c in range(2): k.mfma32(vr(OA,16), vr(VR+4*c,4), vr(SB+16+4*c,4), vr(OA,16))
        k(f"s_add_u32 s32, s32, 1\ns_cmp_le_u32 s32, 8\ns_cbranch_scc1 p2_l{ps}")
        if ps == 0:
            fin_max(False)
            gcheck(1); k('s_mov_b32 s49, s30')
            for c in range(16): wo(c)
            k('s_mov_b32 s30, s49')
    for c in range(NGU): gu(c)
    k(f"""p2_join:
    s_lshl_b32 s30, s24, 15
    s_lshl_b32 s27, s9, 11
    s_add_u32 s30, s30, s27
    s_lshl_b32 s27, s37, 10
    s_add_u32 s30, s30, s27
    s_add_u32 s30, s30, {OF}
    s_nop 5
    v_rcp_f32 v8, v{OA+8}
    s_nop 0""")
    k.lg.q = []
    for r in range(8): k(f"v_mul_f32 v{OA+r}, v{OA+r}, v8")
    for r in range(4): k(f"v_cvt_pk_bf16_f32 v{OA+r}, v{OA+2*r}, v{OA+2*r+1}")
    k.bstore(vr(OA,4), 2, W, 's30', 0, fl=SC)
    k.stamp()
    arrive(1, 5)
    k(f"s_add_u32 s27, s2, s4\ns_cmp_lg_u32 s27, 0\ns_cbranch_scc1 p1_nn\nv_mov_b32 v5, {NONCE}\nv_mov_b32 v6, s60\ns_mov_b64 exec, 1\nbuffer_store_dword v6, v5, s[{W}:{W+3}], 0 offen sc1\ns_mov_b64 exec, -1\np1_nn:")
    k.vm.q = []
```

```python
from lib import *
from k01 import ln_scalars, LOG2E
SC = ' sc1'
UVL = 144*KB
WSL = [5, 6, 7, 8, 0, 1]
PK = int(os.environ.get('PK', 0))
BUD = int(os.environ.get('BUD', 8))
def p45(k, W, run, sadd, arrive, poll, ldsr, loads, row16):
    TH = int(os.environ.get('TH', 60))
    def thr():
        if len(k.vm.q) > TH: k(f"s_waitcnt vmcnt({TH})"); k.vm.q = k.vm.q[-TH:]
    def unit_dma(u):
        for i in range(4):
            k(f"s_add_u32 m0, s29, {(u % 9)*16*KB + i*KB}"); sadd(27, 28, u*16*KB + i*KB); thr(); k.dma(2, W, 's27', f'u{u}')
    k(f"s_cmp_lt_u32 s4, 4\ns_cbranch_scc1 p4_a\ns_lshl_b32 s29, s7, 12\ns_add_u32 s28, s41, s29\ns_sub_u32 s32, s42, {4*28*KB}")
    for u in (6, 7, 8): unit_dma(u)
    qL = list(k.vm.q)
    k("s_waitcnt vmcnt(12)\ns_branch p4_b\np4_a:\ns_waitcnt vmcnt(0)\np4_b:")
    poll(row16(2, 44)); k.stamp()
    k("s_cmp_ge_u32 s4, 4\ns_cbranch_scc1 p4_L")
    k.vm.q = []
    AC, WF, XB, TM, OU, ST = 16, 80, 112, 116, 124, 116
    NF, PF = 8, 6
    k(f"""s_lshl_b32 s28, s46, 15
    s_add_u32 s28, s28, {YF}
    s_lshl_b32 s29, s46, 11
    s_add_u32 s29, s29, {STB}
    v_lshlrev_b32 v5, 3, v3
    v_lshl_add_u32 v5, v4, 10, v5""")
    loads(128, 28, 4, None, fl=SC, tags=lambda i: f'y{i}')
    for e in range(4): k.bload(vr(ST+2*e,2), 5, W, 's29', e*256, 'st', w=2, fl=SC)
    def yld(i):
        if i % 4 == 0: sadd(29, 28, i*KB)
        k.bload(vr(128+4*i,4), 2, W, 's29', (i % 4)*KB, f'y{i}', fl=SC)
    YP = int(os.environ.get('YP', 24))
    for i in range(4, YP): yld(i)
    k(f"""s_mul_i32 s30, s46, {112*KB}
    s_mul_i32 s27, s45, {7*KB}
    s_add_u32 s30, s30, s27
    s_add_u32 s30, s30, {HF}
    s_add_u32 s31, s30, 4096
""")
    seq = [(p, kc) for kc in range(33) for p in (0, 1)] + [(p, kc) for p in range(2, 7) for kc in range(33)]
    def rd(i):
        p, kc = seq[i]
        ldsr(vr(WF+4*(i % NF),4), UVL + p*KB if kc == 32 else ((2*p + kc//16) % 9)*16*KB + (kc % 16)*KB, f'w{i}')
    def epi(p):
        ab = AC + (p % 4)*16; th = []
        R1, R2 = 5, 6
        for q in range(2):
            g = ab + 4*q; uu = ab + 8 + 4*q
            P = lambda x: f"v[{x}:{x+1}]"
            if PK:
                for r in (0, 2): th.append(f"v_pk_mul_f32 {P(TM+r)}, {P(g+r)}, {P(TM+4)} op_sel_hi:[1,0]")
            else:
                for r in range(4): th.append(f"v_mul_f32 v{TM+r}, v{g+r}, v{TM+4}")
            for r in range(4): th.append(f"v_exp_f32 v{TM+r}, v{TM+r}")
            if PK:
                for r in (0, 2): th.append(f"v_pk_fma_f32 {P(TM+r)}, {P(TM+r)}, {P(TM+6)}, {P(TM+6)} op_sel_hi:[1,0,0]")
            else:
                for r in range(4): th.append(f"v_fma_f32 v{TM+r}, v{TM+r}, v{TM+6}, v{TM+6}")
            for r in range(4): th.append(f"v_rcp_f32 v{TM+r}, v{TM+r}")
            if PK:
                for r in (0, 2): th.append(f"v_pk_mul_f32 {P(TM+r)}, {P(TM+r)}, {P(uu+r)}")
            else:
                for r in range(4): th.append(f"v_mul_f32 v{TM+r}, v{TM+r}, v{uu+r}")
            for r in range(2): th.append(f"v_cvt_pk_bf16_f32 v{OU+2*q+r}, v{TM+2*r}, v{TM+2*r+1}")
        th.append(lambda: k.bstore(vr(OU,4), 2, W, 's30' if p < 4 else 's31', (p % 4)*1024, fl=SC))
        return th
    def stats():
        k.vm.wait('st')
        k(f"""v_add_f32 v{ST}, v{ST}, v{ST+2}
        v_add_f32 v{ST+1}, v{ST+1}, v{ST+3}
        v_add_f32 v{ST+4}, v{ST+4}, v{ST+6}
        v_add_f32 v{ST+5}, v{ST+5}, v{ST+7}
        v_add_f32 v{ST}, v{ST}, v{ST+4}
        v_add_f32 v{ST+1}, v{ST+1}, v{ST+5}
        v_mov_b32 v{ST+2}, v{ST}
        v_mov_b32 v{ST+3}, v{ST+1}
        s_nop 1
        v_permlane32_swap_b32 v{ST+2}, v{ST}
        v_permlane32_swap_b32 v{ST+3}, v{ST+1}
        s_nop 1
        v_add_f32 v{ST}, v{ST}, v{ST+2}
        v_add_f32 v{ST+1}, v{ST+1}, v{ST+3}""")
        ln_scalars(k, ST, ST+1, ST+2, keep=ST+3)
        k(f"""v_sub_f32 v{ST}, 0, v{ST}
        v_mul_f32 v{TM+4}, 0x{LOG2E ^ 0x80000000:x}, v{ST+1}
        v_mov_b32 v{TM+6}, v{ST+3}
        v_mov_b32 v{XB}, 0
        v_mov_b32 v{XB+1}, 0
        v_mov_b32 v{XB+2}, 0
        v_mov_b32 v{XB+3}, 0
        s_mov_b32 exec_hi, 0
        v_cvt_pk_bf16_f32 v{XB}, v{ST}, v{ST}
        v_cvt_pk_bf16_f32 v{XB+1}, v{ST}, v{ST+3}
        v_cvt_pk_bf16_f32 v{XB+2}, v{ST+3}, v{ST+3}
        s_mov_b32 exec_hi, -1""")
    for q in range(PF): rd(q)
    fill = []; N = len(seq)
    bars = [64, 66+33, 66+66, 66+99, 66+132]
    for i, (p, kc) in enumerate(seq):
        if i == 68: fill = epi(0) + epi(1)
        if kc == 3 and p >= 3: fill += epi(p-1)
        if i+PF in bars: k("s_barrier")
        if i+PF < N: rd(i+PF)
        if p == 0 and kc < 32: k.vm.wait(f'y{kc}')
        if i % 3 == 0: k.lg.wait(f'w{min(i+2, N-1)}')
        d = vr(AC + (p % 4)*16, 16)
        k.mfma32(d, vr(WF+4*(i % NF),4), vr(128+4*kc,4) if kc < 32 else vr(XB,4), '0' if kc == 0 else d)
        if p == 0 and kc + YP < 32: yld(kc+YP)
        if i == 10: stats()
        if i == 65: k.stamp()
        bud = BUD
        while fill:
            cst = 8 if isinstance(fill[0], str) and fill[0][2:5] in ('exp', 'rcp') else 4
            if cst > bud: break
            bud -= cst; run(fill.pop(0))
        if kc == 32 and p >= 3: assert len(fill) <= 2*len(epi(0)), (p, len(fill))
    for x in fill: run(x)
    k.stamp()
    k("s_nop 7\ns_nop 3")
    for x in epi(6): run(x)
    k("s_branch p4_J\np4_L:")
    k.vm.q = []; k.lg.q = []
    from ka import spin
    k(f"s_mul_i32 s27, s45, {7*256}\ns_add_u32 s27, s27, {CNT + 2*32768}\nv_and_b32 v5, 7, v1\nv_min_u32 v5, 6, v5\nv_lshlrev_b32 v5, 8, v5\nv_add_u32 v5, s27, v5")
    spin(k, "p4_uv", 5, 6, W)
    k(f"s_lshl_b32 s30, s7, 11\ns_mul_i32 s31, s45, {7*KB}\ns_add_u32 s31, s31, s30\ns_add_u32 s31, s31, {UVB}")
    for i in range(2):
        k(f"s_add_u32 m0, s30, {UVL + i*KB}"); sadd(27, 31, i*KB); k.dma(2, W, 's27', 'uv', fl=SC)
    def wdc(j):
        for i in range(4):
            k(f"s_add_u32 m0, s29, {WSL[j]*16*KB + i*KB}"); sadd(27, 32, (4*j+i)*KB); thr(); k.dma(2, W, 's27', 'wc')
    for b in range(5):
        k.vm.wait(*[['uv'], ['u6', 'u7'], ['u8', 'u9'], ['u10', 'u11'], ['u12', 'u13']][b])
        k("s_barrier")
        for u in {0: [9, 11], 1: [10, 12, 13]}.get(b, []): unit_dma(u)
        if b >= 2: wdc(2*b-4); wdc(2*b-3)
        lo, hi = [(0, 6), (6, 8), (8, 14), (14, 20), (20, 28)][b]
        for i in range(lo, hi):
            sadd(27, 42, i*KB); k.bload(vr(144+4*i,4), 2, W, 's27', 0, 'wd', fl=SC)
    k("p4_J:")
    arrive(3, 47, True); k.vm.q = []; k.stamp()
    k("s_cmp_lt_u32 s4, 4\ns_cbranch_scc1 p5_ld\ns_waitcnt vmcnt(0)\np5_ld:\ns_barrier")
    k("s_cmp_ge_u32 s4, 4\ns_cbranch_scc1 p5_a"); sadd(28, 42, 24*KB); loads(240, 28, 4, 'wd')
    k("s_lshl_b32 s27, s4, 12\nv_add_u32 v16, s27, v2\nv_add_u32 v17, s27, v14\nv_add_u32 v18, s27, v15")
    for i in range(24):
        o = WSL[i//4]*16*KB + (i % 4)*KB; k.dsr(vr(144+4*i,4), 16 + (o >> 16), o & 0xffff)
    k.lg.all(); k("p5_a:"); k.vm.q = []
    k(f"""s_and_b32 s28, s25, -2
    s_mul_i32 s28, s28, {112*KB}
    s_mul_i32 s27, s4, {14*KB}
    s_add_u32 s28, s28, s27
    s_add_u32 s28, s28, {HF}
    s_add_u32 s29, s28, {112*KB}
    s_add_u32 s39, s39, {MOD+10240}""")
    poll(row16(3, 51)); k.stamp()
    AR, WR, AC = 80, 144, 16
    def act(s):
        if s % 4 == 0: sadd(30, 28, s*KB); sadd(31, 29, s*KB)
        for th in range(2): k.bload(vr(AR+8*(s % 8)+4*th,4), 2, W, f's{30+th}', (s % 4)*KB, f'a{s}', fl=SC)
    for s in range(8): act(s)
    for s in range(14):
        k.vm.wait(f'a{s}')
        for th in range(2):
            for nt in range(2):
                d = vr(AC+32*th+16*nt,16); k.mfma32(d, vr(WR+8*s+4*nt,4), vr(AR+8*(s % 8)+4*th,4), '0' if s == 0 else d)
        if s+8 < 14: act(s+8)
        if s == 6:
            for e in range(2): k.bload(vr(WR+4*e,4), 12, W, 's39', e*32, 'gb', fl=SC)
    k.stamp()
    k("""s_lshl_b32 s28, s4, 11
    v_add_u32 v13, s28, v2
    v_add_u32 v14, s28, v14
    s_lshl_b32 s28, s4, 14
    v_add_u32 v15, s28, v2
    s_nop 6""")
    for th in range(2):
        for q in range(4):
            for e in range(2):
                o = (2*q+th)*16384 + e*1024
                k.dsw(13 + (o >> 16), vr(AC+32*th+8*q+4*e,4), o & 0xffff)
    k.lg.all(); k("s_barrier")
    for w in range(8):
        for e in range(2): k.dsr(vr(AC+8*w+4*e,4), 15, w*2048 + e*1024, f'r{w}')
    for w in range(1, 8):
        k.lg.wait(f'r{w}')
        for r in range(0, 8, 2): k(f"v_pk_add_f32 v[{AC+r}:{AC+r+1}], v[{AC+r}:{AC+r+1}], v[{AC+8*w+r}:{AC+8*w+r+1}]")
    k.vm.wait('gb')
    for r in range(4):
        k(f"""v_lshlrev_b32 v32, 16, v{8+r}
        v_and_b32 v33, 0xffff0000, v{8+r}
        v_fma_f32 v32, v{AC+2*r}, v{WR+2*r}, v32
        v_fma_f32 v33, v{AC+2*r+1}, v{WR+2*r+1}, v33
        v_cvt_pk_bf16_f32 v{8+r}, v32, v33""")
    k("s_nop 1\nv_permlane32_swap_b32 v8, v10\nv_permlane32_swap_b32 v9, v11")
    k.bstore(vr(8,4), 7, 20, 's43', 0, fl=os.environ.get('OF', ''))
    k.stamp_end(1)
```

```python
from lib import *
from k01 import ln_scalars, LOG2E
import struct, math
def f2u(x): return struct.unpack('<I', struct.pack('<f', x))[0]
SC = ' sc1'
RR = 96*KB
def kb():
    k = Kern(NAME + "_kernel", 256, 512, 163840, 256)
    W = 12
    def run(x): k(x) if isinstance(x, str) else x()
    def sadd(d, b, imm): k(f"s_add_u32 s{d}, s{b}, {imm}")
    def arrive(ph, sidx, conly=False):
        lab = f"arr{k.uid()}"
        if conly: k(f"s_cmp_ge_u32 s4, 4\ns_cbranch_scc1 {lab}w")
        k.vm.all(); k(f"{lab}w:\ns_barrier")
        k(f"s_cmp_lg_u32 s4, 0\ns_cbranch_scc1 {lab}\ns_mov_b64 exec, 1\nv_mov_b32 v5, {CNT + ph*32768}\nv_mov_b32 v6, s60")
        k(f"buffer_store_dword v6, v5, s[{W}:{W+3}], s{sidx} offen sc1\ns_mov_b64 exec, -1\n{lab}:")
    def poll(addr):
        lab = f"pol{k.uid()}"
        k(f"s_cmp_lg_u32 s4, 3\ns_cbranch_scc1 {lab}e\ns_mov_b32 s50, 0x40000")
        k(addr)
        k(f"""{lab}:
        buffer_load_dword v6, v5, s[{W}:{W+3}], 0 offen sc1
        s_waitcnt vmcnt(0)
        v_cmp_ne_u32 vcc, s60, v6
        s_cbranch_vccz {lab}e
        s_sub_u32 s50, s50, 1
        s_cbranch_scc0 {lab}
        {lab}e:
        s_barrier""")
    def row16(ph, srow):
        return f"s_lshl_b32 s27, s{srow}, 11\ns_add_u32 s27, s27, {CNT + ph*32768}\nv_and_b32 v5, 15, v1\nv_lshlrev_b32 v5, 7, v5\nv_add_u32 v5, s27, v5"
    k("s_cmp_ge_u32 s2, 256\ns_cbranch_scc1 pb_kernel_end")
    k.stamp()
    def tmap(nr, R, sr_, sc_):
        lr = R.bit_length()-1; ng = nr//R; lg_ = ng.bit_length()-1
        k(f"""s_and_b32 s27, s2, {ng-1}
        s_lshl_b32 s{sr_}, s27, {lr}
        s_bfe_u32 s27, s2, {(lr << 16) | 3}
        s_add_u32 s{sr_}, s{sr_}, s27
        s_bfe_u32 s27, s2, {((3-lg_) << 16) | lg_}
        s_lshl_b32 s{sc_}, s27, {5-lr}
        s_lshr_b32 s27, s2, {3+lr}
        s_add_u32 s{sc_}, s{sc_}, s27""")
    from ka import F0C
    from kb0 import phase0
    phase0(k, tmap, int(os.environ.get('R1', 8))); k.stamp()
    k.srds(dict(ws=W, x=16, out=20))
    k("""v_and_b32 v1, 63, v0
    v_lshrrev_b32 v4, 6, v0
    v_lshlrev_b32 v2, 4, v1
    v_readfirstlane_b32 s4, v4
    v_and_b32 v3, 31, v0
    v_bfe_u32 v4, v0, 5, 1
    s_and_b32 s7, s4, 3""")
    tmap(16, int(os.environ.get('R1', 8)), 8, 9); tmap(32, int(os.environ.get('R3', 4)), 10, 11); tmap(16, int(os.environ.get('R4', 8)), 44, 45)
    k("s_lshl_b32 s46, s44, 2\ns_add_u32 s46, s46, s7\ns_lshl_b32 s47, s44, 4\ns_add_u32 s47, s47, s45\ns_lshl_b32 s47, s47, 7")
    k(f"""s_lshl_b32 s24, s8, 2
    s_add_u32 s24, s24, s7
    s_lshl_b32 s25, s10, 1
    s_and_b32 s27, s4, 1
    s_add_u32 s25, s25, s27
    s_lshr_b32 s26, s4, 1
    s_lshl_b32 s5, s8, 4
    s_add_u32 s5, s5, s9
    s_lshl_b32 s5, s5, 7
    s_lshl_b32 s6, s10, 3
    s_add_u32 s6, s6, s11
    s_lshl_b32 s6, s6, 7
    s_lshr_b32 s51, s10, 1
    s_lshr_b32 s34, s6, 8
    s_bitcmp1_b32 s6, 7
    s_cselect_b32 s34, 127, s34
    s_lshl_b32 s40, s11, 16
    s_lshl_b32 s27, s26, 14
    s_add_u32 s40, s40, s27
    s_add_u32 s40, s40, {WO}
    s_mul_i32 s41, s45, {224*KB}
    s_add_u32 s41, s41, {WGU}
    s_mul_i32 s42, s11, {224*KB}
    s_mul_i32 s27, s4, {28*KB}
    s_add_u32 s42, s42, s27
    s_add_u32 s42, s42, {WD}
    v_add_u32 v14, 0x10000, v2
    v_add_u32 v15, 0x20000, v2
    s_waitcnt lgkmcnt(0)
""")
    k.stamp()
    def ldsr(dst, off, tag):
        k.dsr(dst, [2, 14, 15][off >> 16], off & 0xffff, tag)
    def loads(dst, sbase, n, tag, fl=SC, step=1024, tags=None):
        for i in range(n):
            if (i*step) % 4096 == 0 or step > 1024: sadd(27, sbase, (i*step)//4096*4096 if step <= 1024 else i*step)
            k.bload(vr(dst+4*i,4), 2, W, 's27', (i*step) % 4096 if step <= 1024 else 0, tags(i) if tags else tag, fl=fl)
    def wo_loads(): loads(48, 40, 16, 'wo')
    from kb1 import p12
    p12(k, W, run, sadd, arrive, poll, ldsr, loads, wo_loads)
    XR, GA, A2, AC3, OFR = 8, 16, 24, 144, 112
    k(f"""v_lshlrev_b32 v7, 10, v3
    v_lshl_add_u32 v7, v4, 4, v7
    s_lshl_b32 s43, s25, 15
    s_lshl_b32 s27, s11, 7
    s_add_u32 s43, s43, s27
    s_lshl_b32 s27, s26, 5
    s_add_u32 s43, s43, s27
    v_lshlrev_b32 v12, 4, v4
    s_lshl_b32 s39, s11, 8
    s_lshl_b32 s27, s26, 6
    s_add_u32 s39, s39, s27
    s_add_u32 s28, s39, {MOD+4096}
    s_add_u32 s29, s39, {MOD+8192}""")
    k.bload(vr(XR,4), 7, 16, 's43', 0, 'e')
    for e in range(2):
        k.bload(vr(GA+4*e,4), 12, W, 's28', e*32, 'e', fl=SC); k.bload(vr(A2+4*e,4), 12, W, 's29', e*32, 'e', fl=SC)
    from kb1 import uvjob
    uvfin = uvjob(k, W, loads)
    k(f"s_lshl_b32 s28, s25, 15\ns_lshl_b32 s27, s26, 13\ns_add_u32 s28, s28, s27\ns_add_u32 s28, s28, {OF}")
    poll(row16(1, 51)); k.stamp()
    loads(OFR, 28, 8, None, fl=SC, tags=lambda i: f'o{i}')
    uvfin()
    for s in range(8):
        k.vm.wait(f'o{s}')
        for nt in range(2):
            d = vr(AC3+16*nt,16); k.mfma32(d, vr(48+8*s+4*nt,4), vr(OFR+4*s,4), '0' if s == 0 else d)
    k(f"""s_and_b32 s27, s4, 1
    s_lshl_b32 s27, s27, 13
    s_lshl_b32 s28, s26, 11
    s_add_u32 s28, s28, s27
    s_add_u32 s28, s28, {RR}
    v_add_u32 v13, s28, v2
    s_lshl_b32 s28, s4, 13
    s_add_u32 s28, s28, {RR}
    v_permlane32_swap_b32 v{XR}, v{XR+2}
    v_permlane32_swap_b32 v{XR+1}, v{XR+3}
    s_nop 4""")
    for q in range(4):
        for e in range(2): k.dsw(13, vr(AC3+8*q+4*e,4), q*16384 + e*1024)
    k("v_add_u32 v13, s28, v2"); k.lg.all(); k("s_barrier")
    for q in range(4):
        for e in range(2): k.dsr(vr(AC3+8*q+4*e,4), 13, q*2048 + e*1024, f'r{q}')
    for q in range(1, 4):
        k.lg.wait(f'r{q}')
        for r in range(0, 8, 2): k(f"v_pk_add_f32 v[{AC3+r}:{AC3+r+1}], v[{AC3+r}:{AC3+r+1}], v[{AC3+8*q+r}:{AC3+8*q+r+1}]")
    k("v_mov_b32 v36, 0\nv_mov_b32 v37, 0")
    for r in range(4):
        k(f"""v_lshlrev_b32 v32, 16, v{XR+r}
        v_and_b32 v33, 0xffff0000, v{XR+r}
        v_fma_f32 v32, v{AC3+2*r}, v{GA+2*r}, v32
        v_fma_f32 v33, v{AC3+2*r+1}, v{GA+2*r+1}, v33
        v_cvt_pk_bf16_f32 v{XR+r}, v32, v33
        v_lshlrev_b32 v32, 16, v{XR+r}
        v_and_b32 v33, 0xffff0000, v{XR+r}
        v_add_f32 v36, v36, v32
        v_fmac_f32 v37, v32, v32
        v_add_f32 v36, v36, v33
        v_fmac_f32 v37, v33, v33
        v_mul_f32 v32, v32, v{A2+2*r}
        v_mul_f32 v33, v33, v{A2+2*r+1}
        v_cvt_pk_bf16_f32 v{40+r}, v32, v33""")
    k(f"""s_lshl_b32 s28, s25, 15
    s_lshl_b32 s27, s11, 12
    s_add_u32 s28, s28, s27
    s_lshl_b32 s27, s26, 10
    s_add_u32 s28, s28, s27
    s_add_u32 s28, s28, {YF}
    v_permlane32_swap_b32 v40, v42
    v_permlane32_swap_b32 v41, v43""")
    k.bstore(vr(40,4), 2, W, 's28', 0, fl=SC)
    k.dsw(13, vr(36,2), 0, w=64); k.lg.all(); k("s_barrier")
    k(f"""s_cmp_ge_u32 s4, 2
    s_cbranch_scc1 p3_b""")
    for q in range(4): k.dsr(vr(32+2*q,2), 13, q*16384, w=64)
    k.lg.all()
    k(f"""v_add_f32 v32, v32, v34
    v_add_f32 v33, v33, v35
    v_add_f32 v36, v36, v38
    v_add_f32 v37, v37, v39
    v_add_f32 v32, v32, v36
    v_add_f32 v33, v33, v37
    v_mov_b32 v34, v32
    v_mov_b32 v35, v33
    s_lshl_b32 s28, s25, 11
    s_lshl_b32 s27, s11, 8
    v_permlane32_swap_b32 v34, v32
    v_permlane32_swap_b32 v35, v33
    s_add_u32 s28, s28, s27
    s_add_u32 s28, s28, {STB}
    v_add_f32 v32, v32, v34
    v_add_f32 v33, v33, v35
    v_lshlrev_b32 v34, 3, v3
    s_mov_b32 exec_hi, 0""")
    k.bstore(vr(32,2), 34, W, 's28', 0, w=2, fl=SC)
    k("s_mov_b32 exec_hi, -1")
    k("p3_b:")
    k.stamp()
    arrive(2, 6)
    from kb1 import NGU
    k(f"s_mul_i32 s29, s4, {12*KB}\ns_add_u32 s28, s41, s29")
    for c in range(NGU, 12): k(f"s_add_u32 m0, s29, {c*KB}"); sadd(27, 28, c*KB); k.dma(2, W, 's27', 'gu')
    k.vm.q = []
    from kb2 import p45
    p45(k, W, run, sadd, arrive, poll, ldsr, loads, row16)
    k("pb_kernel_end:\ns_endpgm")
    return k
```

```python
from lib import *
import struct, math
def f2u(x): return struct.unpack('<I', struct.pack('<f', x))[0]
SC = ' sc1'
RR = 96*KB
LK, LV, LQ, LU, LM, L1 = RR, RR+24*KB, RR+48*KB, RR+56*KB, RR+58*KB, RR+63*KB
def uvjob(k, W, loads):
    k("s_cmp_ge_u32 s34, 112\ns_cbranch_scc1 uv_a\ns_cmp_lt_u32 s4, 4\ns_cbranch_scc1 uv_a")
    k(f"""s_lshl_b32 s28, s34, 15
    s_lshl_b32 s27, s7, 13
    s_add_u32 s28, s28, s27
    s_add_u32 s28, s28, {WGU}
    v_and_b32 v13, 1, v1
    v_lshlrev_b32 v13, 10, v13
    v_sub_u32 v13, {LM + 1024}, v13
    v_lshl_add_u32 v13, v4, 4, v13
    s_lshl_b32 s27, s7, 8
    v_add_u32 v13, s27, v13""")
    for i in range(2):
        k(f"s_mov_b32 m0, {LM + i*KB}\ns_mov_b32 s27, {MODH + 3072 + i*KB}"); k.dma(2, W, 's27', 'mh')
    loads(128, 28, 8, 'a'); k.vm.wait('mh')
    for c in range(8): k.dsr(vr(160+4*c,4), 13, c*32)
    k(f"v_lshlrev_b32 v13, 7, v3\nv_lshl_add_u32 v13, v4, 4, v13\ns_lshl_b32 s27, s7, 8\ns_add_u32 s27, s27, {LU}\nv_add_u32 v13, s27, v13")
    k.vm.all(); k.lg.all()
    for c in range(8): k.mfma32(vr(192,16), vr(128+4*c,4), vr(160+4*c,4), '0' if c == 0 else vr(192,16))
    k("s_nop 7\ns_nop 3\ns_mov_b32 exec_lo, 3\ns_mov_b32 exec_hi, 3")
    for q in range(4): k.dsw(13, vr(192+4*q,4), q*32)
    k("s_mov_b64 exec, -1\nuv_a:"); k.lg.all(); k.vm.q = []
    def fin():
        SB = 176
        k(f"s_cmp_ge_u32 s34, 112\ns_cbranch_scc1 uv_b\ns_cmp_lg_u32 s4, 4\ns_cbranch_scc1 uv_b\nv_lshlrev_b32 v13, 2, v3\nv_add_u32 v13, {LU}, v13")
        for w in range(4):
            for n in range(2): k.dsr(vr(SB+2*w+n), 13, w*256 + n*128, w=32)
        k.lg.all(); k("s_barrier")
        for w in range(1, 4): k(f"v_add_f32 v{SB}, v{SB}, v{SB+2*w}\nv_add_f32 v{SB+1}, v{SB+1}, v{SB+2*w+1}")
        for n in range(2):
            x = SB+n; t = SB+2+3*n
            k(f"v_and_b32 v{t}, 0xffff0000, v{x}\nv_sub_f32 v{x}, v{x}, v{t}\nv_and_b32 v{t+1}, 0xffff0000, v{x}\nv_sub_f32 v{t+2}, v{x}, v{t+1}")
        k(f"""v_cvt_pk_bf16_f32 v{SB+8}, v{SB+2}, v{SB+3}
        v_cvt_pk_bf16_f32 v{SB+9}, v{SB+4}, v{SB+5}
        v_cvt_pk_bf16_f32 v{SB+10}, v{SB+6}, v{SB+7}
        v_mov_b32 v{SB+11}, 0
        s_lshl_b32 s27, s34, 10
        s_add_u32 s27, s27, {UVB}
        buffer_store_dwordx4 v[{SB+8}:{SB+11}], v2, s[{W}:{W+3}], s27 offen sc1
        s_waitcnt vmcnt(1)
        s_branch uv_c
        uv_b:
        s_barrier
        uv_c:""")
    return fin
GC = int(os.environ.get('GC', 4))
NGU = int(os.environ.get('NGU', 6))
def p12(k, W, run, sadd, arrive, poll, ldsr, loads, wo_loads):
    def ldsw(src, off, base):
        k.dsw(base + (off >> 16) - 1, src, off & 0xffff)
    from ka import spin, NONCE, F0L
    k(f"""s_and_b32 s27, s4, 3
    s_lshl_b32 s27, s27, 10
    s_add_u32 m0, s27, {LM}
    s_lshr_b32 s37, s4, 2
    s_cbranch_scc1 p1_nm""")
    k.dma(2, W, 's27', 'md'); k("p1_nm:")
    k(f"""v_bfe_u32 v8, v1, 2, 2
    v_lshl_add_u32 v8, v4, 3, v8
    v_lshlrev_b32 v8, 6, v8
    v_bfe_u32 v9, v1, 4, 1
    v_lshl_add_u32 v8, v9, 5, v8
    v_and_b32 v9, 3, v1
    v_lshl_add_u32 v8, v9, 3, v8
    s_lshl_b32 s27, s37, 14
    v_add_u32 v8, s27, v8
    v_add_u32 v9, 0x10000, v8
    v_lshlrev_b32 v7, 5, v4
    s_lshl_b32 s27, s37, 10
    s_add_u32 s27, s27, {LM}
    v_add_u32 v7, s27, v7""")
    NF, MS, HB = 6, 88, 120
    seq = [(p, kc) for kc in range(16) for p in (1, 2, 0)]
    def rd(i):
        p, kc = seq[i]
        for e in range(2): k.trd(vr(64+4*(i % NF)+2*e,2), 8 + p//2, (p % 2)*32*KB + kc*KB + e*256, f'w{i}')
    def rdm(kc):
        for j in range(4): k.dsr(vr(MS+16*(kc % 2)+4*j,4), 7, kc*64 + (j//2)*2048 + (j % 2)*16, f'm{kc}')
    def modu(kc):
        M = MS+16*(kc % 2); x = 128+8*kc
        k.lg.wait(f'm{kc}')
        for r in range(0, 8, 2): k(f"v_pk_fma_f32 v[{x+r}:{x+r+1}], v[{x+r}:{x+r+1}], v[{M+8+r}:{M+9+r}], v[{M+r}:{M+r+1}]")
        if kc+2 < 16: rdm(kc+2)
        for r in range(4): k(f"v_cvt_pk_bf16_f32 v{HB+4*(kc % 2)+r}, v{x+2*r}, v{x+2*r+1}")
    k("s_cmp_lg_u32 s55, -1\ns_cbranch_scc1 p1_w8\ns_waitcnt vmcnt(0)\np1_w8:\ns_waitcnt vmcnt(8)\ns_barrier"); k.vm.q = []
    rdm(0); rdm(1)
    for q in range(3): rd(q)
    modu(0)
    for i, (p, kc) in enumerate(seq):
        if i+3 < 48: rd(i+3)
        k.lg.wait(f'w{i}')
        d = vr([48,16,32][p],16); w = vr(64+4*(i % NF),4); h = vr(HB+4*(kc % 2),4); c = '0' if kc == 0 else d
        if p < 2: k.mfma32(d, w, h, c)
        else: k.mfma32(d, h, w, c)
        if p == 1 and kc < 15: modu(kc+1)
        if p == 0 and kc == int(os.environ.get('JK', 8)):
            from ka import job_finish
            q0 = list(k.lg.q)
            k("s_cmp_eq_u32 s55, -1\ns_cbranch_scc1 p1_nj"); job_finish(k, W, 128); k("p1_nj:"); k.lg.q = q0
    k.stamp()
    k(f"""s_lshl_b32 s30, s9, 17
    s_lshl_b32 s27, s24, 10
    s_add_u32 s31, s30, s27
    s_add_u32 s30, s31, s27
    s_add_u32 s31, s31, {KF}
    s_add_u32 s30, s30, {VF}
    s_add_u32 s32, s31, 0x10000
    s_lshl_b32 s27, s7, 10
    v_add_u32 v8, s27, v14
    v_add_u32 v9, s27, v15
    v_add_u32 v10, s27, v8
    v_add_u32 v11, s27, v9
    s_mul_i32 s27, s7, {12*KB}
    v_add_u32 v7, s27, v2
    s_cmp_ge_u32 s4, 4
    s_cbranch_scc1 p1_L
    s_barrier""")
    for q in range(4): k.dsw(7, vr(48+4*q,4), (8+q)*KB)
    k.lg.all(); k("s_barrier")
    for q in range(8): k.dsr(vr(64+4*q,4), 7, q*KB, f'r{q//4}')
    for p in (1, 2):
        k.lg.wait(f'r{p-1}')
        for r in range(0, 16, 2): k(f"v_pk_add_f32 v[{16*p+r}:{16*p+r+1}], v[{16*p+r}:{16*p+r+1}], v[{48+16*p+r}:{48+16*p+r+1}]")
        for r in range(8): k(f"v_cvt_pk_bf16_f32 v{96+8*p+r}, v{16*p+2*r}, v{16*p+2*r+1}")
        for hh in range(2):
            src = vr(96+8*p+4*hh,4)
            if p == 1: k.bstore(src, 2, W, f's{31+hh}', 0, fl=SC); ldsw(src, LK + (hh*12+8)*KB, 8)
            else: k.bstore(src, 2, W, 's30', hh*KB, fl=SC); ldsw(src, LV + (16+hh)*KB, 10)
    k("s_branch p1_J\np1_L:\ns_barrier")
    for q in range(8): k.dsw(7, vr(16+4*q,4), q*KB)
    k.lg.all(); k("s_barrier")
    for q in range(4): k.dsr(vr(64+4*q,4), 7, (8+q)*KB)
    k(f"s_mov_b32 s33, 0x{f2u(0.25*math.log2(math.e)):x}\nv_mov_b32 v16, 0x3f803f80\nv_mov_b32 v17, v16\nv_mov_b32 v18, v16\nv_mov_b32 v19, v16")
    k.dsw(15, vr(16,4), L1 & 0xffff); k.lg.all()
    for r in range(16): k(f"v_add_f32 v{48+r}, v{48+r}, v{64+r}\nv_mul_f32 v{48+r}, s33, v{48+r}")
    for r in range(8): k(f"v_cvt_pk_bf16_f32 v{64+r}, v{48+2*r}, v{49+2*r}")
    for hh in range(2): ldsw(vr(64+4*hh,4), LQ + hh*4*KB, 8)
    k("p1_J:"); k.lg.all()
    arrive(0, 5, True); k.vm.q = []
    OA, QR, VR, M0, M8, NM, SB, KR = 16, 32, 36, 112, 128, 144, 160, 208
    k(f"v_lshlrev_b32 v7, 2, v4\nv_sub_u32 v7, v3, v7\ns_mov_b32 s31, 0x{f2u(-1e30):x}\nv_mov_b32 v8, s31\nv_mov_b32 v9, 0")
    for r in range(16):
        k(f"v_cmp_gt_i32 s[{52+2*(r%4)}:{53+2*(r%4)}], {(r//4)*8 + r % 4}, v7")
        if r % 4 == 3:
            for q in range(r-3, r+1):
                m = f"s[{52+2*(q%4)}:{53+2*(q%4)}]"
                k(f"v_cndmask_b32 v{M0+q}, v8, v9, {m}\nv_cndmask_b32 v{M8+q}, v9, v8, {m}")
    k(f"""s_lshl_b32 s28, s8, 2
    s_add_u32 s28, s28, s4
    s_sub_u32 s28, s28, 8
    s_max_i32 s28, s28, 0
    s_lshl_b32 s27, s9, 17
    s_lshl_b32 s35, s28, 10
    s_add_u32 s36, s35, s27
    s_add_u32 s35, s36, s35
    s_add_u32 s36, s36, {KF}
    s_add_u32 s35, s35, {VF}
    s_lshl_b32 s38, s4, 10
    s_lshr_b32 s37, s4, 2
    s_mul_i32 s27, s37, {12*KB}
    s_lshl_b32 s28, s7, 10
    s_add_u32 s27, s27, s28
    s_add_u32 s27, s27, {LK}
    v_add_u32 v13, s27, v2
    s_lshl_b32 s27, s37, 8
    s_lshl_b32 s28, s7, 11
    s_add_u32 s27, s27, s28
    s_add_u32 s27, s27, {LV}
    v_add_u32 v12, s27, v2
    v_cmp_gt_u32 vcc, 16, v3
    v_mov_b32 v10, 0x400
    v_mov_b32 v11, {L1}
    v_cndmask_b32 v10, 0, v10, vcc
    v_cndmask_b32 v12, v11, v12, vcc
    v_add_u32 v11, s38, v15""")
    k("s_cmp_lt_u32 s4, 4\ns_cbranch_scc1 p2_ld\ns_waitcnt vmcnt(0)\np2_ld:")
    poll(f"""s_sub_u32 s27, s5, 2048
    s_cselect_b32 s27, s5, s27
    s_sub_u32 s28, s5, 4096
    s_cselect_b32 s28, s5, s28
    v_mov_b32 v5, s27
    v_mov_b32 v6, s28
    v_cndmask_b32 v5, v5, v6, vcc
    v_add_u32 v5, {CNT}, v5"""); k.stamp()
    k(f"s_cmp_lg_u32 s4, 4\ns_cbranch_scc1 p1_nf\ns_lshl_b32 s27, s2, 7\nv_mov_b32 v5, {F0L}\nv_mov_b32 v6, s60\ns_mov_b64 exec, 1\nbuffer_store_dword v6, v5, s[{W}:{W+3}], s27 offen sc1\ns_mov_b64 exec, -1\np1_nf:")
    for hh in range(2):
        k(f"s_add_u32 m0, s38, {LK + hh*12*KB}"); sadd(27, 36, hh*64*KB); k.dma(2, W, 's27', 'kv', fl=SC)
    k(f"s_lshl_b32 s38, s38, 1")
    for hh in range(2):
        k(f"s_add_u32 m0, s38, {LV + hh*KB}"); sadd(27, 35, hh*KB); k.dma(2, W, 's27', 'kv', fl=SC)
    k.dsr(vr(QR,4), 11, LQ & 0xffff)
    k.vm.all()
    k.vm.q = []; k.lg.all(); k("s_barrier")
    k(f"s_mul_i32 s29, s4, {12*KB}\ns_add_u32 s28, s41, s29\ns_mov_b32 vcc_hi, 0\ns_mov_b32 vcc_lo, s37")
    def gu(c): k(f"s_add_u32 m0, s29, {c*KB}"); sadd(27, 28, c*KB); k.dma(2, W, 's27', 'gu')
    def wo(i):
        if i % 4 == 0: sadd(30, 40, i*KB)
        k.bload(vr(48+4*i,4), 2, W, 's30', (i % 4)*KB, 'wo', fl=SC)
    pre = [x for i in range(16) for x in ([(wo, i), (gu, i)] if i < NGU else [(wo, i)])]
    def pf(n=1):
        for _ in range(n):
            if pre: f, i = pre.pop(0); f(i)
    def gcheck(u):
        k(f"s_cmp_lt_u32 s4, 4\ns_cbranch_scc1 p2_f{u}e\ns_lshl_b32 s27, s7, 13\ns_add_u32 s27, s27, {F0L}\nv_lshlrev_b32 v5, 7, v1\nv_add_u32 v5, s27, v5")
        spin(k, f"p2_f{u}", 5, 6, W); k("s_barrier")
    def mx(b, first=False):
        for i in range(8):
            a = 8 + i % 2
            k(f"v_max_f32 v{a}, v{b+2*i}, v{b+2*i+1}" if first and i < 2 else f"v_max3_f32 v{a}, v{a}, v{b+2*i}, v{b+2*i+1}")
    def fin_max(m0):
        k("v_max_f32 v8, v8, v9\nv_mov_b32 v9, v8\ns_nop 1\nv_permlane32_swap_b32 v9, v8\ns_nop 1\nv_max_f32 v8, v8, v9")
        if m0:
            for r in range(16): k(f"v_sub_f32 v{M0+r}, v{M0+r}, v8")
        for r in range(16): k(f"v_sub_f32 v{NM+r}, 0, v8")
        for r in range(16): k(f"v_sub_f32 v{M8+r}, v{M8+r}, v8")
    def vrd(c): k.dsr(vr(VR+4*(c % 3),4), 12, 0, f'v{c}'); k("v_add_u32 v12, v12, v10")
    k("s_cmp_lt_u32 s8, 2\ns_cbranch_scc1 p2_slow")
    for j in range(9): k.dsr(vr(KR+4*j,4), 13, j*KB, f'k{j}')
    def sb(j): return SB + 16*(j % 3)
    def qk(j, c): k.mfma32(vr(sb(j),16), vr(KR+4*j,4), vr(QR,4), c)
    def c1(j): return vr(M0,16) if j == 0 else vr(M8,16) if j == 8 else '0'
    def c2(j): return vr(M0,16) if j == 0 else vr(M8,16) if j == 8 else vr(NM,16)
    for j in range(2): k.lg.wait(f'k{j}'); qk(j, c1(j))
    k('s_nop 5')
    for j in range(9):
        if j+2 < 9: k.lg.wait(f'k{j+2}'); qk(j+2, c1(j+2))
        if j == 0: k("s_nop 3")
        if j == 8: vrd(0); vrd(1)
        mx(sb(j), j == 0)
    fin_max(True)
    qk(0, c2(0)); qk(1, c2(1)); k("s_nop 7\ns_nop 3")
    def pv(c):
        k.lg.wait(f'v{c}')
        k.mfma32(vr(OA,16), vr(VR+4*(c % 3),4), vr(sb(c//2)+8*(c % 2),4), '0' if c == 0 else vr(OA,16))
    for c in range(18):
        b = sb(c//2) + 8*(c % 2)
        for r in range(8): k(f"v_exp_f32 v{b+r}, v{b+r}")
        if c > 0: pv(c-1)
        if c % 2 == 0 and c//2+2 < 9: qk(c//2+2, c2(c//2+2))
        if c+2 < 18: vrd(c+2)
        if c == GC: gcheck(0)
        if c >= GC: pf(2)
        for r in range(4): k(f"v_cvt_pk_bf16_f32 v{b+r}, v{b+2*r}, v{b+2*r+1}")
    k("s_nop 1"); pv(17)
    k("s_branch p2_join\np2_slow:")
    assert not pre
    k(f"s_sub_u32 s30, 8, s24\ns_lshl_b32 s27, s30, 10\nv_add_u32 v13, s27, v13\nv_mov_b32 v7, v13\ns_lshl_b32 s27, s30, 1\nv_mad_u32_u24 v12, v10, s27, v12\nv_mov_b32 v8, s31\nv_mov_b32 v9, s31")
    for r in range(16): k(f"v_mov_b32 v{OA+r}, 0")
    for ps in range(2):
        k(f"s_mov_b32 s32, s30\np2_l{ps}:")
        k.dsr(vr(KR,4), 13 if ps == 0 else 7, 0)
        k(f"v_add_u32 v{13 if ps == 0 else 7}, 0x400, v{13 if ps == 0 else 7}")
        if ps: vrd(0); vrd(1)
        k.lg.all()
        k(f"s_cmp_eq_u32 s32, 8\ns_cbranch_scc1 p2_m{ps}")
        k.mfma32(vr(SB,16), vr(KR,4), vr(QR,4), vr(NM,16) if ps else '0')
        k(f"s_branch p2_n{ps}\np2_m{ps}:")
        k.mfma32(vr(SB,16), vr(KR,4), vr(QR,4), vr(M8,16))
        k(f"p2_n{ps}:\ns_nop 7\ns_nop 3")
        if ps == 0: mx(SB)
        else:
            for r in range(16): k(f"v_exp_f32 v{SB+r}, v{SB+r}")
            k("s_nop 0")
            for r in range(8): k(f"v_cvt_pk_bf16_f32 v{SB+16+r}, v{SB+2*r}, v{SB+2*r+1}")
            k("s_nop 1")
            for c in range(2): k.mfma32(vr(OA,16), vr(VR+4*c,4), vr(SB+16+4*c,4), vr(OA,16))
        k(f"s_add_u32 s32, s32, 1\ns_cmp_le_u32 s32, 8\ns_cbranch_scc1 p2_l{ps}")
        if ps == 0:
            fin_max(False)
            gcheck(1); k('s_mov_b32 s49, s30')
            for c in range(16): wo(c)
            k('s_mov_b32 s30, s49')
    for c in range(NGU): gu(c)
    k(f"""p2_join:
    s_lshl_b32 s30, s24, 15
    s_lshl_b32 s27, s9, 11
    s_add_u32 s30, s30, s27
    s_lshl_b32 s27, s37, 10
    s_add_u32 s30, s30, s27
    s_add_u32 s30, s30, {OF}
    s_nop 5
    v_rcp_f32 v8, v{OA+8}
    s_nop 0""")
    k.lg.q = []
    for r in range(8): k(f"v_mul_f32 v{OA+r}, v{OA+r}, v8")
    for r in range(4): k(f"v_cvt_pk_bf16_f32 v{OA+r}, v{OA+2*r}, v{OA+2*r+1}")
    k.bstore(vr(OA,4), 2, W, 's30', 0, fl=SC)
    k.stamp()
    arrive(1, 5)
    k(f"s_add_u32 s27, s2, s4\ns_cmp_lg_u32 s27, 0\ns_cbranch_scc1 p1_nn\nv_mov_b32 v5, {NONCE}\nv_mov_b32 v6, s60\ns_mov_b64 exec, 1\nbuffer_store_dword v6, v5, s[{W}:{W+3}], 0 offen sc1\ns_mov_b64 exec, -1\np1_nn:")
    k.vm.q = []
```

```python
from lib import *
from k01 import lane_setup, ln_scalars
from ka import gemv, job_issue, job_dma, job_finish, NONCE, mix, RR
LS = RR + 54*KB
def phase0(k, tmap, R1):
    k.srds(dict(ws=16, x=20, wqkv=40))
    lane_setup(k)
    tmap(16, R1, 44, 45)
    k(f"""s_and_b32 s46, s4, 3
    s_lshr_b32 s47, s4, 2
    s_lshl_b32 s48, s44, 2
    s_add_u32 s48, s48, s46
    s_lshl_b32 s48, s48, 15
    s_lshl_b32 s27, s47, 9
    s_add_u32 s48, s48, s27
    v_and_b32 v10, 31, v1
    v_lshrrev_b32 v12, 5, v1
    v_xor_b32 v11, v10, v12
    v_lshlrev_b32 v11, 4, v11
    v_lshl_add_u32 v11, v12, 10, v11
    s_lshl_b32 s49, s4, 14
    s_mov_b32 s55, -1
    s_waitcnt lgkmcnt(0)
    s_load_dword s60, s[16:17], {NONCE}""")
    def xl():
        for i in range(16):
            k(f"s_add_u32 m0, s49, {i*KB}\ns_add_u32 s39, s48, {i*2048}\nv_xor_b32 v14, {(2*i & 15)*16}, v11"); k.dma(14, 20, 's39', 'x')
    k(f"s_cmp_lg_u32 s4, {os.environ.get('GW', 6)}\ns_cbranch_scc1 p0_ng\ns_cmp_ge_u32 s2, 192\ns_cbranch_scc1 p0_ng\ns_setprio 3")
    def mid(): k('s_barrier'); k(mix)
    gemv(k, mid)
    def stage(u):
        k.nst = 3; k.stamp()
        k("""v_and_b32 v14, 15, v10
        v_xor_b32 v14, v14, v12
        v_lshlrev_b32 v14, 4, v14
        v_lshl_add_u32 v14, v10, 9, v14
        v_add_u32 v14, s49, v14""")
        for c in range(16): k(f"v_xor_b32 v15, {c*32}, v14\nds_read_b128 v[{64+4*c}:{67+4*c}], v15")
        k(f"s_cmp_lt_u32 s4, 4\ns_cbranch_scc1 p0_nj\ns_cmp_eq_u32 s4, 6\ns_cbranch_scc1 p0_nj\ns_sub_u32 s20, 255, s2\ns_mul_i32 s20, s20, 3\ns_min_u32 s7, s46, 2\ns_add_u32 s20, s20, s7\ns_mov_b32 s7, s46\ns_cmp_ge_u32 s20, 736\ns_cbranch_scc1 p0_nj")
        job_issue(k); k("p0_nj:")
        k(f"""v_lshrrev_b32 v5, 2, v1
        v_mul_u32_u24 v5, 3072, v5
        v_and_b32 v6, 3, v1
        v_lshl_add_u32 v5, v6, 4, v5
        s_and_b32 s38, s4, 1
        s_mul_i32 s38, s38, {256*3072}
        s_lshr_b32 s39, s4, 1
        s_lshl_b32 s39, s39, 10
        s_add_u32 s38, s38, s39
        s_lshl_b32 s39, s45, 6
        s_add_u32 s38, s38, s39
        s_waitcnt lgkmcnt(0)
        s_cmp_ge_u32 s4, 6
        s_cselect_b32 vcc_lo, 1, 0
        s_mov_b32 vcc_hi, 0""")
        k("v_mov_b32 v16, 0\nv_mov_b32 v17, 0\nv_mov_b32 v18, 0\nv_mov_b32 v19, 0")
        for r in range(64):
            x = 128+2*r
            if r % 4 == 0:
                k(f"s_add_u32 m0, s49, {r//4*KB}\ns_add_u32 s39, s38, {r//4*16*3072}\ns_cbranch_vccnz p0_w{u}{r}"); k.dma(5, 40, 's39'); k(f"p0_w{u}{r}:")
            k(f"v_lshlrev_b32 v{x}, 16, v{64+r}\nv_and_b32 v{x+1}, 0xffff0000, v{64+r}\nv_pk_add_f32 v[16:17], v[16:17], v[{x}:{x+1}]\nv_pk_fma_f32 v[18:19], v[{x}:{x+1}], v[{x}:{x+1}], v[18:19]")
        k(f"""v_add_f32 v16, v16, v17
        v_add_f32 v17, v18, v19
        v_lshlrev_b32 v8, 3, v0
        v_add_u32 v8, {LS}, v8
        v_lshlrev_b32 v9, 3, v10
        s_lshl_b32 s39, s46, 9
        s_add_u32 s39, s39, {LS}
        v_add_u32 v9, s39, v9
        ds_write_b64 v8, v[16:17]
        s_waitcnt lgkmcnt(0)
    """)
    k("p0_gx:"); xl(); k("s_waitcnt vmcnt(0)\ns_branch p0_s2\np0_ng:")
    k(f"s_and_b32 s38, s44, 7\ns_mul_i32 s38, s38, {64*3072}\ns_lshl_b32 s39, s45, 6\ns_add_u32 s38, s38, s39\nv_mul_u32_u24 v5, 3072, v1\ns_cmp_lg_u32 s4, 7\ns_cbranch_scc1 p0_nt")
    for p in range(3): k(f"buffer_load_dword v{59+p}, v5, s[40:43], s38 offen offset:{p*1024}")
    k("p0_nt:")
    if os.environ.get('PT'): k("s_cmp_lg_u32 s4, 5\ns_cbranch_scc1 p0_np\nv_lshlrev_b32 v5, 19, v1\nbuffer_load_dword v58, v5, s[16:19], 0 offen offset:2048 sc1\np0_np:")
    k("s_barrier"); xl()
    k(f"s_waitcnt vmcnt(0)\ns_waitcnt lgkmcnt(0)\n{mix}\np0_s2:"); stage(0)
    from ka import spin, F0C
    k(f"s_setprio 0\ns_cmp_lg_u32 s4, 3\ns_cbranch_scc1 p0_mpe\nv_lshlrev_b32 v5, 7, v1\nv_add_u32 v5, {F0C}, v5")
    spin(k, "p0_mp", 5, 6, 16)
    k(f"s_barrier\ns_cmp_ge_u32 s4, 4\ns_cbranch_scc1 p0_nm\ns_lshl_b32 s39, s4, 10\ns_add_u32 m0, s39, {RR + 58*KB}\nv_lshlrev_b32 v15, 4, v1")
    k.dma(15, 16, 's39', fl=' sc1')
    k("p0_nm:\ns_cmp_eq_u32 s55, -1\ns_cbranch_scc1 p0_n2"); job_dma(k); k("p0_n2:")
    for q in range(4): k(f"ds_read_b64 v[{16+2*q}:{17+2*q}], v9 offset:{(q//2)*2048 + (q % 2)*256}")
    k("s_waitcnt lgkmcnt(0)\nv_pk_add_f32 v[16:17], v[16:17], v[18:19]\nv_pk_add_f32 v[20:21], v[20:21], v[22:23]\nv_pk_add_f32 v[16:17], v[16:17], v[20:21]")
    ln_scalars(k, 16, 17, 18)
    k("v_mul_f32 v16, v16, v17\nv_sub_f32 v16, 0, v16")
    for r in range(64):
        x = 128+2*r
        k(f"v_pk_fma_f32 v[{x}:{x+1}], v[{x}:{x+1}], v[16:17], v[16:17] op_sel:[0,1,0] op_sel_hi:[1,1,0]")
    k.vm.q = []; k.lg.q = []; k.nst = 4
```

```python
from lib import *
import struct, math
def f2u(x): return struct.unpack('<I', struct.pack('<f', x))[0]
SC = ' sc1'
RR = 96*KB
LK, LV, LQ, LU, LM, L1 = RR, RR+24*KB, RR+48*KB, RR+56*KB, RR+58*KB, RR+63*KB
def uvjob(k, W, loads):
    k("s_cmp_ge_u32 s34, 112\ns_cbranch_scc1 uv_a\ns_cmp_lt_u32 s4, 4\ns_cbranch_scc1 uv_a")
    k(f"""s_lshl_b32 s28, s34, 15
    s_lshl_b32 s27, s7, 13
    s_add_u32 s28, s28, s27
    s_add_u32 s28, s28, {WGU}
    v_and_b32 v13, 1, v1
    v_lshlrev_b32 v13, 10, v13
    v_sub_u32 v13, {LM + 1024}, v13
    v_lshl_add_u32 v13, v4, 4, v13
    s_lshl_b32 s27, s7, 8
    v_add_u32 v13, s27, v13""")
    for i in range(2):
        k(f"s_mov_b32 m0, {LM + i*KB}\ns_mov_b32 s27, {MODH + 3072 + i*KB}"); k.dma(2, W, 's27', 'mh')
    loads(128, 28, 8, 'a'); k.vm.wait('mh')
    for c in range(8): k.dsr(vr(160+4*c,4), 13, c*32)
    k(f"v_lshlrev_b32 v13, 7, v3\nv_lshl_add_u32 v13, v4, 4, v13\ns_lshl_b32 s27, s7, 8\ns_add_u32 s27, s27, {LU}\nv_add_u32 v13, s27, v13")
    k.vm.all(); k.lg.all()
    for c in range(8): k.mfma32(vr(192,16), vr(128+4*c,4), vr(160+4*c,4), '0' if c == 0 else vr(192,16))
    k("s_nop 7\ns_nop 3\ns_mov_b32 exec_lo, 3\ns_mov_b32 exec_hi, 3")
    for q in range(4): k.dsw(13, vr(192+4*q,4), q*32)
    k("s_mov_b64 exec, -1\nuv_a:"); k.lg.all(); k.vm.q = []
    def fin():
        SB = 176
        k(f"s_cmp_ge_u32 s34, 112\ns_cbranch_scc1 uv_b\ns_cmp_lg_u32 s4, 4\ns_cbranch_scc1 uv_b\nv_lshlrev_b32 v13, 2, v3\nv_add_u32 v13, {LU}, v13")
        for w in range(4):
            for n in range(2): k.dsr(vr(SB+2*w+n), 13, w*256 + n*128, w=32)
        k.lg.all(); k("s_barrier")
        for w in range(1, 4): k(f"v_add_f32 v{SB}, v{SB}, v{SB+2*w}\nv_add_f32 v{SB+1}, v{SB+1}, v{SB+2*w+1}")
        for n in range(2):
            x = SB+n; t = SB+2+3*n
            k(f"v_and_b32 v{t}, 0xffff0000, v{x}\nv_sub_f32 v{x}, v{x}, v{t}\nv_and_b32 v{t+1}, 0xffff0000, v{x}\nv_sub_f32 v{t+2}, v{x}, v{t+1}")
        k(f"""v_cvt_pk_bf16_f32 v{SB+8}, v{SB+2}, v{SB+3}
        v_cvt_pk_bf16_f32 v{SB+9}, v{SB+4}, v{SB+5}
        v_cvt_pk_bf16_f32 v{SB+10}, v{SB+6}, v{SB+7}
        v_mov_b32 v{SB+11}, 0
        s_lshl_b32 s27, s34, 10
        s_add_u32 s27, s27, {UVB}
        buffer_store_dwordx4 v[{SB+8}:{SB+11}], v2, s[{W}:{W+3}], s27 offen sc1
        s_waitcnt vmcnt(1)
        s_branch uv_c
        uv_b:
        s_barrier
        uv_c:""")
    return fin
GC = int(os.environ.get('GC', 4))
NGU = int(os.environ.get('NGU', 6))
def p12(k, W, run, sadd, arrive, poll, ldsr, loads, wo_loads):
    def ldsw(src, off, base):
        k.dsw(base + (off >> 16) - 1, src, off & 0xffff)
    from ka import spin, NONCE, F0L
    k("s_lshr_b32 s37, s4, 2")
    k(f"""v_bfe_u32 v8, v1, 2, 2
    v_lshl_add_u32 v8, v4, 3, v8
    v_lshlrev_b32 v8, 6, v8
    v_bfe_u32 v9, v1, 4, 1
    v_lshl_add_u32 v8, v9, 5, v8
    v_and_b32 v9, 3, v1
    v_lshl_add_u32 v8, v9, 3, v8
    s_lshl_b32 s27, s37, 14
    v_add_u32 v8, s27, v8
    v_add_u32 v9, 0x10000, v8
    v_lshlrev_b32 v7, 5, v4
    s_lshl_b32 s27, s37, 10
    s_add_u32 s27, s27, {LM}
    v_add_u32 v7, s27, v7""")
    NF, MS, HB = 6, 88, 120
    seq = [(p, kc) for kc in range(16) for p in (1, 2, 0)]
    def rd(i):
        p, kc = seq[i]
        for e in range(2): k.trd(vr(64+4*(i % NF)+2*e,2), 8 + p//2, (p % 2)*32*KB + kc*KB + e*256, f'w{i}')
    def rdm(kc):
        for j in range(4): k.dsr(vr(MS+16*(kc % 2)+4*j,4), 7, kc*64 + (j//2)*2048 + (j % 2)*16, f'm{kc}')
    def modu(kc):
        M = MS+16*(kc % 2); x = 128+8*kc
        k.lg.wait(f'm{kc}')
        for r in range(0, 8, 2): k(f"v_pk_fma_f32 v[{x+r}:{x+r+1}], v[{x+r}:{x+r+1}], v[{M+8+r}:{M+9+r}], v[{M+r}:{M+r+1}]")
        if kc+2 < 16: rdm(kc+2)
        for r in range(4): k(f"v_cvt_pk_bf16_f32 v{HB+4*(kc % 2)+r}, v{x+2*r}, v{x+2*r+1}")
    k("s_cmp_lg_u32 s55, -1\ns_cbranch_scc1 p1_w8\ns_waitcnt vmcnt(0)\np1_w8:\ns_waitcnt vmcnt(8)\ns_barrier"); k.vm.q = []
    rdm(0); rdm(1)
    for q in range(3): rd(q)
    modu(0)
    for i, (p, kc) in enumerate(seq):
        if i+3 < 48: rd(i+3)
        k.lg.wait(f'w{i}')
        d = vr([48,16,32][p],16); w = vr(64+4*(i % NF),4); h = vr(HB+4*(kc % 2),4); c = '0' if kc == 0 else d
        if p < 2: k.mfma32(d, w, h, c)
        else: k.mfma32(d, h, w, c)
        if p == 1 and kc < 15: modu(kc+1)
        if p == 0 and kc == int(os.environ.get('JK', 11)):
            from ka import job_finish
            q0 = list(k.lg.q)
            k("s_cmp_eq_u32 s55, -1\ns_cbranch_scc1 p1_nj"); job_finish(k, W, 128); k("p1_nj:"); k.lg.q = q0
    k.stamp()
    k(f"""s_lshl_b32 s30, s9, 17
    s_lshl_b32 s27, s24, 10
    s_add_u32 s31, s30, s27
    s_add_u32 s30, s31, s27
    s_add_u32 s31, s31, {KF}
    s_add_u32 s30, s30, {VF}
    s_add_u32 s32, s31, 0x10000
    s_lshl_b32 s27, s7, 10
    v_add_u32 v8, s27, v14
    v_add_u32 v9, s27, v15
    v_add_u32 v10, s27, v8
    v_add_u32 v11, s27, v9
    s_mul_i32 s27, s7, {12*KB}
    v_add_u32 v7, s27, v2
    s_cmp_ge_u32 s4, 4
    s_cbranch_scc1 p1_L
    s_barrier""")
    for q in range(4): k.dsw(7, vr(48+4*q,4), (8+q)*KB)
    k.lg.all(); k("s_barrier")
    for q in range(8): k.dsr(vr(64+4*q,4), 7, q*KB, f'r{q//4}')
    for p in (1, 2):
        k.lg.wait(f'r{p-1}')
        for r in range(0, 16, 2): k(f"v_pk_add_f32 v[{16*p+r}:{16*p+r+1}], v[{16*p+r}:{16*p+r+1}], v[{48+16*p+r}:{48+16*p+r+1}]")
        for r in range(8): k(f"v_cvt_pk_bf16_f32 v{96+8*p+r}, v{16*p+2*r}, v{16*p+2*r+1}")
        for hh in range(2):
            src = vr(96+8*p+4*hh,4)
            if p == 1: k.bstore(src, 2, W, f's{31+hh}', 0, fl=SC); ldsw(src, LK + (hh*12+8)*KB, 8)
            else: k.bstore(src, 2, W, 's30', hh*KB, fl=SC); ldsw(src, LV + (16+hh)*KB, 10)
    k("s_branch p1_J\np1_L:\ns_barrier")
    for q in range(8): k.dsw(7, vr(16+4*q,4), q*KB)
    k.lg.all(); k("s_barrier")
    for q in range(4): k.dsr(vr(64+4*q,4), 7, (8+q)*KB)
    k(f"s_mov_b32 s33, 0x{f2u(0.25*math.log2(math.e)):x}\nv_mov_b32 v16, 0x3f803f80\nv_mov_b32 v17, v16\nv_mov_b32 v18, v16\nv_mov_b32 v19, v16")
    k.dsw(15, vr(16,4), L1 & 0xffff); k.lg.all()
    for r in range(16): k(f"v_add_f32 v{48+r}, v{48+r}, v{64+r}\nv_mul_f32 v{48+r}, s33, v{48+r}")
    for r in range(8): k(f"v_cvt_pk_bf16_f32 v{64+r}, v{48+2*r}, v{49+2*r}")
    for hh in range(2): ldsw(vr(64+4*hh,4), LQ + hh*4*KB, 8)
    k("p1_J:"); k.lg.all()
    arrive(0, 5, True); k.vm.q = []
    OA, QR, VR, M0, M8, NM, SB, KR = 16, 32, 36, 112, 128, 144, 160, 208
    k(f"v_lshlrev_b32 v7, 2, v4\nv_sub_u32 v7, v3, v7\ns_mov_b32 s31, 0x{f2u(-1e30):x}\nv_mov_b32 v8, s31\nv_mov_b32 v9, 0")
    for r in range(16):
        k(f"v_cmp_gt_i32 s[{52+2*(r%4)}:{53+2*(r%4)}], {(r//4)*8 + r % 4}, v7")
        if r % 4 == 3:
            for q in range(r-3, r+1):
                m = f"s[{52+2*(q%4)}:{53+2*(q%4)}]"
                k(f"v_cndmask_b32 v{M0+q}, v8, v9, {m}\nv_cndmask_b32 v{M8+q}, v9, v8, {m}")
    k(f"""s_lshl_b32 s28, s8, 2
    s_add_u32 s28, s28, s4
    s_sub_u32 s28, s28, 8
    s_max_i32 s28, s28, 0
    s_lshl_b32 s27, s9, 17
    s_lshl_b32 s35, s28, 10
    s_add_u32 s36, s35, s27
    s_add_u32 s35, s36, s35
    s_add_u32 s36, s36, {KF}
    s_add_u32 s35, s35, {VF}
    s_lshl_b32 s38, s4, 10
    s_lshr_b32 s37, s4, 2
    s_mul_i32 s27, s37, {12*KB}
    s_lshl_b32 s28, s7, 10
    s_add_u32 s27, s27, s28
    s_add_u32 s27, s27, {LK}
    v_add_u32 v13, s27, v2
    s_lshl_b32 s27, s37, 8
    s_lshl_b32 s28, s7, 11
    s_add_u32 s27, s27, s28
    s_add_u32 s27, s27, {LV}
    v_add_u32 v12, s27, v2
    v_cmp_gt_u32 vcc, 16, v3
    v_mov_b32 v10, 0x400
    v_mov_b32 v11, {L1}
    v_cndmask_b32 v10, 0, v10, vcc
    v_cndmask_b32 v12, v11, v12, vcc
    v_add_u32 v11, s38, v15""")
    k("s_cmp_lt_u32 s4, 4\ns_cbranch_scc1 p2_ld\ns_waitcnt vmcnt(0)\np2_ld:")
    poll(f"""s_sub_u32 s27, s5, 2048
    s_cselect_b32 s27, s5, s27
    s_sub_u32 s28, s5, 4096
    s_cselect_b32 s28, s5, s28
    v_mov_b32 v5, s27
    v_mov_b32 v6, s28
    v_cndmask_b32 v5, v5, v6, vcc
    v_add_u32 v5, {CNT}, v5"""); k.stamp()
    k(f"s_cmp_lg_u32 s4, 4\ns_cbranch_scc1 p1_nf\ns_lshl_b32 s27, s2, 7\nv_mov_b32 v5, {F0L}\nv_mov_b32 v6, s60\ns_mov_b64 exec, 1\nbuffer_store_dword v6, v5, s[{W}:{W+3}], s27 offen sc1\ns_mov_b64 exec, -1\np1_nf:")
    for hh in range(2):
        k(f"s_add_u32 m0, s38, {LK + hh*12*KB}"); sadd(27, 36, hh*64*KB); k.dma(2, W, 's27', 'kv', fl=SC)
    k(f"s_lshl_b32 s38, s38, 1")
    for hh in range(2):
        k(f"s_add_u32 m0, s38, {LV + hh*KB}"); sadd(27, 35, hh*KB); k.dma(2, W, 's27', 'kv', fl=SC)
    k.dsr(vr(QR,4), 11, LQ & 0xffff)
    k.vm.all()
    k.vm.q = []; k.lg.all(); k("s_barrier")
    k(f"s_mul_i32 s29, s4, {12*KB}\ns_add_u32 s28, s41, s29\ns_mov_b32 vcc_hi, 0\ns_mov_b32 vcc_lo, s37")
    def gu(c): k(f"s_add_u32 m0, s29, {c*KB}"); sadd(27, 28, c*KB); k.dma(2, W, 's27', 'gu')
    def wo(i):
        if i % 4 == 0: sadd(30, 40, i*KB)
        k.bload(vr(48+4*i,4), 2, W, 's30', (i % 4)*KB, 'wo', fl=SC)
    pre = [x for i in range(16) for x in ([(wo, i), (gu, i)] if i < NGU else [(wo, i)])]
    def pf(n=1):
        for _ in range(n):
            if pre: f, i = pre.pop(0); f(i)
    def gcheck(u):
        k(f"s_cmp_lt_u32 s4, 4\ns_cbranch_scc1 p2_f{u}e\ns_lshl_b32 s27, s7, 13\ns_add_u32 s27, s27, {F0L}\nv_lshlrev_b32 v5, 7, v1\nv_add_u32 v5, s27, v5")
        spin(k, f"p2_f{u}", 5, 6, W); k("s_barrier")
    def mx(b, first=False):
        for i in range(8):
            a = 8 + i % 2
            k(f"v_max_f32 v{a}, v{b+2*i}, v{b+2*i+1}" if first and i < 2 else f"v_max3_f32 v{a}, v{a}, v{b+2*i}, v{b+2*i+1}")
    def fin_max(m0):
        k("v_max_f32 v8, v8, v9\nv_mov_b32 v9, v8\ns_nop 1\nv_permlane32_swap_b32 v9, v8\ns_nop 1\nv_max_f32 v8, v8, v9")
        if m0:
            for r in range(16): k(f"v_sub_f32 v{M0+r}, v{M0+r}, v8")
        for r in range(16): k(f"v_sub_f32 v{NM+r}, 0, v8")
        for r in range(16): k(f"v_sub_f32 v{M8+r}, v{M8+r}, v8")
    def vrd(c): k.dsr(vr(VR+4*(c % 3),4), 12, 0, f'v{c}'); k("v_add_u32 v12, v12, v10")
    k("s_cmp_lt_u32 s8, 2\ns_cbranch_scc1 p2_slow")
    for j in range(9): k.dsr(vr(KR+4*j,4), 13, j*KB, f'k{j}')
    def sb(j): return SB + 16*(j % 3)
    def qk(j, c): k.mfma32(vr(sb(j),16), vr(KR+4*j,4), vr(QR,4), c)
    def c1(j): return vr(M0,16) if j == 0 else vr(M8,16) if j == 8 else '0'
    def c2(j): return vr(M0,16) if j == 0 else vr(M8,16) if j == 8 else vr(NM,16)
    for j in range(2): k.lg.wait(f'k{j}'); qk(j, c1(j))
    k('s_nop 5')
    for j in range(9):
        if j+2 < 9: k.lg.wait(f'k{j+2}'); qk(j+2, c1(j+2))
        if j == 0: k("s_nop 3")
        if j == 8: vrd(0); vrd(1)
        mx(sb(j), j == 0)
    fin_max(True)
    qk(0, c2(0)); qk(1, c2(1)); k("s_nop 7\ns_nop 3")
    def pv(c):
        k.lg.wait(f'v{c}')
        k.mfma32(vr(OA,16), vr(VR+4*(c % 3),4), vr(sb(c//2)+8*(c % 2),4), '0' if c == 0 else vr(OA,16))
    for c in range(18):
        b = sb(c//2) + 8*(c % 2)
        for r in range(8): k(f"v_exp_f32 v{b+r}, v{b+r}")
        if c > 0: pv(c-1)
        if c % 2 == 0 and c//2+2 < 9: qk(c//2+2, c2(c//2+2))
        if c+2 < 18: vrd(c+2)
        if c == GC: gcheck(0)
        if c >= GC: pf(2)
        for r in range(4): k(f"v_cvt_pk_bf16_f32 v{b+r}, v{b+2*r}, v{b+2*r+1}")
    k("s_nop 1"); pv(17)
    k("s_branch p2_join\np2_slow:")
    assert not pre
    k(f"s_sub_u32 s30, 8, s24\ns_lshl_b32 s27, s30, 10\nv_add_u32 v13, s27, v13\nv_mov_b32 v7, v13\ns_lshl_b32 s27, s30, 1\nv_mad_u32_u24 v12, v10, s27, v12\nv_mov_b32 v8, s31\nv_mov_b32 v9, s31")
    for r in range(16): k(f"v_mov_b32 v{OA+r}, 0")
    for ps in range(2):
        k(f"s_mov_b32 s32, s30\np2_l{ps}:")
        k.dsr(vr(KR,4), 13 if ps == 0 else 7, 0)
        k(f"v_add_u32 v{13 if ps == 0 else 7}, 0x400, v{13 if ps == 0 else 7}")
        if ps: vrd(0); vrd(1)
        k.lg.all()
        k(f"s_cmp_eq_u32 s32, 8\ns_cbranch_scc1 p2_m{ps}")
        k.mfma32(vr(SB,16), vr(KR,4), vr(QR,4), vr(NM,16) if ps else '0')
        k(f"s_branch p2_n{ps}\np2_m{ps}:")
        k.mfma32(vr(SB,16), vr(KR,4), vr(QR,4), vr(M8,16))
        k(f"p2_n{ps}:\ns_nop 7\ns_nop 3")
        if ps == 0: mx(SB)
        else:
            for r in range(16): k(f"v_exp_f32 v{SB+r}, v{SB+r}")
            k("s_nop 0")
            for r in range(8): k(f"v_cvt_pk_bf16_f32 v{SB+16+r}, v{SB+2*r}, v{SB+2*r+1}")
            k("s_nop 1")
            for c in range(2): k.mfma32(vr(OA,16), vr(VR+4*c,4), vr(SB+16+4*c,4), vr(OA,16))
        k(f"s_add_u32 s32, s32, 1\ns_cmp_le_u32 s32, 8\ns_cbranch_scc1 p2_l{ps}")
        if ps == 0:
            fin_max(False)
            gcheck(1); k('s_mov_b32 s49, s30')
            for c in range(16): wo(c)
            k('s_mov_b32 s30, s49')
    for c in range(NGU): gu(c)
    k(f"""p2_join:
    s_lshl_b32 s30, s24, 15
    s_lshl_b32 s27, s9, 11
    s_add_u32 s30, s30, s27
    s_lshl_b32 s27, s37, 10
    s_add_u32 s30, s30, s27
    s_add_u32 s30, s30, {OF}
    s_nop 5
    v_rcp_f32 v8, v{OA+8}
    s_nop 0""")
    k.lg.q = []
    for r in range(8): k(f"v_mul_f32 v{OA+r}, v{OA+r}, v8")
    for r in range(4): k(f"v_cvt_pk_bf16_f32 v{OA+r}, v{OA+2*r}, v{OA+2*r+1}")
    k.bstore(vr(OA,4), 2, W, 's30', 0, fl=SC)
    k.stamp()
    arrive(1, 5)
    k(f"s_add_u32 s27, s2, s4\ns_cmp_lg_u32 s27, 0\ns_cbranch_scc1 p1_nn\nv_mov_b32 v5, {NONCE}\nv_mov_b32 v6, s60\ns_mov_b64 exec, 1\nbuffer_store_dword v6, v5, s[{W}:{W+3}], 0 offen sc1\ns_mov_b64 exec, -1\np1_nn:")
    k.vm.q = []
```
